```python
import torch

def _softmax(x, axis=-1):
    return torch.softmax(x, dim=axis)
def _gelu(x):
    return torch.nn.functional.gelu(x, approximate="tanh")
def _silu(x):
    return torch.nn.functional.silu(x)
def _sigmoid(x):
    return torch.sigmoid(x)
def _layernorm(x, axis=-1, eps=1e-5):
    m = x.mean(dim=axis, keepdim=True)
    v = x.var(dim=axis, keepdim=True, unbiased=False)
    return (x - m) / torch.sqrt(v + eps)
def _scatter_add(tgt, idx, src, axis=0):
    return tgt.clone().index_add_(axis, idx, src)
def _segment_sum(src, seg, n):
    out = torch.zeros((n,) + src.shape[1:], dtype=src.dtype)
    return out.index_add_(0, seg, src)
def _pad(x, pw):
    flat = tuple(v for pair in reversed(pw) for v in pair)
    return torch.nn.functional.pad(x, flat)

kernel_name = 'standalone__mha_block_cached__near_ridge'

def setup_inputs():

    _w = (lambda a: (lambda t: t.to(torch.bfloat16) if t.is_floating_point() else t)(torch.as_tensor(a)))
    B, Sq, D = 16, 64, 512
    H, Sk, Dh = 32, 64, 128
    return {
        "x": _w((lambda *s: torch.randn(*s, dtype=torch.bfloat16) * 0.8)(B, Sq, D)),
        "k_cache": _w((lambda *s: torch.randn(*s, dtype=torch.bfloat16) * 0.8)(B, H, Sk, Dh)),
        "v_cache": _w((lambda *s: torch.randn(*s, dtype=torch.bfloat16) * 0.05)(B, H, Sk, Dh)),
        "wq": _w((lambda *s: torch.randn(*s, dtype=torch.bfloat16) * 0.8)(D, H * Dh) * (D ** -0.5)),
        "wo": _w((lambda *s: torch.randn(*s, dtype=torch.bfloat16) * 0.05)(H * Dh, D) * ((H * Dh) ** -0.5)),
    }

def reference(x, k_cache, v_cache, wq, wo):
    B, Sq, D = x.shape
    H, Dh = 32, 128
    q = (lambda x, *d: x.permute(*d))((x @ wq).reshape(B, Sq, H, Dh), 0, 2, 1, 3)
    scores = torch.einsum("bhqd,bhkd->bhqk", q, k_cache) * (Dh ** -0.5)
    p = _softmax(scores, axis=-1)
    o = torch.einsum("bhqk,bhkd->bhqd", p, v_cache)
    return (lambda x, *d: x.permute(*d))(o, 0, 2, 1, 3).reshape(B, Sq, H * Dh) @ wo
```

```python
NAME = "standalone__mha_block_cached__near_ridge"
HEADER = open("cdna_kernels/%s.s.ref" % NAME).read().split("; Override launch geometry")[0]

class Asm:
    def __init__(self):
        self.lines = []
    def __call__(self, s=""):
        for ln in s.split("\n"):
            ln = ln.strip()
            if not ln: continue
            if ln.endswith(":") or ln.startswith(".") : self.lines.append(ln)
            else: self.lines.append("    " + ln)
    def c(self, s): self.lines.append("    ; " + s)
    def text(self): return "\n".join(self.lines) + "\n"

def v(a, n=1): return f"v{a}" if n == 1 else f"v[{a}:{a+n-1}]"
def s(a, n=1): return f"s{a}" if n == 1 else f"s[{a}:{a+n-1}]"

def kd(name, vgpr, sgpr=102, acc=None):
    acc = acc or ((vgpr + 3) // 4 * 4)
    return f""".p2align 6
.amdhsa_kernel {name}
  .amdhsa_next_free_vgpr {vgpr}
  .amdhsa_next_free_sgpr {sgpr}
  .amdhsa_accum_offset {acc}
  .amdhsa_group_segment_fixed_size 0
  .amdhsa_kernarg_size 64
  .amdhsa_user_sgpr_count 2
  .amdhsa_user_sgpr_kernarg_segment_ptr 1
  .amdhsa_system_sgpr_workgroup_id_x 1
.end_amdhsa_kernel
"""

SX, SK, SV, SWQ, SWO, SOUT, SWS, SDBG = 32, 36, 40, 44, 48, 52, 56, 60
SIZES = {SX: 1 << 20, SK: 8 << 20, SV: 8 << 20, SWQ: 4 << 20, SWO: 4 << 20, SOUT: 1 << 20, SWS: 256 << 20, SDBG: 256}
PTR = {SX: 16, SK: 18, SV: 20, SWQ: 22, SWO: 24, SOUT: 26, SDBG: 28, SWS: 30}

def srd_consts(A, which):
    for r in which:
        A(f"s_mov_b32 s{r+2}, {hex(SIZES[r])}")
        A(f"s_mov_b32 s{r+3}, 0x20000")
def srd_ptrs(A, which):
    for r in which:
        A(f"s_mov_b64 s[{r}:{r+1}], s[{PTR[r]}:{PTR[r]+1}]")
```

```python
import sys
from common import *
NT_KV = "nt" if "nokvnt" not in sys.argv else ""
A = Asm()
MF = "v_mfma_f32_32x32x16_bf16"

def dma(voff, srd, soff, m0val, flags=""):
    A(f"s_mov_b32 m0, {m0val}")
    A(f"s_nop 0")
    A(f"buffer_load_dwordx4 v{voff}, s[{srd}:{srd+3}], {soff} offen lds {flags}")

def prologue(nwg, srds):
    A(f"s_cmp_ge_u32 s2, {nwg}")
    A(f"s_cbranch_scc1 L_end_{kname}")
    A("s_load_dwordx16 s[16:31], s[0:1], 0")
    A("v_lshrrev_b32 v1, 6, v0")
    A("v_and_b32 v0, 63, v0")
    A("v_readfirstlane_b32 s3, v1")
    srd_consts(A, srds)

kname = "k1_kernel"
A(".p2align 8"); A(f"{kname}:")
prologue(256, [SX, SK, SV, SWQ, SWS])
A("""s_and_b32 s4, s2, 7
s_lshr_b32 s5, s2, 3
s_and_b32 s6, s4, 3
s_lshr_b32 s7, s4, 2
s_and_b32 s8, s5, 7
s_lshr_b32 s9, s5, 3
s_lshl_b32 s10, s6, 3
s_add_u32 s10, s10, s8
s_lshl_b32 s11, s7, 2
s_add_u32 s11, s11, s9
s_lshl_b32 s12, s9, 1
s_add_u32 s12, s12, s8""")
XR, WR, KR, VR = 0, 49152, 98304, 131072
A("s_cmp_ge_u32 s3, 4")
A("s_cbranch_scc1 L_k1_loader")
A("""v_and_b32 v1, 31, v0
v_lshrrev_b32 v2, 5, v0
s_lshl_b32 s13, s3, 5
v_add_u32 v3, s13, v1
v_lshrrev_b32 v4, 1, v3
v_and_b32 v4, 7, v4
v_xor_b32 v4, v4, v2
v_lshlrev_b32 v4, 4, v4
v_lshl_add_u32 v8, v3, 7, v4
v_xor_b32 v9, 32, v8
v_xor_b32 v10, 64, v8
v_xor_b32 v11, 0x60, v8""")
VXA = 8
A("""v_bfe_u32 v3, v0, 2, 2
v_and_b32 v4, 3, v0
v_bfe_u32 v5, v0, 4, 1
v_lshlrev_b32 v5, 5, v5
v_lshl_add_u32 v6, v4, 3, v5
v_and_b32 v7, 1, v4
v_lshlrev_b32 v7, 1, v7
v_lshrrev_b32 v4, 1, v4
v_or_b32 v4, v4, v7
v_lshl_add_u32 v7, v4, 3, v5""")
VWA, VVA, VKA = 12, 16, 20
A(f"""v_lshl_add_u32 v4, v2, 3, v3
v_lshlrev_b32 v4, 8, v4
v_lshl_add_u32 v4, v3, 6, v4
v_add_u32 v4, v4, v7
v_add_u32 v{VWA}, {WR}, v4
v_xor_b32 v{VWA+1}, 64, v{VWA}
v_xor_b32 v{VWA+2}, 0x80, v{VWA}
v_xor_b32 v{VWA+3}, 0xc0, v{VWA}
s_lshr_b32 s13, s3, 1
s_lshl_b32 s13, s13, 14
s_add_u32 s14, s13, {VR}
v_lshl_add_u32 v4, v2, 2, v3
v_lshlrev_b32 v4, 8, v4
v_lshl_add_u32 v4, v3, 6, v4
v_add_u32 v4, v4, v6
v_add_u32 v{VVA}, s14, v4
v_xor_b32 v{VVA+1}, 64, v{VVA}
v_xor_b32 v{VVA+2}, 0x80, v{VVA}
v_xor_b32 v{VVA+3}, 0xc0, v{VVA}
s_add_u32 s14, s13, {KR}
v_and_b32 v4, 15, v1
v_xor_b32 v4, v4, v2
v_lshlrev_b32 v4, 4, v4
v_lshl_add_u32 v4, v1, 8, v4
v_add_u32 v{VKA}, s14, v4""")
for i in range(1, 8): A(f"v_xor_b32 v{VKA+i}, {hex(i*32)}, v{VKA}")
A("""s_lshl_b32 s13, s11, 5
s_add_u32 s13, s13, s10
s_lshl_b32 s13, s13, 2
s_add_u32 s13, s13, s3
s_lshl_b32 s13, s13, 13
v_lshlrev_b32 v28, 4, v0
v_add_u32 v28, s13, v28""")
VOST = 28
ACC = 32
FR = [96, 116]
for i in range(64): A(f"v_mov_b32 v{ACC+i}, 0")
A("s_waitcnt lgkmcnt(0)")
srd_ptrs(A, [SWS])
def rdX(n):
    st, kk = divmod(n, 4); b = FR[n & 1]
    A(f"ds_read_b128 {v(b,4)}, v{VXA+kk} offset:{(st%3)*16384}")
def rdW(n, t):
    st, kk = divmod(n, 4); b = FR[n & 1] + 4 + 4*t
    for e in range(2):
        A(f"ds_read_b64_tr_b16 {v(b+2*e,2)}, v{VWA+t} offset:{(st%3)*16384 + kk*4096 + e*1024}")
def mf(n, t):
    b = FR[n & 1]
    A(f"{MF} {v(ACC+16*t,16)}, {v(b+4+4*t,4)}, {v(b,4)}, {v(ACC+16*t,16)}")
A("s_barrier")
rdX(0)
for t in range(4): rdW(0, t)
for n in range(32):
    last = (n % 4 == 3)
    if not last:
        A("s_waitcnt lgkmcnt(6)"); mf(n, 0); rdX(n+1); rdW(n+1, 0)
        for t in range(1, 4):
            A("s_waitcnt lgkmcnt(7)"); mf(n, t); rdW(n+1, t)
    else:
        A("s_waitcnt lgkmcnt(6)"); mf(n, 0)
        A("s_waitcnt lgkmcnt(4)"); mf(n, 1)
        A("s_waitcnt lgkmcnt(0)")
        A("s_barrier")
        if n < 31:
            rdX(n+1); rdW(n+1, 0); rdW(n+1, 1)
            mf(n, 2); rdW(n+1, 2); mf(n, 3); rdW(n+1, 3)
        else:
            mf(n, 2); mf(n, 3)
QB = 136
KF = 96
SC = 168
for i in range(32): A(f"v_mov_b32 v{SC+i}, 0")
for s_ in range(8): A(f"ds_read_b128 {v(KF+4*s_,4)}, v{VKA+s_}")
for i in range(32): A(f"v_cvt_pk_bf16_f32 v{QB+i}, v{ACC+2*i}, v{ACC+2*i+1}")
A("s_nop 1")
for s_ in range(8):
    A(f"s_waitcnt lgkmcnt(7)")
    A(f"{MF} {v(SC,16)}, {v(KF+4*s_,4)}, {v(QB+4*s_,4)}, {v(SC,16)}")
    A(f"ds_read_b128 {v(KF+4*s_,4)}, v{VKA+s_} offset:8192")
for s_ in range(8):
    A(f"s_waitcnt lgkmcnt({7-s_})")
    A(f"{MF} {v(SC+16,16)}, {v(KF+4*s_,4)}, {v(QB+4*s_,4)}, {v(SC+16,16)}")
for i in range(64): A(f"v_mov_b32 v{ACC+i}, 0")
A(f"v_max3_f32 v1, v{SC}, v{SC+1}, v{SC+2}")
for i in range(3, 31, 2): A(f"v_max3_f32 v1, v1, v{SC+i}, v{SC+i+1}")
A(f"v_max_f32 v1, v1, v{SC+31}")
A("v_mov_b32 v2, v1\ns_nop 1\nv_permlane32_swap_b32 v1, v2\ns_nop 1\nv_max_f32 v1, v1, v2")
import math, struct
cs = struct.unpack("<I", struct.pack("<f", math.log2(math.e) / math.sqrt(128)))[0]
A(f"s_mov_b32 s14, {hex(cs)}")
A("v_mul_f32 v1, s14, v1")
for i in range(32): A(f"v_fma_f32 v{SC+i}, v{SC+i}, s14, -v1")
for i in range(32): A(f"v_exp_f32 v{SC+i}, v{SC+i}")
A("s_nop 0")
A(f"v_add_f32 v2, v{SC}, v{SC+1}")
for i in range(2, 32): A(f"v_add_f32 v2, v2, v{SC+i}")
A("v_mov_b32 v3, v2\ns_nop 1\nv_permlane32_swap_b32 v2, v3\ns_nop 1\nv_add_f32 v2, v2, v3\nv_rcp_f32 v2, v2\ns_nop 0")
for i in range(32): A(f"v_mul_f32 v{SC+i}, v{SC+i}, v2")
PB = 200
for i in range(16): A(f"v_cvt_pk_bf16_f32 v{PB+i}, v{SC+2*i}, v{SC+2*i+1}")
VF = [96, 112]
def rdV(u, t):
    b = VF[u & 1] + 4*t
    for e in range(2): A(f"ds_read_b64_tr_b16 {v(b+2*e,2)}, v{VVA+t} offset:{u*4096 + e*2048}")
for t in range(4): rdV(0, t)
for u in range(4):
    for t in range(4):
        A(f"s_waitcnt lgkmcnt({6 if u < 3 else 6-2*t})")
        A(f"{MF} {v(ACC+16*t,16)}, {v(VF[u&1]+4*t,4)}, {v(PB+4*u,4)}, {v(ACC+16*t,16)}")
        if u < 3: rdV(u+1, t)
A("s_nop 15")
for i in range(32): A(f"v_cvt_pk_bf16_f32 v{QB+i}, v{ACC+2*i}, v{ACC+2*i+1}")
A("s_mov_b32 s14, 4096")
for f in range(8):
    A(f"buffer_store_dwordx4 {v(QB+4*f,4)}, v{VOST}, s[{SWS}:{SWS+3}], {'0' if f < 4 else 's14'} offen offset:{(f&3)*1024}")
A("s_endpgm")
A("L_k1_loader:")
A("""s_sub_u32 s3, s3, 4
v_lshrrev_b32 v1, 3, v0
v_lshrrev_b32 v2, 4, v0
v_and_b32 v3, 7, v0
v_and_b32 v4, 15, v0
s_and_b32 s13, s3, 1
s_lshl_b32 s13, s13, 2
v_add_u32 v5, s13, v2
v_xor_b32 v5, v5, v3
v_lshlrev_b32 v5, 4, v5
s_lshl_b32 s13, s3, 3
v_add_u32 v6, s13, v1
v_lshl_add_u32 v8, v6, 10, v5
s_lshl_b32 s13, s3, 2
v_add_u32 v6, s13, v2
v_lshlrev_b32 v5, 2, v2
v_xor_b32 v5, v5, v4
v_lshlrev_b32 v5, 4, v5
v_lshl_add_u32 v9, v6, 13, v5
v_lshl_add_u32 v11, v6, 8, v5
v_xor_b32 v5, v6, v4
v_lshlrev_b32 v5, 4, v5
v_lshl_add_u32 v10, v6, 8, v5""")
A("""s_lshl_b32 s64, s11, 17
s_lshl_b32 s65, s10, 8
s_lshl_b32 s66, s11, 20
s_lshl_b32 s13, s10, 14
s_add_u32 s66, s66, s13
s_lshl_b32 s67, s3, 10
s_waitcnt lgkmcnt(0)""")
srd_ptrs(A, [SX, SK, SV, SWQ])
def ld_stage(i):
    A(f"s_add_u32 s13, s12, {i}\ns_and_b32 s13, s13, 7")
    A(f"s_lshl_b32 s14, s13, 7\ns_add_u32 s14, s14, s64")
    A(f"s_lshl_b32 s15, s13, 19\ns_add_u32 s15, s15, s65")
    for q in range(4):
        A(f"s_add_u32 m0, s67, {XR + (i%3)*16384 + q*4096}")
        A(f"s_add_u32 s68, s14, {q*32768}")
        A(f"buffer_load_dwordx4 v8, s[{SX}:{SX+3}], s68 offen lds")
        A(f"s_add_u32 m0, s67, {WR + (i%3)*16384 + q*4096}")
        A(f"s_add_u32 s68, s15, {q*16*8192}")
        A(f"buffer_load_dwordx4 v9, s[{SWQ}:{SWQ+3}], s68 offen lds")
def ld_kv(isv):
    for q in range(8):
        A(f"s_add_u32 m0, s67, {(VR if isv else KR) + q*4096}")
        A(f"s_add_u32 s68, s66, {(q&3)*4096 + (q>>2)*524288}")
        srd = SV if isv else SK
        A(f"buffer_load_dwordx4 v{11 if isv else 10}, s[{srd}:{srd+3}], s68 offen {NT_KV} lds")
order = ["S0", "S1", "B0", "S2", "K", "B1", "S3", "B2", "S4", "V", "B3", "S5", "B4", "S6", "B5", "S7", "B6", "B7", "BF"]
issued = []
for it in order:
    if it[0] == "S": ld_stage(int(it[1])); issued.append(it)
    elif it == "K": ld_kv(0); issued.append(it)
    elif it == "V": ld_kv(1); issued.append(it)
    elif it == "BF": A("s_waitcnt vmcnt(0)\ns_barrier")
    else:
        n_after = len(issued) - 1 - issued.index("S" + it[1])
        A(f"s_waitcnt vmcnt({8*n_after})\ns_barrier")
A(f"L_end_{kname}:")
A("s_endpgm")

kname = "k2_kernel"
A(".p2align 8"); A(f"{kname}:")
prologue(64, [SWO, SWS, SOUT])
A("s_and_b32 s8, s2, 7\ns_lshr_b32 s11, s2, 3")
A("s_cmp_ge_u32 s3, 4")
A("s_cbranch_scc1 L_k2_loader")
A("""v_and_b32 v1, 31, v0
v_lshrrev_b32 v2, 5, v0
v_bfe_u32 v3, v0, 2, 2
v_and_b32 v4, 3, v0
v_bfe_u32 v5, v0, 4, 1
v_lshlrev_b32 v5, 5, v5
v_lshl_add_u32 v6, v4, 3, v5
v_lshl_add_u32 v4, v2, 2, v3
v_lshlrev_b32 v4, 7, v4
v_lshrrev_b32 v7, 1, v3
v_lshl_add_u32 v4, v7, 6, v4
v_add_u32 v8, v4, v6
v_xor_b32 v9, 64, v8
s_lshl_b32 s13, s11, 7
s_add_u32 s13, s13, s3
s_lshl_b32 s13, s13, 13
v_lshlrev_b32 v10, 4, v0
v_add_u32 v10, s13, v10
s_lshl_b32 s13, s11, 7
s_lshl_b32 s14, s3, 5
s_add_u32 s13, s13, s14
v_add_u32 v11, s13, v1
v_lshlrev_b32 v11, 10, v11
v_lshl_add_u32 v11, v2, 4, v11
s_lshl_b32 s13, s8, 7
v_add_u32 v11, s13, v11""")
ACC = 32; OF = [64, 96]; WF = [128, 136]
for i in range(32): A(f"v_mov_b32 v{ACC+i}, 0")
A("s_waitcnt lgkmcnt(0)")
srd_ptrs(A, [SWS, SOUT])
def ldO(buf, sreg):
    A(f"s_add_u32 s15, {sreg}, 4096")
    for f in range(8):
        A(f"buffer_load_dwordx4 {v(OF[buf]+4*f,4)}, v10, s[{SWS}:{SWS+3}], {sreg if f < 4 else 's15'} offen offset:{(f&3)*1024}")
A("s_mov_b32 s14, 0")
ldO(0, "s14")
A("s_mov_b32 s69, 0")
A("L_k2_loop:")
for hh in range(4):
    A("s_add_u32 s14, s14, 0x8000")
    ldO((hh+1) & 1, "s14")
    A("s_barrier")
    def rdWo(f):
        for nt in range(2):
            for e in range(2):
                A(f"ds_read_b64_tr_b16 {v(WF[f&1]+4*nt+2*e,2)}, v{8+nt} offset:{hh*16384 + (16*f+8*e)*128}")
    rdWo(0)
    A("s_waitcnt vmcnt(8)")
    for f in range(8):
        if f < 7: rdWo(f+1)
        A(f"s_waitcnt lgkmcnt({4 if f < 7 else 0})")
        for nt in range(2):
            A(f"{MF} {v(ACC+16*nt,16)}, {v(WF[f&1]+4*nt,4)}, {v(OF[hh&1]+4*f,4)}, {v(ACC+16*nt,16)}")
A("s_add_u32 s69, s69, 1\ns_cmp_lt_u32 s69, 8\ns_cbranch_scc1 L_k2_loop")
A("s_nop 15")
A("s_waitcnt vmcnt(0)")
for nt in range(2):
    for pr in range(2):
        b = ACC + 16*nt + 8*pr; d = 64 + 8*nt + 4*pr
        A(f"v_cvt_pk_bf16_f32 v{d}, v{b}, v{b+1}\nv_cvt_pk_bf16_f32 v{d+1}, v{b+2}, v{b+3}")
        A(f"v_cvt_pk_bf16_f32 v{d+2}, v{b+4}, v{b+5}\nv_cvt_pk_bf16_f32 v{d+3}, v{b+6}, v{b+7}")
        A(f"s_nop 1\nv_permlane32_swap_b32 v{d}, v{d+2}\nv_permlane32_swap_b32 v{d+1}, v{d+3}")
        A(f"buffer_store_dwordx4 {v(d,4)}, v11, s[{SOUT}:{SOUT+3}], 0 offen offset:{nt*64 + pr*32}")
A("s_endpgm")
A("L_k2_loader:")
A("""s_sub_u32 s3, s3, 4
v_lshrrev_b32 v1, 3, v0
v_and_b32 v3, 7, v0
v_bfe_u32 v2, v0, 4, 1
v_lshlrev_b32 v2, 2, v2
v_xor_b32 v3, v3, v2
v_lshlrev_b32 v3, 4, v3
s_lshl_b32 s13, s3, 3
v_add_u32 v1, s13, v1
v_lshl_add_u32 v8, v1, 10, v3
s_lshl_b32 s64, s8, 7
s_lshl_b32 s67, s3, 10
s_waitcnt lgkmcnt(0)""")
srd_ptrs(A, [SWO])
def ldWo(slot):
    for q in range(4):
        A(f"s_add_u32 m0, s67, {slot*16384 + q*4096}")
        A(f"s_add_u32 s68, s64, {q*32768}")
        A(f"buffer_load_dwordx4 v8, s[{SWO}:{SWO+3}], s68 offen lds")
    A("s_add_u32 s64, s64, 0x20000")
ldWo(0); ldWo(1); ldWo(2)
A("s_mov_b32 s69, 0")
A("L_k2_lloop:")
for hh in range(4):
    A("s_waitcnt vmcnt(8)\ns_barrier")
    ldWo((hh+3) & 3)
A("s_add_u32 s69, s69, 1\ns_cmp_lt_u32 s69, 8\ns_cbranch_scc1 L_k2_lloop")
A("s_waitcnt vmcnt(0)")
A(f"L_end_{kname}:")
A("s_endpgm")

out = HEADER
out += "; @launch kernel=k1_kernel grid=(256,1,1) block=(512,1,1) lds=163840\n"
out += "; @launch kernel=k2_kernel grid=(64,1,1) block=(512,1,1) lds=65536\n"
out += '.amdgcn_target "amdgcn-amd-amdhsa--gfx950"\n.text\n' + A.text()
out += '.section .rodata,"a"\n' + kd("k1_kernel", 216) + kd("k2_kernel", 144)
open(sys.argv[1], "w").write(out)
```

```python
import sys
from common import *
base = open("v1.s").read()
def variant(fn, launch_front, launch_back, code, kds):
    t = base
    l1 = "; @launch kernel=k1_kernel"
    t = t.replace(l1, launch_front + l1)
    t = t.replace(".amdgcn_target", launch_back + ".amdgcn_target")
    t = t.replace('.section .rodata,"a"', code + '.section .rodata,"a"')
    t += kds
    open(fn, "w").write(t)
empty = ".p2align 8\nempty_kernel:\n    s_endpgm\n"
variant("p_empty.s", "", "; @launch kernel=empty_kernel grid=(256,1,1) block=(64,1,1) lds=0\n", empty, kd("empty_kernel", 8, 16))
variant("p_empty4.s", "", "; @launch kernel=empty_kernel grid=(256,1,1) block=(64,1,1) lds=0\n"*4, empty, kd("empty_kernel", 8, 16))
def lat(ptr_off, size, stride, n):
    return f""".p2align 8
probe_kernel:
    s_cmp_ge_u32 s2, 1
    s_cbranch_scc1 L_pe
    s_load_dwordx2 s[4:5], s[0:1], {ptr_off}
    s_mov_b32 s6, {size}
    s_mov_b32 s7, 0x20000
    v_mov_b32 v1, 0
    s_mov_b32 s8, 0
    s_mov_b32 s9, 0
    s_waitcnt lgkmcnt(0)
L_pl:
    buffer_load_dword v2, v1, s[4:7], s8 offen nt
    s_add_u32 s8, s8, {stride}
    s_add_u32 s9, s9, 1
    s_waitcnt vmcnt(0)
    s_cmp_lt_u32 s9, {n}
    s_cbranch_scc1 L_pl
L_pe:
    s_endpgm
"""
pl = "; @launch kernel=probe_kernel grid=(1,1,1) block=(64,1,1) lds=0\n"
variant("p_latv.s", pl, "", lat(16, 8<<20, 32768+128, 250), kd("probe_kernel", 8, 16))
variant("p_latws.s", pl, "", lat(56, 256<<20, 32768+128, 250), kd("probe_kernel", 8, 16))
spin = """.p2align 8
probe_kernel:
    s_cmp_ge_u32 s2, 256
    s_cbranch_scc1 L_pe
    s_mov_b32 s9, 0
L_pl:
""" + "    v_mfma_f32_32x32x16_bf16 v[0:15], v[16:19], v[20:23], v[0:15]\n"*15 + """
    s_add_u32 s9, s9, 1
    s_cmp_lt_u32 s9, 100
    s_cbranch_scc1 L_pl
L_pe:
    s_endpgm
"""
variant("p_spin.s", "; @launch kernel=probe_kernel grid=(256,1,1) block=(64,1,1) lds=0\n", "", spin, kd("probe_kernel", 24, 16))
variant("p_latv_s256.s", pl, "", lat(16, 8<<20, 256, 250), kd("probe_kernel", 8, 16))
variant("p_lat_l2.s", pl, "", lat(16, 8<<20, 0, 500), kd("probe_kernel", 8, 16))
variant("p_latws_end.s", "", pl, lat(56, 256<<20, 32768+128, 250).replace("s_mov_b32 s8, 0", "s_mov_b32 s8, 0x4000000"), kd("probe_kernel", 8, 16))
variant("p_latws_top.s", pl, "", lat(56, 256<<20, 32768+128, 250).replace("s_mov_b32 s8, 0", "s_mov_b32 s8, 0xf000000"), kd("probe_kernel", 8, 16))
spin2 = """.p2align 8
probe_kernel:
    s_cmp_ge_u32 s2, 1
    s_cbranch_scc1 L_pe
    s_memtime s[4:5]
    s_waitcnt lgkmcnt(0)
    s_add_u32 s6, s4, 48000
L_pl:
    s_memtime s[4:5]
    s_waitcnt lgkmcnt(0)
    s_sub_u32 s7, s4, s6
    s_cmp_lt_i32 s7, 0
    s_cbranch_scc1 L_pl
L_pe:
    s_endpgm
"""
variant("p_spin2.s", pl, "", spin2, kd("probe_kernel", 8, 16))
variant("p_spin3.s", pl, "", spin2.replace("s_memtime", "s_memrealtime").replace("48000", "2000"), kd("probe_kernel", 8, 16))
```

```python
import sys
from common import *
base = open("v1.s").read()
def variant(fn, launch_front, launch_back, code, kds):
    t = base
    l1 = "; @launch kernel=k1_kernel"
    t = t.replace(l1, launch_front + l1)
    t = t.replace(".amdgcn_target", launch_back + ".amdgcn_target")
    t = t.replace('.section .rodata,"a"', code + '.section .rodata,"a"')
    t += kds
    open(fn, "w").write(t)
empty = ".p2align 8\nempty_kernel:\n    s_endpgm\n"
variant("p_empty.s", "", "; @launch kernel=empty_kernel grid=(256,1,1) block=(64,1,1) lds=0\n", empty, kd("empty_kernel", 8, 16))
variant("p_empty4.s", "", "; @launch kernel=empty_kernel grid=(256,1,1) block=(64,1,1) lds=0\n"*4, empty, kd("empty_kernel", 8, 16))
def lat(ptr_off, size, stride, n):
    return f""".p2align 8
probe_kernel:
    s_cmp_ge_u32 s2, 1
    s_cbranch_scc1 L_pe
    s_load_dwordx2 s[4:5], s[0:1], {ptr_off}
    s_mov_b32 s6, {size}
    s_mov_b32 s7, 0x20000
    v_mov_b32 v1, 0
    s_mov_b32 s8, 0
    s_mov_b32 s9, 0
    s_waitcnt lgkmcnt(0)
L_pl:
    buffer_load_dword v2, v1, s[4:7], s8 offen nt
    s_add_u32 s8, s8, {stride}
    s_add_u32 s9, s9, 1
    s_waitcnt vmcnt(0)
    s_cmp_lt_u32 s9, {n}
    s_cbranch_scc1 L_pl
L_pe:
    s_endpgm
"""
pl = "; @launch kernel=probe_kernel grid=(1,1,1) block=(64,1,1) lds=0\n"
variant("p_latv.s", pl, "", lat(16, 8<<20, 32768+128, 250), kd("probe_kernel", 8, 16))
variant("p_latws.s", pl, "", lat(56, 256<<20, 32768+128, 250), kd("probe_kernel", 8, 16))
spin = """.p2align 8
probe_kernel:
    s_cmp_ge_u32 s2, 256
    s_cbranch_scc1 L_pe
    s_mov_b32 s9, 0
L_pl:
""" + "    v_mfma_f32_32x32x16_bf16 v[0:15], v[16:19], v[20:23], v[0:15]\n"*15 + """
    s_add_u32 s9, s9, 1
    s_cmp_lt_u32 s9, 100
    s_cbranch_scc1 L_pl
L_pe:
    s_endpgm
"""
variant("p_spin.s", "; @launch kernel=probe_kernel grid=(256,1,1) block=(64,1,1) lds=0\n", "", spin, kd("probe_kernel", 24, 16))
variant("p_latv_s256.s", pl, "", lat(16, 8<<20, 256, 250), kd("probe_kernel", 8, 16))
variant("p_lat_l2.s", pl, "", lat(16, 8<<20, 0, 500), kd("probe_kernel", 8, 16))
variant("p_latws_end.s", "", pl, lat(56, 256<<20, 32768+128, 250).replace("s_mov_b32 s8, 0", "s_mov_b32 s8, 0x4000000"), kd("probe_kernel", 8, 16))
variant("p_latws_top.s", pl, "", lat(56, 256<<20, 32768+128, 250).replace("s_mov_b32 s8, 0", "s_mov_b32 s8, 0xf000000"), kd("probe_kernel", 8, 16))
spin2 = """.p2align 8
probe_kernel:
    s_cmp_ge_u32 s2, 1
    s_cbranch_scc1 L_pe
    s_memtime s[4:5]
    s_waitcnt lgkmcnt(0)
    s_add_u32 s6, s4, 48000
L_pl:
    s_memtime s[4:5]
    s_waitcnt lgkmcnt(0)
    s_sub_u32 s7, s4, s6
    s_cmp_lt_i32 s7, 0
    s_cbranch_scc1 L_pl
L_pe:
    s_endpgm
"""
variant("p_spin2.s", pl, "", spin2, kd("probe_kernel", 8, 16))
variant("p_spin3.s", pl, "", spin2.replace("s_memtime", "s_memrealtime").replace("48000", "2000"), kd("probe_kernel", 8, 16))
def straight(n, ins):
    return ".p2align 8\nprobe_kernel:\n" + f"    .rept {n}\n    {ins}\n    .endr\n    s_endpgm\n"
pl256 = "; @launch kernel=probe_kernel grid=(256,1,1) block=(64,1,1) lds=0\n"
pl256x8 = "; @launch kernel=probe_kernel grid=(256,1,1) block=(512,1,1) lds=0\n"
variant("p_code4k.s", pl256, "", straight(512, "v_add3_u32 v1, v1, v1, v1"), kd("probe_kernel", 8, 16))
variant("p_code16k.s", pl256, "", straight(2048, "v_add3_u32 v1, v1, v1, v1"), kd("probe_kernel", 8, 16))
variant("p_code32k.s", pl256, "", straight(4096, "v_add3_u32 v1, v1, v1, v1"), kd("probe_kernel", 8, 16))
variant("p_code16k_twice.s", pl256*2, "", straight(2048, "v_add3_u32 v1, v1, v1, v1"), kd("probe_kernel", 8, 16))
variant("p_twice.s", "; @launch kernel=k1_kernel grid=(256,1,1) block=(512,1,1) lds=163840\n", "", "", "")
```

```python
import sys
from common import *
base = open("v1.s").read()
def variant(fn, launch_front, launch_back, code, kds):
    t = base
    l1 = "; @launch kernel=k1_kernel"
    t = t.replace(l1, launch_front + l1)
    t = t.replace(".amdgcn_target", launch_back + ".amdgcn_target")
    t = t.replace('.section .rodata,"a"', code + '.section .rodata,"a"')
    t += kds
    open(fn, "w").write(t)
empty = ".p2align 8\nempty_kernel:\n    s_endpgm\n"
variant("p_empty.s", "", "; @launch kernel=empty_kernel grid=(256,1,1) block=(64,1,1) lds=0\n", empty, kd("empty_kernel", 8, 16))
variant("p_empty4.s", "", "; @launch kernel=empty_kernel grid=(256,1,1) block=(64,1,1) lds=0\n"*4, empty, kd("empty_kernel", 8, 16))
def lat(ptr_off, size, stride, n):
    return f""".p2align 8
probe_kernel:
    s_cmp_ge_u32 s2, 1
    s_cbranch_scc1 L_pe
    s_load_dwordx2 s[4:5], s[0:1], {ptr_off}
    s_mov_b32 s6, {size}
    s_mov_b32 s7, 0x20000
    v_mov_b32 v1, 0
    s_mov_b32 s8, 0
    s_mov_b32 s9, 0
    s_waitcnt lgkmcnt(0)
L_pl:
    buffer_load_dword v2, v1, s[4:7], s8 offen nt
    s_add_u32 s8, s8, {stride}
    s_add_u32 s9, s9, 1
    s_waitcnt vmcnt(0)
    s_cmp_lt_u32 s9, {n}
    s_cbranch_scc1 L_pl
L_pe:
    s_endpgm
"""
pl = "; @launch kernel=probe_kernel grid=(1,1,1) block=(64,1,1) lds=0\n"
variant("p_latv.s", pl, "", lat(16, 8<<20, 32768+128, 250), kd("probe_kernel", 8, 16))
variant("p_latws.s", pl, "", lat(56, 256<<20, 32768+128, 250), kd("probe_kernel", 8, 16))
spin = """.p2align 8
probe_kernel:
    s_cmp_ge_u32 s2, 256
    s_cbranch_scc1 L_pe
    s_mov_b32 s9, 0
L_pl:
""" + "    v_mfma_f32_32x32x16_bf16 v[0:15], v[16:19], v[20:23], v[0:15]\n"*15 + """
    s_add_u32 s9, s9, 1
    s_cmp_lt_u32 s9, 100
    s_cbranch_scc1 L_pl
L_pe:
    s_endpgm
"""
variant("p_spin.s", "; @launch kernel=probe_kernel grid=(256,1,1) block=(64,1,1) lds=0\n", "", spin, kd("probe_kernel", 24, 16))
variant("p_latv_s256.s", pl, "", lat(16, 8<<20, 256, 250), kd("probe_kernel", 8, 16))
variant("p_lat_l2.s", pl, "", lat(16, 8<<20, 0, 500), kd("probe_kernel", 8, 16))
variant("p_latws_end.s", "", pl, lat(56, 256<<20, 32768+128, 250).replace("s_mov_b32 s8, 0", "s_mov_b32 s8, 0x4000000"), kd("probe_kernel", 8, 16))
variant("p_latws_top.s", pl, "", lat(56, 256<<20, 32768+128, 250).replace("s_mov_b32 s8, 0", "s_mov_b32 s8, 0xf000000"), kd("probe_kernel", 8, 16))
spin2 = """.p2align 8
probe_kernel:
    s_cmp_ge_u32 s2, 1
    s_cbranch_scc1 L_pe
    s_memtime s[4:5]
    s_waitcnt lgkmcnt(0)
    s_add_u32 s6, s4, 48000
L_pl:
    s_memtime s[4:5]
    s_waitcnt lgkmcnt(0)
    s_sub_u32 s7, s4, s6
    s_cmp_lt_i32 s7, 0
    s_cbranch_scc1 L_pl
L_pe:
    s_endpgm
"""
variant("p_spin2.s", pl, "", spin2, kd("probe_kernel", 8, 16))
variant("p_spin3.s", pl, "", spin2.replace("s_memtime", "s_memrealtime").replace("48000", "2000"), kd("probe_kernel", 8, 16))
def straight(n, ins):
    return ".p2align 8\nprobe_kernel:\n" + f"    .rept {n}\n    {ins}\n    .endr\n    s_endpgm\n"
pl256 = "; @launch kernel=probe_kernel grid=(256,1,1) block=(64,1,1) lds=0\n"
pl256x8 = "; @launch kernel=probe_kernel grid=(256,1,1) block=(512,1,1) lds=0\n"
variant("p_code4k.s", pl256, "", straight(512, "v_add3_u32 v1, v1, v1, v1"), kd("probe_kernel", 8, 16))
variant("p_code16k.s", pl256, "", straight(2048, "v_add3_u32 v1, v1, v1, v1"), kd("probe_kernel", 8, 16))
variant("p_code32k.s", pl256, "", straight(4096, "v_add3_u32 v1, v1, v1, v1"), kd("probe_kernel", 8, 16))
variant("p_code16k_twice.s", pl256*2, "", straight(2048, "v_add3_u32 v1, v1, v1, v1"), kd("probe_kernel", 8, 16))
variant("p_twice.s", "; @launch kernel=k1_kernel grid=(256,1,1) block=(512,1,1) lds=163840\n", "", "", "")
def stampk(name, off):
    return f""".p2align 8
{name}:
    s_memrealtime s[8:9]
    s_load_dwordx2 s[4:5], s[0:1], 56
    s_getreg_b32 s3, hwreg(HW_REG_XCC_ID)
    s_and_b32 s3, s3, 7
    s_lshl_b32 s3, s3, 2
    s_add_u32 s3, s3, {off}
    s_waitcnt lgkmcnt(0)
    v_mov_b32 v1, s3
    v_mov_b32 v2, s8
    global_store_dword v1, v2, s[4:5]
    s_endpgm
"""
def fin(expr):
    return f""".p2align 8
fin_kernel:
    s_memrealtime s[12:13]
    s_load_dwordx2 s[4:5], s[0:1], 56
    s_getreg_b32 s3, hwreg(HW_REG_XCC_ID)
    s_and_b32 s3, s3, 7
    s_lshl_b32 s3, s3, 2
    s_add_u32 s3, s3, 0x8000000
    s_waitcnt lgkmcnt(0)
    v_mov_b32 v1, s3
    global_load_dword v2, v1, s[4:5]
    global_load_dword v3, v1, s[4:5] offset:256
    s_waitcnt vmcnt(0)
    v_readfirstlane_b32 s10, v2
    v_readfirstlane_b32 s11, v3
    s_nop 3
    {expr}
    s_min_u32 s7, s7, 20000
    s_add_u32 s6, s10, 10000
    s_add_u32 s6, s6, s7
    s_mov_b32 s14, 0
L_fl:
    s_memrealtime s[8:9]
    s_waitcnt lgkmcnt(0)
    s_add_u32 s14, s14, 1
    s_cmp_gt_u32 s14, 20000
    s_cbranch_scc1 L_fe
    s_sub_u32 s7, s8, s6
    s_cmp_lt_i32 s7, 0
    s_cbranch_scc1 L_fl
L_fe:
    s_endpgm
"""
def meas(fn, expr, src="v1.s"):
    t = open(src).read()
    la = "; @launch kernel=sa_kernel grid=(8,1,1) block=(64,1,1) lds=0\n"
    lb = "; @launch kernel=sb_kernel grid=(8,1,1) block=(64,1,1) lds=0\n"
    lf = "; @launch kernel=fin_kernel grid=(8,1,1) block=(64,1,1) lds=0\n"
    t = t.replace("; @launch kernel=k1_kernel", la + "; @launch kernel=k1_kernel")
    t = t.replace("; @launch kernel=k2_kernel", lb + "; @launch kernel=k2_kernel")
    t = t.replace(".amdgcn_target", lf + ".amdgcn_target")
    t = t.replace('.section .rodata,"a"', stampk("sa_kernel", 0x8000000) + stampk("sb_kernel", 0x8000100) + fin(expr) + '.section .rodata,"a"')
    t += kd("sa_kernel", 8, 16) + kd("sb_kernel", 8, 16) + kd("fin_kernel", 8, 16)
    open(fn, "w").write(t)
meas("m_0.s", "s_mov_b32 s7, 0")
meas("m_k1.s", "s_sub_u32 s7, s11, s10")
meas("m_k2.s", "s_sub_u32 s7, s12, s11")
meas("m_k1_nont.s", "s_sub_u32 s7, s11, s10", "v1_nont.s")
```

```python
import sys, math, struct
from common import *
opts = dict(a.split("=") if "=" in a else (a, "1") for a in sys.argv[2:])
STAMP = "stamp" in opts
NTK = "" if "nont" in opts else "nt"
A = Asm()
MF = "v_mfma_f32_32x32x16_bf16"
KN = NAME + "_kernel"
XR, WR, KR = 0, 65536, 131072
WS_P, WS_PART, WS_FLAG, WS_STAMP = 0, 0x400000, 0xC00000, 0x9000000
SPIN = 1 << 18

def stamp(i):
    if STAMP:
        A(f"s_memtime s[98:99]\ns_waitcnt lgkmcnt(0)\nv_writelane_b32 v255, s98, {i}")
def stamp_flush(lo, hi):
    if not STAMP: return
    A(f"s_lshl_b32 s13, s2, 9\ns_add_u32 s13, s13, {hex(WS_STAMP)}")
    A(f"v_lshlrev_b32 v253, 3, v0\nv_add_u32 v253, s13, v253\nv_mov_b32 v254, v255\nv_mov_b32 v255, 0")
    A(f"v_cmp_le_u32 vcc, {lo}, v0\nv_cmp_gt_u32 s[96:97], {hi}, v0\ns_nop 1\ns_and_b64 exec, vcc, s[96:97]")
    A(f"buffer_store_dwordx2 v[254:255], v253, s[{SWS}:{SWS+3}], 0 offen")

A(".p2align 8"); A(f"{KN}:")
A("s_cmp_ge_u32 s2, 256\ns_cbranch_scc1 L_end")
A("s_load_dwordx16 s[16:31], s[0:1], 0")
if STAMP: A("s_memtime s[94:95]")
A("""v_lshrrev_b32 v1, 6, v0
v_and_b32 v0, 63, v0
v_readfirstlane_b32 s3, v1
s_and_b32 s4, s2, 7
s_lshr_b32 s5, s2, 3
s_and_b32 s8, s5, 3
s_lshr_b32 s11, s5, 2
s_add_u32 s9, s8, s11
s_and_b32 s9, s9, 3""")
if "nopf" not in opts:
    A("s_getpc_b64 s[6:7]")
    A("L_pc:")
    A(f"s_lshl_b32 s13, s8, 3\ns_add_u32 s13, s13, s3\ns_mul_i32 s13, s13, 12*64")
    A("v_min_u32 v1, 11, v0\nv_lshlrev_b32 v1, 6, v1\nv_add_u32 v1, s13, v1")
    A(f"v_min_u32 v1, L_codeend-L_pc-4, v1")
    A("global_load_dword v250, v1, s[6:7]")
A("s_cmp_lt_u32 s3, 4\ns_cbranch_scc1 L_compute")
srd_consts(A, [SX, SWQ])
A("""s_sub_u32 s3, s3, 4
s_lshl_b32 s10, s4, 2
s_add_u32 s10, s10, s8
s_lshl_b32 s12, s8, 1
s_add_u32 s12, s12, s11
v_lshrrev_b32 v1, 3, v0
v_lshrrev_b32 v2, 4, v0
v_and_b32 v3, 7, v0
v_and_b32 v4, 15, v0
s_and_b32 s13, s3, 1
s_lshl_b32 s13, s13, 2
v_add_u32 v5, s13, v2
v_xor_b32 v5, v5, v3
v_lshlrev_b32 v5, 4, v5
s_lshl_b32 s13, s3, 3
v_add_u32 v6, s13, v1
v_lshl_add_u32 v8, v6, 10, v5
v_lshl_add_u32 v11, v6, 8, v5
s_lshl_b32 s13, s3, 2
v_add_u32 v6, s13, v2
v_lshlrev_b32 v5, 2, v2
v_xor_b32 v5, v5, v4
v_lshlrev_b32 v5, 4, v5
v_lshl_add_u32 v9, v6, 13, v5
v_lshl_add_u32 v12, v6, 10, v5
s_lshl_b32 s64, s11, 17
s_lshl_b32 s65, s10, 8
s_lshl_b32 s67, s3, 10
s_waitcnt lgkmcnt(0)""")
srd_ptrs(A, [SX, SWQ])
if STAMP: A("v_writelane_b32 v255, s94, 0")
stamp(1)
def ld_q(i):
    A(f"s_add_u32 s13, s12, {i}\ns_and_b32 s13, s13, 7")
    A(f"s_lshl_b32 s14, s13, 7\ns_add_u32 s14, s14, s64")
    A(f"s_lshl_b32 s15, s13, 19\ns_add_u32 s15, s15, s65")
    for q in range(4):
        A(f"s_add_u32 m0, s67, {XR + (i%4)*16384 + q*4096}")
        A(f"s_add_u32 s68, s14, {q*32768}")
        A(f"buffer_load_dwordx4 v8, s[{SX}:{SX+3}], s68 offen lds")
        A(f"s_add_u32 m0, s67, {WR + (i%4)*16384 + q*4096}")
        A(f"s_add_u32 s68, s15, {q*16*8192}")
        A(f"buffer_load_dwordx4 v9, s[{SWQ}:{SWQ+3}], s68 offen lds")
    return 8
def late_setup():
    srd_consts(A, [SK, SV, SWO, SWS, SOUT]); srd_ptrs(A, [SK, SV, SWO, SWS, SOUT])
    A("""v_xor_b32 v5, v6, v4
v_lshlrev_b32 v5, 4, v5
v_lshl_add_u32 v10, v6, 8, v5
v_lshlrev_b32 v13, 4, v0
s_lshl_b32 s66, s11, 20
s_lshl_b32 s13, s4, 16
s_add_u32 s69, s66, s13
s_lshl_b32 s13, s10, 14
s_add_u32 s66, s66, s13
s_lshl_b32 s70, s4, 19
s_lshl_b32 s13, s9, 8
s_add_u32 s70, s70, s13
s_lshr_b32 s71, s11, 2""")
    A(f"""s_lshl_b32 s72, s11, 3
s_add_u32 s72, s72, s4
s_lshl_b32 s73, s72, 16
s_add_u32 s13, s8, s3
s_and_b32 s13, s13, 3
s_lshl_b32 s13, s13, 12
s_add_u32 s73, s73, s13
s_add_u32 s73, s73, {WS_P}
s_lshr_b32 s74, s4, 1""")
    return 0
def ld_k():
    for q in range(8):
        A(f"s_add_u32 m0, s67, {KR + q*4096}")
        A(f"s_add_u32 s68, s66, {(q&3)*4096 + (q>>2)*524288}")
        A(f"buffer_load_dwordx4 v10, s[{SK}:{SK+3}], s68 offen {NTK} lds")
    return 8
def ld_vw(i):
    m = i - 8
    A(f"s_add_u32 s13, s8, {m>>1}\ns_and_b32 s13, s13, 3")
    A(f"s_xor_b32 s75, s71, {m&1}")
    A(f"s_lshl_b32 s14, s13, 14\ns_add_u32 s14, s14, s69\ns_lshl_b32 s68, s75, 7\ns_add_u32 s14, s14, s68")
    A(f"s_lshl_b32 s15, s13, 17\ns_add_u32 s15, s15, s70\ns_lshl_b32 s68, s75, 16\ns_add_u32 s15, s15, s68")
    for q in range(4):
        A(f"s_add_u32 m0, s67, {XR + (i%4)*16384 + q*4096}")
        A(f"s_add_u32 s68, s14, {(q&1)*8192 + (q>>1)*524288}")
        A(f"buffer_load_dwordx4 v11, s[{SV}:{SV+3}], s68 offen lds")
        A(f"s_add_u32 m0, s67, {WR + (i%4)*16384 + q*4096}")
        A(f"s_add_u32 s68, s15, {q*16*1024}")
        A(f"buffer_load_dwordx4 v12, s[{SWO}:{SWO+3}], s68 offen lds")
    return 8
PSLOT = [KR, KR + 16384, XR + 0*16384, WR + 0*16384]
def ld_p(p):
    A(f"s_add_u32 s13, s74, {p+1}\ns_and_b32 s13, s13, 3\ns_lshl_b32 s13, s13, 14\ns_add_u32 s14, s13, s73")
    A(f"s_lshl_b32 s15, s3, 12\ns_add_u32 m0, s15, {PSLOT[p]}\ns_nop 0")
    for u in range(4):
        A(f"buffer_load_dwordx4 v13, s[{SWS}:{SWS+3}], s14 offen offset:{u*1024} sc1 lds")
    return 4
def p_signal():
    A("s_cmp_lg_u32 s3, 0\ns_cbranch_scc1 L_nosig")
    A(f"s_lshl_b32 s13, s72, 2\nv_mov_b32 v14, s13\nv_mov_b32 v15, 1\ns_mov_b64 exec, 1")
    A(f"buffer_atomic_add v15, v14, s[{SDBG}:{SDBG+3}], 0 offen")
    A("s_mov_b64 exec, -1")
    A("L_nosig:")
    return 0
def p_wait():
    A(f"s_lshl_b32 s13, s72, 2\ns_mov_b32 s76, 0")
    A("L_pw:")
    A(f"s_load_dword s77, s[28:29], s13 glc\ns_add_u32 s76, s76, 1\ns_waitcnt lgkmcnt(0)")
    A(f"s_cmp_ge_u32 s77, 4\ns_cbranch_scc1 L_pwd\ns_cmp_lt_u32 s76, {SPIN}\ns_cbranch_scc1 L_pw")
    A("L_pwd:")
    return 0
sched = opts.get("sched", "S0 S1 setup B0 S2 B1 S3 B2 S4 K B3 S5 B4 S6 B5 S7 B6 S8 B7 S9 B8 S10 B9 S11 B10 S12 B11 S13 B12 S14 B13 S15 B14 P0 P1 B15 P2 P3 BP0 BP2").split()
issued = []
def cnt_after(name):
    k = [n for n, _ in issued].index(name)
    return sum(c for _, c in issued[k+1:])
nb = 0
for it in sched:
    if it == "setup": late_setup()
    elif it == "sig": p_signal()
    elif it == "pw": p_wait()
    elif it == "K": issued.append((it, ld_k()))
    elif it[0] == "S":
        i = int(it[1:]); issued.append((it, ld_q(i) if i < 8 else ld_vw(i)))
    elif it[0] == "P": issued.append((it, ld_p(int(it[1:]))))
    else:
        need = {"BK": "K", "BP0": "P1", "BP2": "P3"}.get(it, "S" + it[1:])
        A(f"s_waitcnt vmcnt({cnt_after(need)})\ns_barrier"); stamp(2 + nb); nb += 1
assert nb == 18
A(f"""s_lshl_b32 s13, s11, 2
s_add_u32 s13, s13, s9
s_lshl_b32 s13, s13, 3
s_add_u32 s13, s13, s4
s_lshl_b32 s14, s13, 2
s_add_u32 s14, s14, s3
s_lshl_b32 s14, s14, 13
s_add_u32 s14, s14, {WS_PART}
s_add_u32 s15, s14, 4096
s_lshl_b32 s13, s13, 7
s_lshr_b32 s75, s3, 1
s_lshl_b32 s75, s75, 6
s_add_u32 s13, s13, s75
s_add_u32 s13, s13, {WS_FLAG}
v_and_b32 v1, 31, v0
v_lshrrev_b32 v2, 5, v0
s_lshl_b32 s75, s11, 7
s_lshl_b32 s76, s74, 5
s_add_u32 s75, s75, s76
v_add_u32 v1, s75, v1
v_lshlrev_b32 v1, 10, v1
v_lshl_add_u32 v1, v2, 4, v1
s_lshl_b32 s75, s9, 8
s_and_b32 s76, s4, 1
s_lshl_b32 s76, s76, 7
s_add_u32 s75, s75, s76
s_lshl_b32 s76, s3, 5
s_add_u32 s75, s75, s76
v_add_u32 v1, s75, v1
s_mov_b32 s76, 0""")
A("L_fw:")
A(f"s_load_dwordx8 s[80:87], s[30:31], s13 glc\ns_add_u32 s76, s76, 1\ns_waitcnt lgkmcnt(0)")
A("s_and_b64 s[80:81], s[80:81], s[82:83]\ns_and_b64 s[84:85], s[84:85], s[86:87]\ns_and_b64 s[80:81], s[80:81], s[84:85]\ns_and_b32 s80, s80, s81")
A(f"s_cbranch_scc1 L_fwd\ns_cmp_lt_u32 s76, {SPIN}\ns_cbranch_scc1 L_fw")
A("L_fwd:")
stamp(21)
for src in range(8):
    A(f"buffer_load_dwordx4 {v(16+4*src,4)}, v13, s[{SWS}:{SWS+3}], {'s14' if src < 4 else 's15'} offen offset:{(src&3)*1024} sc1")
A("s_mov_b32 s77, 0xffff0000")
for src in range(8):
    A(f"s_waitcnt vmcnt({7-src})")
    for d in range(4):
        r = 16 + 4*src + d
        if src == 0:
            A(f"v_lshlrev_b32 v{48+2*d}, 16, v{r}\nv_and_b32 v{49+2*d}, s77, v{r}")
        else:
            A(f"v_lshlrev_b32 v2, 16, v{r}\nv_and_b32 v3, s77, v{r}\nv_add_f32 v{48+2*d}, v{48+2*d}, v2\nv_add_f32 v{49+2*d}, v{49+2*d}, v3")
for d in range(4): A(f"v_cvt_pk_bf16_f32 v{56+d}, v{48+2*d}, v{49+2*d}")
A(f"buffer_store_dwordx4 v[56:59], v1, s[{SOUT}:{SOUT+3}], 0 offen")
if STAMP:
    stamp(22); A("s_waitcnt vmcnt(0)"); stamp(23)
    A("s_cmp_lg_u32 s3, 0\ns_cbranch_scc1 L_end")
    stamp_flush(0, 24)
A("s_endpgm")

A("L_compute:")
srd_consts(A, [SWS, SDBG])
VXA, VWA, VPA, VST = 4, 8, 12, 13
A(f"""v_and_b32 v1, 31, v0
v_lshrrev_b32 v2, 5, v0
s_lshl_b32 s13, s3, 12
v_bfe_u32 v3, v0, 1, 3
v_xor_b32 v3, v3, v2
v_lshlrev_b32 v3, 4, v3
v_lshl_add_u32 v3, v1, 7, v3
v_add_u32 v{VXA}, s13, v3
v_xor_b32 v{VXA+1}, 32, v{VXA}
v_xor_b32 v{VXA+2}, 64, v{VXA}
v_xor_b32 v{VXA+3}, 0x60, v{VXA}
v_bfe_u32 v3, v0, 2, 2
v_bfe_u32 v14, v0, 4, 1
v_lshlrev_b32 v14, 5, v14
v_and_b32 v15, 1, v0
v_lshl_add_u32 v14, v15, 4, v14
v_bfe_u32 v15, v0, 1, 1
v_lshl_add_u32 v14, v15, 3, v14
v_lshl_add_u32 v15, v2, 3, v3
v_lshlrev_b32 v15, 8, v15
v_lshl_add_u32 v15, v3, 6, v15
v_add_u32 v15, v15, v14
v_add_u32 v{VWA}, {WR}, v15
v_xor_b32 v{VWA+1}, 64, v{VWA}
v_xor_b32 v{VWA+2}, 0x80, v{VWA}
v_xor_b32 v{VWA+3}, 0xc0, v{VWA}
v_lshlrev_b32 v{VST}, 4, v0""")
ACC = 16
F1 = [80, 84]
F4 = 88
VWS = 104
VKA = 232
A(f"""s_lshr_b32 s13, s3, 1
s_lshl_b32 s13, s13, 14
s_add_u32 s14, s13, {KR}
v_and_b32 v3, 15, v1
v_xor_b32 v3, v3, v2
v_lshlrev_b32 v3, 4, v3
v_lshl_add_u32 v3, v1, 8, v3
v_add_u32 v{VKA}, s14, v3""")
for i in range(1, 8): A(f"v_xor_b32 v{VKA+i}, {hex(i*32)}, v{VKA}")
A(f"""s_lshl_b32 s72, s11, 3
s_add_u32 s72, s72, s4
s_lshl_b32 s64, s72, 2
s_add_u32 s64, s64, s3
s_lshl_b32 s64, s64, 2
s_add_u32 s64, s64, s8
s_lshl_b32 s64, s64, 12
s_add_u32 s64, s64, {WS_P}
s_lshl_b32 s13, s11, 2
s_add_u32 s13, s13, s9
s_lshl_b32 s65, s13, 18
s_lshr_b32 s14, s3, 1
s_lshl_b32 s15, s14, 15
s_add_u32 s65, s65, s15
s_and_b32 s15, s3, 1
s_lshl_b32 s75, s15, 14
s_add_u32 s65, s65, s75
s_lshl_b32 s75, s4, 10
s_add_u32 s65, s65, s75
s_add_u32 s65, s65, {WS_PART}
s_lshl_b32 s66, s13, 10
s_add_u32 s66, s66, {WS_FLAG}
s_lshl_b32 s75, s4, 7
s_add_u32 s67, s66, s75
s_lshl_b32 s14, s14, 7
s_add_u32 s66, s66, s14
s_lshl_b32 s15, s15, 6
s_add_u32 s66, s66, s15
s_lshl_b32 s75, s4, 2
s_add_u32 s66, s66, s75
s_lshr_b32 s74, s4, 1
s_waitcnt lgkmcnt(0)""")
srd_ptrs(A, [SWS, SDBG])
A("s_cmp_lg_u32 s3, 1\ns_cbranch_scc1 L_noclr")
A(f"v_lshlrev_b32 v3, 2, v0\nv_mov_b32 v14, 0\ns_mov_b32 exec_hi, 0")
A(f"buffer_store_dword v14, v3, s[{SWS}:{SWS+3}], s67 offen sc1\ns_mov_b64 exec, -1")
A("L_noclr:")

def q_rd1(n):
    st, kk = divmod(n, 4)
    A(f"ds_read_b128 {v(F1[n&1],4)}, v{VXA+kk} offset:{(st%4)*16384}")
def q_rd4(n, t):
    st, kk = divmod(n, 4)
    for e in range(2):
        A(f"ds_read_b64_tr_b16 {v(F4+4*t+2*e,2)}, v{VWA+t} offset:{(st%4)*16384 + kk*4096 + e*1024}")
def q_mf(n, t):
    c = "0" if n == 0 else v(ACC+16*t, 16)
    A(f"{MF} {v(ACC+16*t,16)}, {v(F4+4*t,4)}, {v(F1[n&1],4)}, {c}")
A("s_barrier")
q_rd1(0)
for t in range(4): q_rd4(0, t)
for n in range(32):
    if n % 4 == 3 and n < 31: A("s_barrier")
    if n < 31:
        A("s_waitcnt lgkmcnt(6)"); q_mf(n, 0); q_rd1(n+1); q_rd4(n+1, 0)
        for t in range(1, 4):
            A("s_waitcnt lgkmcnt(7)"); q_mf(n, t); q_rd4(n+1, t)
    else:
        for t in range(4):
            A(f"s_waitcnt lgkmcnt({6-2*t})"); q_mf(n, t)
QB, KF, SC, PB = VWS, VWS+32, VWS+64, VWS+96
for s_ in range(8): A(f"ds_read_b128 {v(KF+4*s_,4)}, v{VKA+s_}")
A("s_nop 3")
for i in range(32): A(f"v_cvt_pk_bf16_f32 v{QB+i}, v{ACC+2*i}, v{ACC+2*i+1}")
A("s_nop 1")
for s_ in range(8):
    A(f"s_waitcnt lgkmcnt(7)")
    A(f"{MF} {v(SC,16)}, {v(KF+4*s_,4)}, {v(QB+4*s_,4)}, {'0' if s_ == 0 else v(SC,16)}")
    A(f"ds_read_b128 {v(KF+4*s_,4)}, v{VKA+s_} offset:8192")
for s_ in range(8):
    A(f"s_waitcnt lgkmcnt({7-s_})")
    A(f"{MF} {v(SC+16,16)}, {v(KF+4*s_,4)}, {v(QB+4*s_,4)}, {'0' if s_ == 0 else v(SC+16,16)}")
A("s_lshl_b32 s13, s3, 12")
for kk in range(4): A(f"v_subrev_u32 v{VXA+kk}, s13, v{VXA+kk}")
A(f"s_lshl_b32 s13, s3, 6\nv_xor_b32 v{VWA}, s13, v{VWA}")
A(f"v_max3_f32 v1, v{SC}, v{SC+1}, v{SC+2}")
for i in range(3, 15, 2): A(f"v_max3_f32 v1, v1, v{SC+i}, v{SC+i+1}")
A("s_nop 1")
for i in range(15, 31, 2): A(f"v_max3_f32 v1, v1, v{SC+i}, v{SC+i+1}")
A(f"v_max_f32 v1, v1, v{SC+31}")
A("v_mov_b32 v2, v1\ns_nop 1\nv_permlane32_swap_b32 v1, v2\ns_nop 1\nv_max_f32 v1, v1, v2")
cs = struct.unpack("<I", struct.pack("<f", math.log2(math.e) / math.sqrt(128)))[0]
A(f"s_mov_b32 s14, {hex(cs)}")
A("v_mul_f32 v1, s14, v1")
for i in range(32): A(f"v_fma_f32 v{SC+i}, v{SC+i}, s14, -v1")
for i in range(32): A(f"v_exp_f32 v{SC+i}, v{SC+i}")
A(f"v_add_f32 v2, v{SC}, v{SC+1}")
for i in range(2, 32): A(f"v_add_f32 v2, v2, v{SC+i}")
A("v_mov_b32 v3, v2\ns_nop 1\nv_permlane32_swap_b32 v2, v3\ns_nop 1\nv_add_f32 v2, v2, v3\nv_rcp_f32 v2, v2\ns_nop 0")
for i in range(32): A(f"v_mul_f32 v{SC+i}, v{SC+i}, v2")
for i in range(16): A(f"v_cvt_pk_bf16_f32 v{PB+i}, v{SC+2*i}, v{SC+2*i+1}")
for u in range(4):
    A(f"buffer_store_dwordx4 {v(PB+4*u,4)}, v{VST}, s[{SWS}:{SWS+3}], s64 offen offset:{u*1024} sc1")
stamp(24)
def w_rd1(n):
    st, kk = divmod(n, 4)
    for e in range(2):
        A(f"ds_read_b64_tr_b16 {v(F1[n&1]+2*e,2)}, v{VWA} offset:{(st%4)*16384 + kk*4096 + e*1024}")
def w_rd4(n, t):
    st, kk = divmod(n, 4)
    A(f"ds_read_b128 {v(F4+4*t,4)}, v{VXA+kk} offset:{(st%4)*16384 + t*4096}")
def w_mf(n, t):
    c = "0" if n % 8 == 0 else v(ACC+16*t, 16)
    A(f"{MF} {v(ACC+16*t,16)}, {v(F4+4*t,4)}, {v(F1[n&1],4)}, {c}")
def w_cvt(head, t):
    for i in range(8): A(f"v_cvt_pk_bf16_f32 v{VWS+32*head+8*t+i}, v{ACC+16*t+2*i}, v{ACC+16*t+2*i+1}")
PWN = int(opts.get("pwn", 23))
def chk_issue(n):
    A(f"s_cmp_lg_u32 s3, 0\ns_cbranch_scc1 L_ci{n}")
    A(f"buffer_load_dword v15, v248, s[{SDBG}:{SDBG+3}], 0 offen sc1")
    A(f"L_ci{n}:")
def chk_wait(tag, allof):
    A(f"s_cmp_lg_u32 s3, 0\ns_cbranch_scc1 L_cd{tag}\ns_mov_b32 s76, 0")
    A(f"L_cw{tag}:")
    A("s_waitcnt vmcnt(0)")
    A("v_cmp_ne_u32 vcc, 4, v15")
    A("s_add_u32 s76, s76, 1")
    if allof: A("s_nop 0\ns_and_b32 s77, vcc_lo, 0xff")
    else: A("s_lshl_b32 s77, 1, s4\ns_and_b32 s77, vcc_lo, s77")
    A(f"s_cbranch_scc0 L_cd{tag}")
    A(f"buffer_load_dword v15, v248, s[{SDBG}:{SDBG+3}], 0 offen sc1")
    A(f"s_cmp_lt_u32 s76, {SPIN}\ns_cbranch_scc1 L_cw{tag}")
    A(f"L_cd{tag}:")
A("v_and_b32 v248, 7, v0\nv_lshlrev_b32 v248, 2, v248\ns_lshl_b32 s13, s11, 5\nv_add_u32 v248, s13, v248")
A("s_barrier")
w_rd1(0)
for t in range(4): w_rd4(0, t)
for n in range(32):
    if n % 4 == 3:
        if n == 3: A("s_waitcnt vmcnt(0)")
        if n == PWN: chk_wait("p", False)
        if n == 31: chk_wait("c", True)
        A("s_barrier")
        if n == 3: p_signal()
        if n == PWN - 4 or n == 27: chk_issue(n)
    if n % 8 == 0 and n > 0: A("s_nop 3")
    for t in range(4):
        if n % 8 == 0 and n > 0: w_cvt(n//8 - 1, t)
        if n < 31:
            A(f"s_waitcnt lgkmcnt({3 if t == 0 else 5})"); w_mf(n, t)
            if t == 0: w_rd1(n+1)
            w_rd4(n+1, t)
        else:
            A(f"s_waitcnt lgkmcnt({3-t})"); w_mf(n, t)
stamp(25)
A("s_nop 7")
for t in range(4): w_cvt(3, t)
A(f"v_add_u32 v{VPA}, {KR}, v{VST}")
A(f"v_add_u32 v14, {WR}, v{VST}")
PADDR = [(VPA, 0), (VPA, 16384), (VST, 0), (14, 0)]
PF = [F1[0] + 4*i for i in range(6)]
OB = VKA
def phase2b(own):
    seq = [(p, s_, u) for p in range(4) for s_ in range(4) for u in range(4)]
    def rd(i):
        p, s_, u = seq[i]; r, o = PADDR[p]
        A(f"ds_read_b128 {v(PF[i%6],4)}, v{r} offset:{o + s_*4096 + u*1024}")
    def fin(p):
        t = (own + 1 + p) & 3; ob = OB + 8*(p & 1)
        for i in range(8): A(f"v_cvt_pk_bf16_f32 v{ob+i}, v{ACC+16*p+2*i}, v{ACC+16*p+2*i+1}")
        A(f"s_add_u32 s13, s65, {t*65536}\ns_add_u32 s14, s65, {t*65536+8192}")
        A(f"buffer_store_dwordx4 {v(ob,4)}, v{VST}, s[{SWS}:{SWS+3}], s13 offen sc1")
        A(f"buffer_store_dwordx4 {v(ob+4,4)}, v{VST}, s[{SWS}:{SWS+3}], s14 offen sc1")
    def flag(p, cnt):
        t = (own + 1 + p) & 3
        A(f"s_waitcnt vmcnt({cnt})\ns_add_u32 s13, s66, {t*256}\ns_mov_b64 exec, 1")
        A(f"buffer_store_dword v3, v2, s[{SWS}:{SWS+3}], s13 offen sc1\ns_mov_b64 exec, -1\ns_nop 0")
    for i in range(5): rd(i)
    for i, (p, s_, u) in enumerate(seq):
        t = (own + 1 + p) & 3; b = t >> 1
        if i == 32 - 5: A("s_barrier")
        nxt = i + 5 < 64
        A(f"s_waitcnt lgkmcnt({4 if nxt else 63 - i})")
        vw = VWS + 32*s_ + 16*b + 4*u
        c = "0" if (s_ == 0 and u == 0) else v(ACC+16*p, 16)
        A(f"{MF} {v(ACC+16*p,16)}, {v(vw,4)}, {v(PF[i%6],4)}, {c}")
        if nxt: rd(i + 5)
        if p > 0 and s_ == 1 and u == 1: fin(p - 1)
        if p == 3 and s_ == 0 and u == 0: flag(0, 2)
    A("s_nop 15")
    fin(3)
    stamp(26)
    flag(1, 5); flag(2, 3); flag(3, 2)
A("v_mov_b32 v2, 0\nv_mov_b32 v3, -1")
for own in range(4):
    if own < 3: A(f"s_cmp_lg_u32 s74, {own}\ns_cbranch_scc1 L_b{own+1}")
    phase2b(own)
    if own < 3: A("s_branch L_cend"); A(f"L_b{own+1}:")
A("L_cend:")
if STAMP:
    stamp(27)
    A("s_cmp_lg_u32 s3, 0\ns_cbranch_scc1 L_end")
    stamp_flush(24, 28)
A("L_end:")
A("s_endpgm")
A("L_codeend:")

out = HEADER
out += "; @launch grid=(256,1,1) block=(512,1,1) lds=163840\n"
out += f'.amdgcn_target "amdgcn-amd-amdhsa--gfx950"\n.text\n.globl {KN}\n.type {KN},@function\n' + A.text()
out += '.section .rodata,"a"\n' + kd(KN, 256)
open(sys.argv[1], "w").write(out)
```

```python
import sys, math, struct
from common import *
opts = dict(a.split("=") if "=" in a else (a, "1") for a in sys.argv[2:])
STAMP = "stamp" in opts
NTK = "" if "nont" in opts else "nt"
A = Asm()
MF = "v_mfma_f32_32x32x16_bf16"
KN = NAME + "_kernel"
XR, WR, KR = 0, 65536, 131072
WS_P, WS_PART, WS_FLAG, WS_STAMP = 0, 0x400000, 0xC00000, 0x9000000
SPIN = 1 << 18
FS = int(opts.get('fs', 256))
SSET = set(int(x) for x in opts["sset"].split(",")) if "sset" in opts else None

def stamp(i):
    if STAMP and (SSET is None or i in SSET):
        A(f"s_memtime s[98:99]\ns_memrealtime s[96:97]\ns_waitcnt lgkmcnt(0)\nv_writelane_b32 v254, s98, {i}\nv_writelane_b32 v255, s96, {i}")
def stamp_flush(lo, hi):
    if not STAMP: return
    A(f"s_lshl_b32 s13, s2, 9\ns_add_u32 s13, s13, {hex(WS_STAMP)}")
    A(f"v_lshlrev_b32 v253, 3, v0\nv_add_u32 v253, s13, v253")
    A(f"v_cmp_le_u32 vcc, {lo}, v0\nv_cmp_gt_u32 s[96:97], {hi}, v0\ns_nop 1\ns_and_b64 exec, vcc, s[96:97]")
    A(f"buffer_store_dwordx2 v[254:255], v253, s[{SWS}:{SWS+3}], 0 offen")

A(".p2align 8"); A(f"{KN}:")
A("s_cmp_ge_u32 s2, 256\ns_cbranch_scc1 L_end")
A("s_load_dwordx16 s[16:31], s[0:1], 0")
if STAMP: A("s_memtime s[94:95]\ns_memrealtime s[92:93]\nv_mov_b32 v254, -1\nv_mov_b32 v255, -1")
A("""v_lshrrev_b32 v1, 6, v0
v_and_b32 v0, 63, v0
v_readfirstlane_b32 s3, v1
s_and_b32 s4, s2, 7
s_lshr_b32 s5, s2, 3
s_and_b32 s8, s5, 3
s_lshr_b32 s11, s5, 2
s_add_u32 s9, s8, s11
s_and_b32 s9, s9, 3""")
if "nopf" not in opts:
    NPF = int(opts.get("npf", 9))
    A("s_getpc_b64 s[6:7]")
    A("L_pc:")
    A(f"s_lshl_b32 s13, s8, 3\ns_add_u32 s13, s13, s3\ns_mul_i32 s13, s13, {NPF}*64")
    A(f"v_min_u32 v1, {NPF-1}, v0\nv_lshlrev_b32 v1, 6, v1\nv_add_u32 v1, s13, v1")
    A(f"v_min_u32 v1, L_codeend-L_pc-4, v1")
    A("global_load_dword v250, v1, s[6:7]")
A("s_cmp_lt_u32 s3, 4\ns_cbranch_scc1 L_compute")
srd_consts(A, [SX, SWQ])
A("s_sub_u32 s3, s3, 4\ns_lshl_b32 s10, s4, 2\ns_add_u32 s10, s10, s8")
A({"8": "s_lshl_b32 s12, s8, 1\ns_add_u32 s12, s12, s11",
   "4": "s_add_u32 s12, s8, s11\ns_lshl_b32 s12, s12, 1", "2": "s_add_u32 s12, s8, s11\ns_lshl_b32 s12, s12, 2", "1": "s_mov_b32 s12, 0"}[opts.get("rot", "8")])
A("""v_lshrrev_b32 v1, 3, v0
v_lshrrev_b32 v2, 4, v0
v_and_b32 v3, 7, v0
v_and_b32 v4, 15, v0
s_and_b32 s13, s3, 1
s_lshl_b32 s13, s13, 2
v_add_u32 v5, s13, v2
v_xor_b32 v5, v5, v3
v_lshlrev_b32 v5, 4, v5
s_lshl_b32 s13, s3, 3
v_add_u32 v6, s13, v1
v_lshl_add_u32 v8, v6, 10, v5
v_lshl_add_u32 v11, v6, 8, v5
s_lshl_b32 s13, s3, 2
v_add_u32 v6, s13, v2
v_lshlrev_b32 v5, 2, v2
v_xor_b32 v5, v5, v4
v_lshlrev_b32 v5, 4, v5
v_lshl_add_u32 v9, v6, 13, v5
v_lshl_add_u32 v12, v6, 10, v5
s_lshl_b32 s64, s11, 17
s_lshl_b32 s65, s10, 8
s_lshl_b32 s67, s3, 10
s_waitcnt lgkmcnt(0)""")
srd_ptrs(A, [SX, SWQ])
if STAMP: A("v_writelane_b32 v254, s94, 0\nv_writelane_b32 v255, s92, 0\ns_getreg_b32 s92, hwreg(HW_REG_XCC_ID)\ns_and_b32 s92, s92, 7\nv_writelane_b32 v254, s92, 30")
stamp(1)
def ld_q(i):
    if "noload1" in opts and i >= 2: return 0
    A(f"s_add_u32 s13, s12, {i}\ns_and_b32 s13, s13, 7")
    A(f"s_lshl_b32 s14, s13, 7\ns_add_u32 s14, s14, s64")
    A(f"s_lshl_b32 s15, s13, 19\ns_add_u32 s15, s15, s65")
    for q in range(4):
        A(f"s_add_u32 m0, s67, {XR + (i%4)*16384 + q*4096}")
        A(f"s_add_u32 s68, s14, {q*32768}")
        A(f"buffer_load_dwordx4 v8, s[{SX}:{SX+3}], s68 offen lds")
        A(f"s_add_u32 m0, s67, {WR + (i%4)*16384 + q*4096}")
        A(f"s_add_u32 s68, s15, {q*16*8192}")
        A(f"buffer_load_dwordx4 v9, s[{SWQ}:{SWQ+3}], s68 offen lds")
    return 8
ROT2 = opts.get("rot2", "8")
def head0(dst):
    if ROT2 == "8": A(f"s_mov_b32 {dst}, s8")
    elif ROT2 == "2": A(f"s_lshl_b32 {dst}, s8, 1\ns_and_b32 {dst}, {dst}, 2")
    elif ROT2 == "4": A(f"s_mov_b32 {dst}, s8")
    else: A(f"s_mov_b32 {dst}, 0")
def late_setup():
    srd_consts(A, [SK, SV, SWO, SWS, SOUT]); srd_ptrs(A, [SK, SV, SWO, SWS, SOUT])
    A("""v_xor_b32 v5, v6, v4
v_lshlrev_b32 v5, 4, v5
v_lshl_add_u32 v10, v6, 8, v5
v_lshlrev_b32 v13, 4, v0
s_lshl_b32 s66, s11, 20
s_lshl_b32 s13, s4, 16
s_add_u32 s69, s66, s13
s_lshl_b32 s13, s10, 14
s_add_u32 s66, s66, s13
s_lshl_b32 s70, s4, 19
s_lshl_b32 s13, s9, 8
s_add_u32 s70, s70, s13
s_lshr_b32 s74, s4, 1
s_lshr_b32 s13, s4, 2
s_lshl_b32 s13, s13, 19
s_add_u32 s79, s69, s13
s_xor_b32 s69, s79, 0x80000""")
    if ROT2 == "8": A("s_lshr_b32 s71, s11, 2")
    else: A("s_mov_b32 s71, 0")
    head0("s62")
    A(f"""s_lshl_b32 s72, s11, 3
s_add_u32 s72, s72, s4
s_lshl_b32 s73, s72, 16
s_add_u32 s13, s62, s3
s_and_b32 s13, s13, 3
s_lshl_b32 s13, s13, 12
s_add_u32 s73, s73, s13
s_add_u32 s73, s73, {WS_P}""")
def ld_k():
    for q in range(8):
        A(f"s_add_u32 m0, s67, {KR + q*4096}")
        A(f"s_add_u32 s68, s66, {(q&3)*4096 + (q>>2)*524288}")
        A(f"buffer_load_dwordx4 v10, s[{SK}:{SK+3}], s68 offen {NTK} lds")
    return 8
def ld_vw(i):
    m = i - 8
    if "noload2" in opts and i >= 10: return 0
    A(f"s_add_u32 s13, s62, {m>>1}\ns_and_b32 s13, s13, 3")
    A(f"s_xor_b32 s75, s71, {m&1}")
    A(f"s_lshl_b32 s14, s13, 14\ns_lshl_b32 s68, s75, 7\ns_add_u32 s68, s14, s68\ns_add_u32 s14, s68, s69\ns_add_u32 s63, s68, s79")
    A(f"s_lshl_b32 s15, s13, 17\ns_add_u32 s15, s15, s70\ns_lshl_b32 s68, s75, 16\ns_add_u32 s15, s15, s68")
    for q in range(4):
        A(f"s_add_u32 m0, s67, {XR + (i%4)*16384 + q*4096}")
        A(f"s_add_u32 s68, {'s14' if q < 2 else 's63'}, {(q&1)*8192}")
        A(f"buffer_load_dwordx4 v11, s[{SV}:{SV+3}], s68 offen lds")
        A(f"s_add_u32 m0, s67, {WR + (i%4)*16384 + q*4096}")
        A(f"s_add_u32 s68, s15, {q*16*1024}")
        A(f"buffer_load_dwordx4 v12, s[{SWO}:{SWO+3}], s68 offen lds")
    return 8
PSLOT = [KR, KR + 16384, XR + 0*16384, WR + 0*16384]
def ld_p(p):
    A(f"s_xor_b32 s13, s74, {3-p}\ns_lshl_b32 s13, s13, 14\ns_add_u32 s14, s13, s73")
    A(f"s_lshl_b32 s15, s3, 12\ns_add_u32 m0, s15, {PSLOT[p]}\ns_nop 0")
    for u in range(4):
        A(f"buffer_load_dwordx4 v13, s[{SWS}:{SWS+3}], s14 offen offset:{u*1024} sc1 lds")
    return 4
def p_wait():
    A(f"""s_lshl_b32 s13, s11, 2
s_add_u32 s13, s13, s9
s_lshl_b32 s13, s13, 3
s_add_u32 s13, s13, s4
s_mul_i32 s13, s13, {FS}
s_add_u32 s13, s13, {WS_FLAG + 128}
s_mov_b32 s61, s13
s_mov_b32 s76, 0
s_load_dwordx16 s[80:95], s[30:31], s61 glc""")
def p_wait2():
    A("s_branch L_pw1")
    A("L_pw:")
    A("s_load_dwordx16 s[80:95], s[30:31], s61 glc")
    A("L_pw1:")
    A("s_add_u32 s76, s76, 1\ns_waitcnt lgkmcnt(0)")
    for i in range(82, 96, 2): A(f"s_and_b64 s[80:81], s[80:81], s[{i}:{i+1}]")
    A(f"s_and_b32 s80, s80, s81\ns_cbranch_scc1 L_pwd\ns_cmp_lt_u32 s76, {SPIN}\ns_cbranch_scc1 L_pw")
    A("L_pwd:")
DEF = "S0 S1 setup B0 S2 B1 Ka S3 B2 S4 B3 S5 B4 Kb S6 B5 S7 B6 S8 B7 S9 B8 S10 B9 S11 B10 S12 B11 S13 B12 S14 B13 pi S15 B14 pw P0 P1 B15 P2 P3 BP0 BP2"
sched = opts.get("sched", DEF).replace("_", " ").split()
KBAR = "BK" if "BK" in sched else "B7"
NPAR = 4
issued = [[] for _ in range(NPAR)]
def cnt_after(par, name):
    k = [n for n, _ in issued[par]].index(name)
    return sum(c for _, c in issued[par][k+1:])
nb = 0
nk = len([x for x in sched if x[0] == "K" and len(x) == 2])
lbl = 0
for it in sched:
    if it == "setup":
        late_setup()
        if nk == 2: A(f"s_bfe_u32 s78, s5, {hex(0x10000 | int(opts.get('parbit', 2)))}")
        elif nk == 4: A(f"s_bfe_u32 s78, s5, {hex(0x20000 | int(opts.get('parbit', 2)))}")
        elif nk == 3: A("s_mul_i32 s78, s5, 3\ns_lshr_b32 s78, s78, 5")
    elif it == "pi": p_wait()
    elif it == "pw": p_wait2()
    elif it == "K":
        c = ld_k()
        for q in issued: q.append(("K", c))
    elif it[0] == "K":
        par = "abcd".index(it[1])
        A(f"s_cmp_lg_u32 s78, {par}\ns_cbranch_scc1 L_sk{it}")
        issued[par].append(("K", ld_k())); A(f"L_sk{it}:")
    elif it[0] == "S" or it[0] == "P":
        i = int(it[1:]); c = ld_p(i) if it[0] == "P" else ld_q(i) if i < 8 else ld_vw(i)
        for q in issued: q.append((it, c))
    else:
        need = {"BP0": ["P1"], "BP2": ["P3"], "BK": [], "BQ": []}.get(it, ["S" + it[1:]])
        if it == KBAR: need.append("K")
        if need:
            c = [min(cnt_after(p, n) for n in need) for p in range(max(nk, 1))]
            if min(c) == max(c): A(f"s_waitcnt vmcnt({c[0]})")
            else:
                lbl += 1
                assert len(set(c)) == 2
                hi = [p for p in range(len(c)) if c[p] == max(c)]; lo = [p for p in range(len(c)) if c[p] == min(c)]
                A(f"s_waitcnt vmcnt({max(c)})")
                if len(hi) == 1: A(f"s_cmp_eq_u32 s78, {hi[0]}")
                else:
                    assert len(lo) == 1; A(f"s_cmp_lg_u32 s78, {lo[0]}")
                A(f"s_cbranch_scc1 L_w{lbl}\ns_waitcnt vmcnt({min(c)})"); A(f"L_w{lbl}:")
        A("s_barrier"); stamp(2 + nb); nb += 1
assert nb == 18 + ("BK" in sched) + ("BQ" in sched)
A(f"""s_lshl_b32 s13, s11, 2
s_add_u32 s13, s13, s9
s_lshl_b32 s13, s13, 3
s_add_u32 s13, s13, s4
s_lshl_b32 s14, s13, 2
s_add_u32 s14, s14, s3
s_lshl_b32 s14, s14, 13
s_add_u32 s14, s14, {WS_PART}
s_mul_i32 s13, s13, {FS}
s_lshr_b32 s75, s3, 1
s_lshl_b32 s75, s75, 6
s_add_u32 s13, s13, s75
s_add_u32 s13, s13, {WS_FLAG}
v_and_b32 v1, 31, v0
v_lshrrev_b32 v2, 5, v0
s_lshl_b32 s75, s11, 7
s_lshl_b32 s76, s74, 5
s_add_u32 s75, s75, s76
v_add_u32 v1, s75, v1
v_lshlrev_b32 v1, 10, v1
v_lshl_add_u32 v1, v2, 4, v1
s_lshl_b32 s75, s9, 8
s_and_b32 s76, s4, 1
s_lshl_b32 s76, s76, 7
s_add_u32 s75, s75, s76
s_lshl_b32 s76, s3, 5
s_add_u32 s75, s75, s76
v_add_u32 v1, s75, v1
s_mov_b32 s77, 0xffff0000
s_mov_b32 s76, 0""")
def acc(p):
    for k in range(2):
        for d in range(4):
            r = 16 + 8*p + 4*k + d
            if p == 0 and k == 0:
                A(f"v_lshlrev_b32 v{48+2*d}, 16, v{r}\nv_and_b32 v{49+2*d}, s77, v{r}")
            else:
                A(f"v_lshlrev_b32 v2, 16, v{r}\nv_and_b32 v3, s77, v{r}\nv_pk_add_f32 v[{48+2*d}:{49+2*d}], v[{48+2*d}:{49+2*d}], v[2:3]")
A("s_add_u32 s15, s14, 4096")
if "latepoll" in opts: A("s_barrier")
FSL = int(opts.get("fsleep", 0))
for p in range(4):
    if p > 0: A(f"s_branch L_fc{p}")
    A(f"L_fw{p}:")
    if FSL: A(f"s_sleep {FSL}")
    A(f"s_load_dwordx8 s[80:87], s[30:31], s13 glc\ns_add_u32 s76, s76, 1\ns_waitcnt lgkmcnt(0)")
    A(f"L_fc{p}:")
    A(f"s_and_b32 s75, s{80+2*p}, s{81+2*p}")
    A(f"s_cbranch_scc1 L_fd{p}\ns_cmp_lt_u32 s76, {SPIN}\ns_cbranch_scc1 L_fw{p}")
    A(f"L_fd{p}:")
    for k in range(2):
        A(f"buffer_load_dwordx4 {v(16+8*p+4*k,4)}, v13, s[{SWS}:{SWS+3}], {'s14' if p < 2 else 's15'} offen offset:{(p&1)*2048+k*1024} sc1")
    stamp(22 + p)
for pp in range(4): A(f"s_waitcnt vmcnt({6-2*pp})"); acc(pp)
for d in range(4): A(f"v_cvt_pk_bf16_f32 v{56+d}, v{48+2*d}, v{49+2*d}")
A(f"buffer_store_dwordx4 v[56:59], v1, s[{SOUT}:{SOUT+3}], 0 offen")
if STAMP:
    stamp(26); A("s_waitcnt vmcnt(0)"); stamp(27)
    A("s_cmp_lg_u32 s3, 0\ns_cbranch_scc1 L_end")
    stamp_flush(0, 32)
A("s_endpgm")

A("L_compute:")
if "prio" in opts: A(f"s_setprio {opts['prio']}")
if "tlb" in opts:
    A("s_cmp_lg_u32 s3, 3\ns_cbranch_scc1 L_notlb")
    A(f"""s_lshl_b32 s13, s11, 20
s_lshl_b32 s14, s4, 16
s_add_u32 s13, s13, s14
v_mov_b32 v1, s13
s_lshl_b32 s14, s4, 19
v_mov_b32 v2, s14
s_lshl_b32 s14, s11, 17
v_mov_b32 v3, s14
s_lshl_b32 s14, s11, 19
v_mov_b32 v4, s14
s_lshl_b32 s14, s11, 20
s_add_u32 s14, s14, {WS_PART}
v_mov_b32 v5, s14
s_mov_b64 exec, 1
s_waitcnt lgkmcnt(0)
global_load_dword v250, v1, s[18:19]
global_load_dword v250, v1, s[20:21]
global_load_dword v250, v2, s[24:25]""")
    if opts["tlb"] == "2":
        A("""global_load_dword v250, v3, s[26:27]
global_load_dword v250, v4, s[30:31]
global_load_dword v250, v5, s[30:31]""")
    A("s_mov_b64 exec, -1")
    A("L_notlb:")
srd_consts(A, [SWS, SDBG])
VXA, VWA, VPA, VST = 4, 8, 12, 13
A(f"""v_and_b32 v1, 31, v0
v_lshrrev_b32 v2, 5, v0
s_lshl_b32 s13, s3, 12
v_bfe_u32 v3, v0, 1, 3
v_xor_b32 v3, v3, v2
v_lshlrev_b32 v3, 4, v3
v_lshl_add_u32 v3, v1, 7, v3
v_add_u32 v{VXA}, s13, v3
v_xor_b32 v{VXA+1}, 32, v{VXA}
v_xor_b32 v{VXA+2}, 64, v{VXA}
v_xor_b32 v{VXA+3}, 0x60, v{VXA}
v_bfe_u32 v3, v0, 2, 2
v_bfe_u32 v14, v0, 4, 1
v_lshlrev_b32 v14, 5, v14
v_and_b32 v15, 1, v0
v_lshl_add_u32 v14, v15, 4, v14
v_bfe_u32 v15, v0, 1, 1
v_lshl_add_u32 v14, v15, 3, v14
v_lshl_add_u32 v15, v2, 3, v3
v_lshlrev_b32 v15, 8, v15
v_lshl_add_u32 v15, v3, 6, v15
v_add_u32 v15, v15, v14
v_add_u32 v{VWA}, {WR}, v15
v_xor_b32 v{VWA+1}, 64, v{VWA}
v_xor_b32 v{VWA+2}, 0x80, v{VWA}
v_xor_b32 v{VWA+3}, 0xc0, v{VWA}
v_lshlrev_b32 v{VST}, 4, v0""")
ACC = 16
F1 = [80, 84]
F4 = 88
VWS = 104
VKA = 232
A(f"""s_lshr_b32 s13, s3, 1
s_lshl_b32 s13, s13, 14
s_add_u32 s14, s13, {KR}
v_and_b32 v3, 15, v1
v_xor_b32 v3, v3, v2
v_lshlrev_b32 v3, 4, v3
v_lshl_add_u32 v3, v1, 8, v3
v_add_u32 v{VKA}, s14, v3""")
for i in range(1, 8): A(f"v_xor_b32 v{VKA+i}, {hex(i*32)}, v{VKA}")
A(f"""s_lshl_b32 s72, s11, 3
s_add_u32 s72, s72, s4
s_lshl_b32 s64, s72, 2
s_add_u32 s64, s64, s3
s_lshl_b32 s64, s64, 2
s_add_u32 s64, s64, s8
s_lshl_b32 s64, s64, 12
s_add_u32 s64, s64, {WS_P}
s_lshl_b32 s13, s11, 2
s_add_u32 s13, s13, s9
s_lshl_b32 s65, s13, 18
s_lshr_b32 s14, s3, 1
s_lshl_b32 s15, s14, 15
s_add_u32 s65, s65, s15
s_and_b32 s15, s3, 1
s_lshl_b32 s75, s15, 14
s_add_u32 s65, s65, s75
s_and_b32 s73, s4, 1
s_lshl_b32 s75, s73, 10
s_add_u32 s65, s65, s75
s_add_u32 s65, s65, {WS_PART}
s_mul_i32 s66, s13, {FS*8}
s_add_u32 s66, s66, {WS_FLAG}
s_mul_i32 s75, s4, {FS}
s_add_u32 s67, s66, s75
s_mul_i32 s14, s14, {FS}
s_add_u32 s66, s66, s14
s_lshl_b32 s15, s15, 6
s_add_u32 s66, s66, s15
s_lshl_b32 s75, s73, 2
s_add_u32 s66, s66, s75
s_lshr_b32 s74, s4, 1""")
for p in range(4):
    A(f"s_xor_b32 s13, s74, {3-p}\ns_lshl_b32 s14, s13, 16\ns_add_u32 s14, s14, {p*2048}\ns_add_u32 s{80+2*p}, s65, s14\ns_add_u32 s{81+2*p}, s{80+2*p}, 8192")
    A(f"s_mul_i32 s14, s13, {FS*2}\ns_add_u32 s14, s14, {p*8}\ns_add_u32 s{88+p}, s66, s14")
cs = struct.unpack("<I", struct.pack("<f", math.log2(math.e) / math.sqrt(128)))[0]
A(f"s_mov_b32 s68, {hex(cs)}\ns_mov_b32 s69, {hex(cs)}")
A("v_and_b32 v248, 7, v0\nv_lshlrev_b32 v248, 2, v248\ns_lshl_b32 s13, s11, 5\nv_add_u32 v248, s13, v248")
A(f"v_add_u32 v{VPA}, {KR}, v{VST}\nv_add_u32 v249, {WR}, v{VST}\nv_mov_b32 v251, 0\nv_mov_b32 v252, -1")
A("s_waitcnt lgkmcnt(0)")
srd_ptrs(A, [SWS, SDBG])
A(f"""s_mul_i32 s13, s11, {FS*32}
s_mul_i32 s14, s4, {FS}
s_add_u32 s13, s13, s14
s_lshl_b32 s14, s8, 4
s_add_u32 s13, s13, s14
s_lshl_b32 s14, s3, 2
s_add_u32 s13, s13, s14
s_add_u32 s70, s13, {WS_FLAG + 128}
v_mul_u32_u24 v247, {FS*8}, v0""")
A("s_cmp_lg_u32 s3, 1\ns_cbranch_scc1 L_noclr")
A(f"v_lshlrev_b32 v3, 2, v0")
A(f"buffer_store_dword v251, v3, s[{SWS}:{SWS+3}], s67 offen sc1")
A("L_noclr:")
def clr_signal():
    A("s_cmp_lg_u32 s3, 1\ns_cbranch_scc1 L_nosg")
    A(f"s_lshl_b32 s13, s72, 2\nv_mov_b32 v15, 1\ns_mov_b64 exec, 1\ns_waitcnt vmcnt(0)")
    A(f"buffer_atomic_add v15, v251, s[{SDBG}:{SDBG+3}], s13 offen")
    A("s_mov_b64 exec, -1")
    A("L_nosg:")
CSN = int(opts.get("csn", 0)); CIN = int(opts.get("cin", 19))
if CSN < 0: clr_signal()
def chk_issue(w):
    A(f"s_cmp_lg_u32 s3, {w}\ns_cbranch_scc1 L_ci")
    A(f"buffer_load_dword v15, v248, s[{SDBG}:{SDBG+3}], 0 offen sc1")
    A(f"L_ci:")
def chk_wait(w):
    A(f"s_cmp_lg_u32 s3, {w}\ns_cbranch_scc1 L_cd\ns_mov_b32 s76, 0")
    A(f"L_cw:")
    A("s_waitcnt vmcnt(0)")
    A("v_cmp_gt_u32 vcc, 4, v15")
    A("s_add_u32 s76, s76, 1")
    A("s_nop 0\ns_and_b32 s77, vcc_lo, 0xff")
    A(f"s_cbranch_scc0 L_cd")
    A(f"s_sleep 8\nbuffer_load_dword v15, v248, s[{SDBG}:{SDBG+3}], 0 offen sc1")
    A(f"s_cmp_lt_u32 s76, {SPIN}\ns_cbranch_scc1 L_cw")
    A(f"L_cd:")

QB, KF, SC, PB = VWS, VWS+32, VWS+64, VWS+96
def q_rd1(n):
    st, kk = divmod(n, 4)
    A(f"ds_read_b128 {v(F1[n&1],4)}, v{VXA+kk} offset:{(st%4)*16384}")
def q_rd4(n, t):
    st, kk = divmod(n, 4)
    for e in range(2):
        A(f"ds_read_b64_tr_b16 {v(F4+4*t+2*e,2)}, v{VWA+t} offset:{(st%4)*16384 + kk*4096 + e*1024}")
def q_mf(n, t):
    c = "0" if n == 0 else v(ACC+16*t, 16)
    A(f"{MF} {v(ACC+16*t,16)}, {v(F4+4*t,4)}, {v(F1[n&1],4)}, {c}")
def k_rd(s_, kt): A(f"ds_read_b128 {v(KF+4*s_,4)}, v{VKA+s_} offset:{kt*8192}")
def q_cvt(s_):
    for i in range(4): A(f"v_cvt_pk_bf16_f32 v{QB+4*s_+i}, v{ACC+8*s_+2*i}, v{ACC+8*s_+2*i+1}")
A("s_barrier")
q_rd1(0)
for t in range(4): q_rd4(0, t)
for n in range(32):
    if n == 27: chk_wait(2)
    if n % 4 == 3 and (n < 31 or KBAR == "BK"): A("s_barrier")
    if n == CIN: chk_issue(2)
    if n == CSN: clr_signal()
    if "nocomp1" in opts and n < 30: continue
    if n < 31:
        A("s_waitcnt lgkmcnt(6)"); q_mf(n, 0); q_rd1(n+1); q_rd4(n+1, 0)
        for t in range(1, 4):
            A("s_waitcnt lgkmcnt(7)"); q_mf(n, t); q_rd4(n+1, t)
    else:
        for t in range(4):
            A(f"s_waitcnt lgkmcnt(6)"); q_mf(n, t); k_rd(2*t, 0); k_rd(2*t+1, 0)
if "BQ" in sched: A("s_barrier")
q_cvt(0); q_cvt(1)
for s_ in range(8):
    A(f"s_waitcnt lgkmcnt(7)")
    A(f"{MF} {v(SC,16)}, {v(KF+4*s_,4)}, {v(QB+4*s_,4)}, {'0' if s_ == 0 else v(SC,16)}")
    k_rd(s_, 1)
    if s_ < 6: q_cvt(s_ + 2)
fill = ["s_lshl_b32 s13, s3, 12"] + [f"v_subrev_u32 v{VXA+kk}, s13, v{VXA+kk}" for kk in range(4)]
fill += ["s_lshl_b32 s13, s3, 6", f"v_xor_b32 v{VWA}, s13, v{VWA}", "s_nop 0"]
fill += [f"v_max3_f32 v1, v{SC}, v{SC+1}, v{SC+2}"] + [f"v_max3_f32 v1, v1, v{SC+i}, v{SC+i+1}" for i in range(3, 15, 2)]
for s_ in range(8):
    A(f"s_waitcnt lgkmcnt({7-s_})")
    A(f"{MF} {v(SC+16,16)}, {v(KF+4*s_,4)}, {v(QB+4*s_,4)}, {'0' if s_ == 0 else v(SC+16,16)}")
    for x in fill[2*s_:2*s_+2]: A(x)
A("s_nop 10")
for i in range(15, 31, 2): A(f"v_max3_f32 v1, v1, v{SC+i}, v{SC+i+1}")
A(f"v_max_f32 v1, v1, v{SC+31}")
A("v_mov_b32 v2, v1\ns_nop 1\nv_permlane32_swap_b32 v1, v2\ns_nop 0\nv_max_f32 v1, v1, v2")
A("v_mul_f32 v2, s68, v1\nv_mul_f32 v3, s68, v1")
for i in range(0, 32, 2): A(f"v_pk_fma_f32 {v(SC+i,2)}, {v(SC+i,2)}, s[68:69], v[2:3] neg_lo:[0,0,1] neg_hi:[0,0,1]")
for i in range(32): A(f"v_exp_f32 v{SC+i}, v{SC+i}")
A(f"v_pk_add_f32 v[2:3], {v(SC,2)}, {v(SC+2,2)}")
for i in range(4, 32, 2): A(f"v_pk_add_f32 v[2:3], v[2:3], {v(SC+i,2)}")
A("v_add_f32 v2, v2, v3\nv_mov_b32 v3, v2\ns_nop 1\nv_permlane32_swap_b32 v2, v3\ns_nop 0\nv_add_f32 v2, v2, v3\nv_rcp_f32 v2, v2\ns_nop 0\nv_mov_b32 v3, v2")
for u in range(4):
    for i in range(8*u, 8*u+8, 2): A(f"v_pk_mul_f32 {v(SC+i,2)}, {v(SC+i,2)}, v[2:3]")
    for i in range(4*u, 4*u+4): A(f"v_cvt_pk_bf16_f32 v{PB+i}, v{SC+2*i}, v{SC+2*i+1}")
    A(f"buffer_store_dwordx4 {v(PB+4*u,4)}, v{VST}, s[{SWS}:{SWS+3}], s64 offen offset:{u*1024} sc1")
stamp(32)
def w_rd1(n):
    st, kk = divmod(n, 4)
    for e in range(2):
        A(f"ds_read_b64_tr_b16 {v(F1[n&1]+2*e,2)}, v{VWA} offset:{(st%4)*16384 + kk*4096 + e*1024}")
def w_rd4(n, t):
    st, kk = divmod(n, 4)
    A(f"ds_read_b128 {v(F4+4*t,4)}, v{VXA+kk} offset:{(st%4)*16384 + t*4096}")
def w_mf(n, t):
    c = "0" if n % 8 == 0 else v(ACC+16*t, 16)
    A(f"{MF} {v(ACC+16*t,16)}, {v(F4+4*t,4)}, {v(F1[n&1],4)}, {c}")
def w_cvt(head, t):
    for i in range(8): A(f"v_cvt_pk_bf16_f32 v{VWS+32*head+8*t+i}, v{ACC+16*t+2*i}, v{ACC+16*t+2*i+1}")
SIGN = int(opts.get("sign", 5))
def p_signal():
    A("s_waitcnt vmcnt(0)\ns_mov_b64 exec, 15")
    A(f"buffer_store_dword v252, v247, s[{SWS}:{SWS+3}], s70 offen sc1\ns_mov_b64 exec, -1")
PADDR = [(VPA, 0), (VPA, 16384), (VST, 0), (249, 0)]
PF = [F1[0], VKA, VKA+4, F4, F4+4, F4+8]
OB = [240, F4+12]
seq = [(p, s_, u) for p in range(4) for s_ in range(4) for u in range(4)]
def p_rd(i):
    p, s_, u = seq[i]; r, o = PADDR[p]
    A(f"ds_read_b128 {v(PF[i%6],4)}, v{r} offset:{o + s_*4096 + u*1024}")
A("s_barrier")
w_rd1(0)
for t in range(4): w_rd4(0, t)
for n in range(32):
    if n % 4 == 3: A("s_barrier")
    if n == SIGN: p_signal()
    for t in range(4):
        if "nocomp2" in opts and 8 <= n < 30: continue
        if n % 8 == 0 and n > 0: w_cvt(n//8 - 1, t)
        if n < 31:
            A(f"s_waitcnt lgkmcnt({3 if t == 0 else 5})"); w_mf(n, t)
            if t == 0: w_rd1(n+1)
            w_rd4(n+1, t)
        else:
            A(f"s_waitcnt lgkmcnt(3)"); w_mf(n, t); p_rd(t)
p_rd(4)
stamp(33)
def fin(p):
    for k in range(2):
        for i in range(4): A(f"v_cvt_pk_bf16_f32 v{OB[k]+i}, v{OACC[p]+8*k+2*i}, v{OACC[p]+8*k+2*i+1}")
        A(f"buffer_store_dwordx4 {v(OB[k],4)}, v{VST}, s[{SWS}:{SWS+3}], s{80+2*p+k} offen sc1")
def flag(p, cnt):
    A(f"s_waitcnt vmcnt({cnt})\ns_mov_b64 exec, 1")
    A(f"buffer_store_dword v252, v251, s[{SWS}:{SWS+3}], s{88+p} offen sc1\ns_mov_b64 exec, -1")
OACC = [ACC, ACC+16, ACC+32, ACC+48]
A("s_nop 1")
w_cvt(3, 0)
rest = [(t, i) for t in range(1, 4) for i in range(8)]
F0AT = int(opts.get("f0", 48)); F1AT = int(opts.get("f1", 64))
vmq = []
for i, (p, s_, u) in enumerate(seq):
    b = p >> 1
    if i == 32 - 5: A("s_barrier")
    nxt = i + 5 < 64
    A(f"s_waitcnt lgkmcnt({4 if nxt else 63 - i})")
    vw = VWS + 32*s_ + 16*b + 4*u
    c = "0" if (s_ == 0 and u == 0) else v(OACC[p], 16)
    A(f"{MF} {v(OACC[p],16)}, {v(vw,4)}, {v(PF[i%6],4)}, {c}")
    if nxt: p_rd(i + 5)
    if i < 8:
        for (t, k) in rest[3*i:3*i+3]: A(f"v_cvt_pk_bf16_f32 v{VWS+96+8*t+k}, v{ACC+16*t+2*k}, v{ACC+16*t+2*k+1}")
    if p > 0 and s_ == 1 and u == 0: fin(p - 1); vmq += [f"D{p-1}"]*2
    if "latepoll" in opts and i == int(opts["latepoll"]): A("s_barrier")
    for fp, at in ((0, F0AT), (1, F1AT)):
        if i == at:
            last = len(vmq) - 1 - vmq[::-1].index(f"D{fp}"); flag(fp, len(vmq) - 1 - last); vmq.append(f"F{fp}")
A("s_nop 11")
fin(3); vmq += ["D3"]*2
stamp(34)
for fp in range(4):
    if f"F{fp}" in vmq: continue
    last = len(vmq) - 1 - vmq[::-1].index(f"D{fp}"); flag(fp, len(vmq) - 1 - last); vmq.append(f"F{fp}")
if STAMP:
    stamp(35)
    A("s_cmp_lg_u32 s3, 0\ns_cbranch_scc1 L_end")
    stamp_flush(32, 40)
A("L_end:")
A("s_endpgm")
A("L_codeend:")

out = HEADER
out += "; @launch grid=(256,1,1) block=(512,1,1) lds=163840\n"
out += f'.amdgcn_target "amdgcn-amd-amdhsa--gfx950"\n.text\n.globl {KN}\n.type {KN},@function\n' + A.text()
out += '.section .rodata,"a"\n' + kd(KN, 256)
open(sys.argv[1], "w").write(out)
```

```python
import sys, math, struct
from collections import defaultdict
from common import *
opts = dict(a.split("=") if "=" in a else (a, "1") for a in sys.argv[2:])
def oi(k, d): return int(opts.get(k, d))
STAMP = "stamp" in opts
NTK = "" if "nont" in opts else "nt"
MF = "v_mfma_f32_16x16x32_bf16"
KN = NAME + "_kernel"
WS_P, WS_PART, WS_FLAG, WS_STAMP = 0, 0x400000, 0xC00000, 0x9000000
SPIN = 1 << 18
K1 = 1024
SSET = set(opts["sset"].split(",")) if "sset" in opts else None

U = lambda u: (u * 16 * K1, 16 * K1)
LOC = {}
def place(prefix, i0, units):
    for i, u in enumerate(units): LOC[f"{prefix}{i0+i}"] = U(u)
place("X", 0, [int(c) for c in opts.get("xu", "01230123")])
place("W", 0, [int(c) for c in opts.get("wu", "45674567")])
place("V", 0, [int(c) for c in opts.get("vu", "01289012")])
place("U", 0, [int(c) for c in opts.get("uu", "45674567")])
LOC["K0"], LOC["K1"] = U(8), U(9)
LOC["P0"] = LOC["X7"]
place("P", 1, [int(c) for c in opts.get("pu", "894")])
FIN = LOC["P0"][0]

C = Asm()
bars = []; first, free = {}, {}
q = []; pend = set(); dsn = [0]
def _ret(n):
    while len(q) > n:
        it = q.pop(0)[1]
        if it: pend.add(it)
def ds(ins, item=None):
    lim = 13 if STAMP else 15
    if len(q) >= lim: C(f"s_waitcnt lgkmcnt({lim-1})"); _ret(lim - 1)
    C(ins); dsn[0] += 1; q.append((dsn[0], item))
    if item:
        if item not in first: first[item] = len(bars) - 1
        free.pop(item, None)
    return dsn[0]
def need(*ids):
    pos = [k for k, (i, _) in enumerate(q) if i in ids]
    if pos:
        n = len(q) - 1 - max(pos); C(f"s_waitcnt lgkmcnt({n})"); _ret(n)
def drain():
    if q: C("s_waitcnt lgkmcnt(0)"); _ret(0)
def bar(name):
    bars.append(name); C("s_barrier"); cstamp(name)
    live = {it for _, it in q}
    for it in list(pend):
        if it not in live: free[it] = len(bars) - 1; pend.discard(it)
cst = []; CREG = list(range(32, 56, 2)) + [60, 62, 92, 94]
def cstamp(name):
    if STAMP and SSET is not None and name in SSET:
        i = len(cst); cst.append(name); assert i < 16
        if len(q) > 12: C("s_waitcnt lgkmcnt(12)"); _ret(12)
        C(f"s_mem{'real' if 'rt' in opts else ''}time s[{CREG[i]}:{CREG[i]+1}]")
I = lambda x: (lambda: C(x))

VX, VW, LIN0, VOWN = 4, 8, 16, 17
TM = 18
ACC, BR0, PR, VWS = 24, 88, 112, 128
BR = [BR0 + 4*i for i in range(6)]
QB, SC, PB, VK = VWS + 96, VWS + 64, VWS + 48, VWS + 32
C("L_compute:")
C(f"s_setprio {oi('prio', 0)}")
srd_consts(C, [SWS])
C(f"""v_and_b32 v1, 15, v0
v_lshrrev_b32 v2, 4, v0
v_bfe_u32 v3, v0, 1, 3
v_xor_b32 v3, v3, v2
v_lshlrev_b32 v3, 4, v3
v_lshl_add_u32 v3, v1, 7, v3
s_lshl_b32 s70, s3, 12
v_add_u32 v{VX}, s70, v3
v_xor_b32 v{VX+1}, 64, v{VX}
v_add_u32 v{VX+2}, 0x20000, v3
v_xor_b32 v{VX+3}, 64, v{VX+2}
v_lshrrev_b32 v3, 1, v2
v_xor_b32 v3, v3, v1
v_lshlrev_b32 v3, 4, v3
v_lshl_add_u32 v3, v1, 8, v3
v_and_b32 v18, 1, v2
v_lshl_add_u32 v3, v18, 3, v3
s_lshr_b32 s13, s3, 1
s_lshl_b32 s13, s13, 14
s_add_u32 s13, s13, 0x20000
v_add_u32 v{VK}, s13, v3
v_lshlrev_b32 v{LIN0}, 4, v0
v_add_u32 v{VOWN}, s70, v{LIN0}
v_bfe_u32 v1, v0, 2, 2
v_and_b32 v3, 3, v0
v_lshlrev_b32 v3, 3, v3
v_lshl_add_u32 v19, v18, 2, v1
v_lshl_add_u32 v20, v2, 3, v1
v_lshlrev_b32 v20, 8, v20
v_lshl_add_u32 v20, v19, 5, v20
v_add_u32 v20, v20, v3
v_add_u32 v{VW}, 0x10000, v20""")
for i in range(1, 8): C(f"v_xor_b32 v{VW+i}, {i*32}, v{VW}\nv_xor_b32 v{VK+i}, {i*32}, v{VK}")
C(f"""s_lshl_b32 s13, s11, 2
s_add_u32 s13, s13, s9
s_lshl_b32 s13, s13, 3
s_add_u32 s13, s13, s4
s_lshl_b32 s65, s13, 15
s_lshl_b32 s14, s3, 13
s_add_u32 s65, s65, s14
s_lshl_b32 s66, s13, 8
s_lshl_b32 s14, s3, 5
s_add_u32 s66, s66, s14""")
for p in range(7):
    C(f"s_xor_b32 s13, s65, {(7-p) << 15}\ns_add_u32 s{80+p}, s13, {WS_PART + p*1024}")
    C(f"s_xor_b32 s13, s66, {(7-p) << 8}\ns_add_u32 s{72+p}, s13, {WS_FLAG + p*4}")
C(f"""s_lshl_b32 s13, s11, 3
s_add_u32 s13, s13, s4
s_lshl_b32 s64, s13, 16
s_lshl_b32 s14, s8, 14
s_add_u32 s64, s64, s14
s_add_u32 s64, s64, {WS_P}
s_lshl_b32 s67, s11, 13
s_lshl_b32 s14, s4, 8
s_add_u32 s67, s67, s14
s_lshl_b32 s14, s8, 4
s_add_u32 s67, s67, s14
s_lshl_b32 s14, s3, 2
s_add_u32 s67, s67, s14
s_add_u32 s67, s67, {WS_FLAG + 128}""")
cs = struct.unpack("<I", struct.pack("<f", math.log2(math.e) / math.sqrt(128)))[0]
C(f"s_mov_b32 s68, {hex(cs)}\ns_mov_b32 s69, {hex(cs)}\ns_lshl_b32 s71, s3, 6")
C("s_waitcnt lgkmcnt(0)")
srd_ptrs(C, [SWS])

WP = oi('wp', 0)
class Stream:
    def __init__(s_): s_.e = []; s_.fill = defaultdict(list); s_.before = defaultdict(list); s_.id = defaultdict(list); s_.hold = {}
    def rd(s_, m, k): s_.id[m].append(s_.e[m][0][k](BR[m % 6]))
    def prologue(s_, lo):
        for m in range(lo, lo + 6):
            for k in range(len(s_.e[m][0])): s_.rd(m, k)
    def run(s_, lo, hi, stop):
        for m in range(lo, hi):
            for f in s_.before.pop(m, []): f()
            cstamp(f'e{m}')
            assert len(s_.id[m]) == len(s_.e[m][0]), m
            for hh in range(2):
                a_, b_, d, fst, deps = s_.e[m][1][hh ^ (m & 1)]
                extra = s_.id[m+1] if (WP and m % 2 == 0 and m + 1 < hi and m > lo) else []
                need(*s_.id[m], *extra, *deps())
                R = v(BR[m % 6], 4)
                C(f"{MF} {v(d,4)}, {R if a_ is None else v(a_,4)}, {R if b_ is None else v(b_,4)}, {'0' if fst else v(d,4)}")
                if hh == 0 and m > lo and m + 5 < stop and len(s_.e[m+5][0]) == 2: s_.rd(m + 5, 1)
                if hh == 1 and m + 6 < stop: s_.rd(m + 6, 0)
                for f in s_.fill.pop(2*m + hh, []): f()
S = Stream(); pid = {}
def xaddr(a, ss): return (VX + ss + (2 if a >= 128*K1 else 0), a % 65536)
def x_rd(n, qt):
    it = f"X{n//2}"; r, o = xaddr(LOC[it][0], n & 1); assert LOC[it][0] < 65536
    return lambda: pid.__setitem__(("x", n, qt), ds(f"ds_read_b128 {v(PR+8*(n&1)+4*qt,4)}, v{r} offset:{o + qt*2048}", it))
for n in range(16):
    for mt in range(8):
        it = f"W{n//2}"
        rds = [lambda r, it=it, n=n, mt=mt, e=e: ds(f"ds_read_b64_tr_b16 {v(r+2*e,2)}, v{VW + (mt ^ (4*e))} offset:{LOC[it][0]-65536 + (n&1)*8192 + e*1024}", it) for e in range(2)]
        S.e.append((rds, [(None, PR + 8*(n&1) + 4*qt, ACC + 8*mt + 4*qt, n == 0, lambda n=n, qt=qt: [pid[("x", n, qt)]]) for qt in range(2)]))
    if n < 15:
        for qt in range(2): S.fill[2*(8*n + 2 + 2*qt)].append(x_rd(n + 1, qt))
    if n & 1 and n < 15: S.before[8*n + 2].append(lambda n=n: bar(f"B{(n+1)//2}"))
if oi("bk", 0): S.before[122].append(lambda: bar("BK"))
qk = [(kt, s_) for s_ in range(4) for kt in range(4)]
for kt, s_ in qk:
    rds = [lambda r, kt=kt, s_=s_, e=e: ds(f"ds_read_b64{'_tr_b16' if 'ktr' in opts else ''} {v(r+2*e,2)}, v{VK + 2*s_ + e} offset:{kt*4096}", "K") for e in range(2)]
    S.e.append((rds, [(None, QB + 16*qt + 4*s_, SC + 16*qt + 4*kt, s_ == 0, lambda: []) for qt in range(2)]))
for mt in range(8):
    for k, (qt, i) in enumerate([(0, 0), (0, 1), (1, 0), (1, 1)]):
        if "nocvt" not in opts: S.fill[2*123 + 4*mt + k].append(I(f"v_cvt_pk_bf16_f32 v{QB+16*qt+2*mt+i}, v{ACC+8*mt+4*qt+2*i}, v{ACC+8*mt+4*qt+2*i+1}"))
adr = [f"v_subrev_u32 v{VX+k}, s70, v{VX+k}" for k in range(2)] + [f"v_xor_b32 v{VW+k}, s71, v{VW+k}" for k in (0, 1, 4, 5)]
for k, x in enumerate(adr): S.fill[2*139 + k].append(I(x))
M = lambda qt: TM + 2*qt
E2 = 144
def u_rd(n, k):
    it = f"U{n//2}"; nt, e = k >> 1, k & 1
    return lambda: pid.__setitem__(("u", n, k), ds(f"ds_read_b64_tr_b16 {v(PR+8*(n&1)+4*nt+2*e,2)}, v{VW + (nt ^ (4*e))} offset:{LOC[it][0]-65536 + (n&1)*8192 + e*1024}", it))
def vwreg(s_, b, u, nt): return VWS + 32*s_ + 16*b + 8*u + 4*nt
for n in range(16):
    for rt in range(8):
        it = f"V{n//2}"; r0, o = xaddr(LOC[it][0], n & 1)
        rds = [lambda r, it=it, r0=r0, o=o, rt=rt: ds(f"ds_read_b128 {v(r,4)}, v{r0} offset:{o + rt*2048}", it)]
        S.e.append((rds, [(None, PR + 8*(n&1) + 4*nt, ACC + 8*rt + 4*nt, n % 4 == 0, lambda n=n, nt=nt: [pid[("u", n, 2*nt)], pid[("u", n, 2*nt+1)]]) for nt in range(2)]))
    if n < 15:
        for k in range(4): S.fill[2*(E2 + 8*n + 2 + k)].append(u_rd(n + 1, k))
    if n & 1 and n < 15: S.before[E2 + 8*n + 2].append(lambda n=n: bar(f"B{8 + (n+1)//2}"))
    if n % 4 == 3:
        for rt in range(8):
            for k, (nt, i) in enumerate([(0, 0), (0, 1), (1, 0), (1, 1)]):
                S.fill[2*(E2 + 8*n + rt + 4) + (k >> 1)].append(I(f"v_cvt_pk_bf16_f32 v{vwreg(n//4, rt>>2, (rt>>1)&1, nt)+2*(rt&1)+i}, v{ACC+8*rt+4*nt+2*i}, v{ACC+8*rt+4*nt+2*i+1}"))
E3 = 272
LW = {0: LIN0, 1: VW + 2, 2: VW + 3}
S.fill[2*(E2 + 4)+1].append(I(f"v_add_u32 v{LW[1]}, 0x10000, v{LIN0}")); S.fill[2*(E2 + 5)+1].append(I(f"v_add_u32 v{LW[2]}, 0x20000, v{LIN0}"))
VZ, V1 = VW + 6, VW + 7
S.fill[2*(E2 + 6)+1].append(I(f"v_mov_b32 v{VZ}, 0")); S.fill[2*(E2 + 7)+1].append(I(f"v_mov_b32 v{V1}, -1"))
for p in range(8):
    for s_ in range(4):
        for u in range(2):
            it = f"P{s_}" + ("" if s_ == 0 else "ab"[p >> 2]); a = LOC[f"P{s_}"][0] + p*2048 + u*1024
            rds = [lambda r, it=it, a=a: ds(f"ds_read_b128 {v(r,4)}, v{LW[a // 65536]} offset:{a % 65536}", it)]
            S.e.append((rds, [(vwreg(s_, p >> 2, u, nt), None, ACC + 8*p + 4*nt, s_ == 0 and u == 0, lambda: []) for nt in range(2)]))
for s_ in range(1, 4):
    for hf in range(2): LOC[f"P{s_}{'ab'[hf]}"] = (LOC[f"P{s_}"][0] + hf*8192, 8192)
S.before[E3 - 4].append(lambda: bar("Pa")); S.before[E3 + 32 - 4].append(lambda: bar("Pb"))
vmq = []
def flag(p):
    C(f"s_waitcnt vmcnt({len(vmq) - 1 - vmq.index(f'D{p}')})\ns_mov_b64 exec, 1")
    C(f"buffer_store_dword v{V1}, v{VZ}, s[{SWS}:{SWS+3}], s{72+p} offen sc1\ns_mov_b64 exec, -1"); vmq.append(f"F{p}")
FLAG_LAG = oi("flag", 4)
for p in range(7):
    g0 = 2*(E3 + 8*(p+1) + 2); r = PR + 4*(p & 3)
    for i in range(4): S.fill[g0 + 1 + (i >> 1)].append(I(f"v_cvt_pk_bf16_f32 v{r+i}, v{ACC+8*p+2*i}, v{ACC+8*p+2*i+1}"))
    S.fill[g0 + 4].append(lambda p=p, r=r: (C(f"buffer_store_dwordx4 {v(r,4)}, v{LIN0}, s[{SWS}:{SWS+3}], s{80+p} offen sc1"), vmq.append(f"D{p}")))
    if p >= FLAG_LAG: S.fill[g0 + 10].append(lambda p=p: flag(p - FLAG_LAG))

bar("B0"); C("s_waitcnt vmcnt(0)")
x_rd(0, 0)(); x_rd(0, 1)(); S.prologue(0)
S.run(0, E2, E2)
cstamp("qk")
if oi("bq", 0): bar("BQ")
C("s_nop 2")
for qt in range(2): C(f"v_max3_f32 v{M(qt)}, v{SC+16*qt}, v{SC+16*qt+1}, v{SC+16*qt+2}")
for i in range(3, 15, 2):
    for qt in range(2): C(f"v_max3_f32 v{M(qt)}, v{M(qt)}, v{SC+16*qt+i}, v{SC+16*qt+i+1}")
for qt in range(2): C(f"v_max_f32 v{M(qt)}, v{M(qt)}, v{SC+16*qt+15}")
def xred(op, fin, fill):
    a_, b_ = M(0), M(1)
    def gap(n):
        for _ in range(n): fill.pop(0)() if fill else C("s_nop 0")
    gap(2); C(f"v_permlane32_swap_b32 v{a_}, v{b_}\n{op} v{a_}, v{a_}, v{b_}\nv_mov_b32 v{b_}, v{a_}")
    gap(2); C(f"v_permlane16_swap_b32 v{a_}, v{b_}\n{op} v{a_}, v{a_}, v{b_}\n{fin[0]}\n{fin[1]}")
    gap(2); C(f"v_permlane32_swap_b32 v{a_}, v{b_}")
xred("v_max_f32", [f"v_mul_f32 v{M(1)}, s68, v{M(0)}", f"v_mul_f32 v{M(0)}, s68, v{M(0)}"], [])
pkf = lambda i: f"v_pk_fma_f32 {v(SC+2*i,2)}, {v(SC+2*i,2)}, s[68:69], {v(M(i>>3),2)} op_sel_hi:[1,1,0] neg_lo:[0,0,1] neg_hi:[0,0,1]"
SM = [TM + 4, 2]
C(pkf(0))
for i in range(16):
    C(f"v_exp_f32 v{SC+2*i}, v{SC+2*i}")
    if i < 15: C(pkf(i + 1))
    C(f"v_exp_f32 v{SC+2*i+1}, v{SC+2*i+1}")
    j = i - 1
    if j >= 0 and j % 8: C(f"v_pk_add_f32 {v(SM[j>>3],2)}, {v(SM[j>>3],2) if j % 8 > 1 else v(SC+2*j-2,2)}, {v(SC+2*j,2)}")
C(f"v_add_f32 v{M(0)}, v{SM[0]}, v{SM[0]+1}\nv_pk_add_f32 {v(SM[1],2)}, {v(SM[1],2)}, {v(SC+30,2)}\nv_add_f32 v{M(1)}, v{SM[1]}, v{SM[1]+1}")
EARLY8 = oi("early8", 0)
pro = []
if EARLY8:
    bar("B8")
    pro = [u_rd(0, k) for k in range(4)] + [lambda m=m: S.rd(m, 0) for m in range(E2, E2 + 6)]
xred("v_add_f32", [f"v_rcp_f32 v{M(1)}, v{M(0)}", f"v_rcp_f32 v{M(0)}, v{M(0)}"], pro)
for f in pro: f()
cstamp("x2")
LATEW = oi("latew", 0)
wr = {}
for qt in range(2):
    for u in range(2):
        for i in range(8*u, 8*u + 8, 2): C(f"v_pk_mul_f32 {v(SC+16*qt+i,2)}, {v(SC+16*qt+i,2)}, {v(M(qt),2)} op_sel_hi:[1,0]")
        for i in range(4): C(f"v_cvt_pk_bf16_f32 v{PB+8*qt+4*u+i}, v{SC+16*qt+8*u+2*i}, v{SC+16*qt+8*u+2*i+1}")
        wf = lambda qt=qt, u=u: wr.__setitem__("l", ds(f"ds_write_b128 v{VOWN}, {v(PB+8*qt+4*u,4)} offset:{LOC['P0'][0] + qt*2048 + u*1024}"))
        if LATEW: S.fill[2*(E2 + LATEW + oi("lwd", 8)*(2*qt + u))].append(wf)
        else: wf()
        cstamp(f"w{2*qt+u}")
cstamp("sm")
if EARLY8: S.before[E2 + (74 if LATEW else 10)].insert(0, lambda: need(wr['l']))
else:
    drain(); bar("B8")
    for k in range(4): u_rd(0, k)()
    S.prologue(E2)
PUBC = oi("pubc", 0)
if PUBC:
    for t in range(4):
        S.fill[2*(E2 + PUBC + oi("pubd", 4)*t)].append(I(f"buffer_store_dwordx4 {v(PB+4*t,4)}, v{VOWN}, s[{SWS}:{SWS+3}], s64 offen offset:{t*1024} sc1"))
    S.fill[2*(E2 + oi("flgc", 64))].append(I(f"s_waitcnt vmcnt(0)\ns_mov_b64 exec, 15\nbuffer_store_dword v{V1}, v1, s[{SWS}:{SWS+3}], s67 offen sc1\ns_mov_b64 exec, -1"))
    S.fill[2*(E2 + 8) + 1].append(I("v_lshlrev_b32 v1, 11, v0"))
S.run(E2, len(S.e), len(S.e))
assert not S.fill and not S.before, (dict(S.fill), dict(S.before))
cstamp("T")
C("s_nop 6")
OWNP = LOC["U7"][0]
C(f"v_add_u32 v1, s70, v{LW[OWNP // 65536]}")
for nt in range(2): ds(f"ds_write_b128 v1, {v(ACC+56+4*nt,4)} offset:{OWNP % 65536 + nt*1024}")
for p in range(7):
    if f"F{p}" not in vmq: flag(p)
cstamp("fl")
drain(); bar("Z")
assert free["U7"] <= bars.index("Pb")
if STAMP:
    C("s_cmp_lg_u32 s3, 0\ns_cbranch_scc1 L_end")
    C(f"s_lshl_b32 s13, s2, 9\ns_add_u32 s13, s13, {hex(WS_STAMP + 48*8)}")
    for i in range(len(cst)):
        C(f"s_waitcnt lgkmcnt(0)\nv_mov_b32 v2, s{CREG[i]}\nv_mov_b32 v3, s{CREG[i]}\nbuffer_store_dwordx2 v[2:3], v{VZ}, s[{SWS}:{SWS+3}], s13 offen offset:{8*i}")
C("L_end:"); C("s_endpgm")
for k in ("K0", "K1"): first[k], free[k] = first["K"], free["K"]
del first["K"], free["K"], first["P0"]
free["X7"] = 999

A = Asm()
lst = []
def stamp(name):
    if STAMP and (SSET is None or ("L" + name) in SSET):
        if name not in lst: lst.append(name)
        i = lst.index(name) + 1; i += (i >= 30); assert i < 48
        A(f"s_memtime s[98:99]\ns_memrealtime s[96:97]\ns_waitcnt lgkmcnt(0)\nv_writelane_b32 v254, s98, {i}\nv_writelane_b32 v255, s96, {i}")
A(".p2align 8"); A(f"{KN}:")
A("s_cmp_ge_u32 s2, 256\ns_cbranch_scc1 L_end")
A("s_load_dwordx16 s[16:31], s[0:1], 0")
if STAMP: A("s_memtime s[94:95]\ns_memrealtime s[92:93]")
A(f"""v_lshrrev_b32 v1, 6, v0
v_and_b32 v0, 63, v0
v_readfirstlane_b32 s3, v1
s_and_b32 s4, s2, 7
s_lshr_b32 s5, s2, 3
s_and_b32 s8, s5, 3
s_lshr_b32 s11, s5, 2
s_add_u32 s9, s8, s11
s_and_b32 s9, s9, 3""")
NPF = oi("npf", 13)
A("s_getpc_b64 s[6:7]")
A("L_pc:")
A(f"s_lshl_b32 s13, s8, 3\ns_add_u32 s13, s13, s3\ns_mul_i32 s13, s13, {NPF}*64")
A(f"v_min_u32 v1, {NPF-1}, v0\nv_lshlrev_b32 v1, 6, v1\nv_add_u32 v1, s13, v1")
A(f"v_min_u32 v1, L_codeend-L_pc-4, v1")
A("global_load_dword v130, v1, s[6:7]")
A("s_cmp_lt_u32 s3, 4\ns_cbranch_scc1 L_compute")
if "lprio" in opts: A(f"s_setprio {opts['lprio']}")
srd_consts(A, [SX, SWQ, SWS])
A(f"""s_sub_u32 s3, s3, 4
s_lshl_b32 s10, s4, 2
s_add_u32 s10, s10, s8
s_lshl_b32 s12, s8, 1
s_add_u32 s12, s12, s11
v_lshrrev_b32 v1, 3, v0
v_lshrrev_b32 v2, 4, v0
v_and_b32 v3, 7, v0
v_and_b32 v4, 15, v0
s_and_b32 s13, s3, 1
s_lshl_b32 s14, s13, 2
v_add_u32 v5, s14, v2
v_xor_b32 v5, v5, v3
v_lshlrev_b32 v5, 4, v5
s_lshl_b32 s14, s3, 3
v_add_u32 v6, s14, v1
v_lshl_add_u32 v11, v6, 8, v5
v_lshl_add_u32 v8, v6, 10, v5
s_xor_b32 s74, s4, 7
s_and_b32 s14, s74, 1
s_lshl_b32 s14, s14, 14
v_xor_b32 v8, s14, v8
s_lshr_b32 s14, s3, 1
s_xor_b32 s13, s13, s14
s_lshl_b32 s13, s13, 3
v_lshl_add_u32 v5, v2, 1, s13
v_xor_b32 v5, v5, v4
v_lshlrev_b32 v5, 4, v5
s_lshl_b32 s13, s3, 2
v_add_u32 v6, s13, v2
v_lshl_add_u32 v9, v6, 13, v5
s_lshl_b32 s64, s11, 17
s_lshr_b32 s13, s74, 1
s_lshl_b32 s13, s13, 15
s_add_u32 s64, s64, s13
s_lshl_b32 s65, s10, 8
s_lshl_b32 s67, s3, 10
s_lshl_b32 s13, s11, 13
s_lshl_b32 s14, s4, 8
s_add_u32 s13, s13, s14
s_add_u32 s79, s13, {WS_FLAG}
s_lshl_b32 s14, s9, 11
s_add_u32 s77, s79, s14
v_mov_b32 v17, 0
s_waitcnt lgkmcnt(0)""")
srd_ptrs(A, [SX, SWQ, SWS])
if STAMP: A("v_mov_b32 v254, -1\nv_mov_b32 v255, -1\nv_writelane_b32 v254, s94, 0\nv_writelane_b32 v255, s92, 0\ns_getreg_b32 s92, hwreg(HW_REG_XCC_ID)\ns_and_b32 s92, s92, 7\nv_writelane_b32 v254, s92, 30")
stamp("go")
def late_setup():
    srd_consts(A, [SK, SV, SWO, SOUT, SDBG]); srd_ptrs(A, [SK, SV, SWO, SOUT, SDBG])
    A(f"""v_lshl_add_u32 v12, v6, 10, v5
v_xor_b32 v5, v6, v4
v_lshlrev_b32 v5, 4, v5
v_lshl_add_u32 v10, v6, 8, v5
v_lshlrev_b32 v13, 4, v0
s_lshl_b32 s69, s11, 20
s_lshr_b32 s13, s74, 2
s_lshl_b32 s13, s13, 19
s_add_u32 s69, s69, s13
s_lshl_b32 s13, s10, 14
s_add_u32 s66, s69, s13
s_lshl_b32 s13, s4, 16
s_add_u32 s69, s69, s13
s_lshl_b32 s70, s4, 19
s_lshl_b32 s13, s9, 8
s_add_u32 s70, s70, s13
s_lshr_b32 s71, s11, 2
s_lshl_b32 s72, s11, 3
s_add_u32 s72, s72, s4
s_lshl_b32 s73, s72, 16
s_add_u32 s73, s73, {WS_P}
s_lshl_b32 s13, s3, 12
v_add_u32 v14, s13, v13
s_lshl_b32 s14, s8, 4
s_add_u32 s79, s79, s14
s_lshl_b32 s14, s3, 2
s_add_u32 s79, s79, s14
v_lshlrev_b32 v7, 11, v0
v_mov_b32 v15, -1
v_lshlrev_b32 v19, 2, v3
s_lshl_b32 s13, s11, 5
v_add_u32 v19, s13, v19
s_mov_b32 s76, 0""")
def load_ops(it):
    k, a = it[0], LOC[it][0]; i = int(it[1])
    def dma(vo, srd, soff, lds, fl=""): return f"s_add_u32 m0, s67, {lds}\n{soff}\nbuffer_load_dwordx4 v{vo}, s[{srd}:{srd+3}], s68 offen {fl} lds"
    if "dry" in opts and not (k in "XW" and i < 4) and k != "K": return "", []
    if k == "X":
        return (f"s_add_u32 s13, s12, {i}\ns_and_b32 s13, s13, 7\ns_lshl_b32 s14, s13, 7\ns_add_u32 s14, s14, s64",
                [dma(8, SX, f"s_xor_b32 s68, s14, {hex(qq*0x8000)}", a + qq*4096) for qq in range(4)])
    if k == "W":
        return (f"s_add_u32 s13, s12, {i}\ns_and_b32 s13, s13, 7\ns_lshl_b32 s15, s13, 19\ns_add_u32 s15, s15, s65",
                [dma(9, SWQ, f"s_add_u32 s68, s15, {qq*16*8192}", a + qq*4096) for qq in range(4)])
    if k == "K":
        return ("", [dma(10, SK, f"s_xor_b32 s68, s66, {hex(qq*4096 + i*0x80000)}", a + qq*4096, NTK) for qq in range(4)])
    hd = f"s_add_u32 s13, s8, {i>>1}\ns_and_b32 s13, s13, 3\ns_xor_b32 s75, s71, {i&1}\n"
    if k == "V":
        return (hd + "s_lshl_b32 s13, s13, 14\ns_lshl_b32 s75, s75, 7\ns_add_u32 s14, s13, s75\ns_add_u32 s14, s14, s69",
                [dma(11, SV, f"s_xor_b32 s68, s14, {hex((qq&1)*8192 + (qq>>1)*0x80000)}", a + qq*4096) for qq in range(4)])
    if k == "U":
        return (hd + "s_lshl_b32 s13, s13, 17\ns_lshl_b32 s75, s75, 16\ns_add_u32 s15, s13, s75\ns_add_u32 s15, s15, s70",
                [dma(12, SWO, f"s_add_u32 s68, s15, {qq*16*1024}", a + qq*4096) for qq in range(4)])
    return (f"s_add_u32 s13, s8, {i}\ns_and_b32 s13, s13, 3\ns_lshl_b32 s13, s13, 14\ns_add_u32 s15, s13, s73\ns_add_u32 s15, s15, s67",
            [dma(13, SWS, f"s_add_u32 s68, s15, {'ab'.index(it[2])*8192 + qq*4096}", a + qq*4096, "sc1") for qq in range(2)])
lbl = [0]
class Loader:
    def __init__(s_): s_.n = 0; s_.last = {}; s_.cur = -1; s_.occ = []; s_.done = set()
    def copy(s_):
        o = Loader(); o.__dict__.update({k: (x.copy() if hasattr(x, "copy") else x) for k, x in s_.__dict__.items()}); return o
    def wait(s_, names): A(f"s_waitcnt vmcnt({min(s_.n - 1 - max(s_.last[i] for i in names), 63)})")
    def claim(s_, x):
        lo, hi = LOC[x][0], LOC[x][0] + LOC[x][1]
        for (a_, b_, it) in s_.occ:
            if a_ < hi and lo < b_: assert free[it] <= s_.cur, f"WAR: {x} after {bars[s_.cur]} but {it} free at {free[it]}"
        s_.occ = [o for o in s_.occ if not (o[0] >= lo and o[1] <= hi)] + [(lo, hi, x)]
        if x[0] == "P": assert "pw" in s_.done
    def step(s_, x):
        s_.done.add(x)
        if x == "setup": late_setup()
        elif x in bars:
            s_.cur += 1; assert bars[s_.cur] == x, (x, bars[s_.cur])
            nd = [i for i, f in first.items() if f == s_.cur]
            if nd: s_.wait(nd)
            A("s_barrier"); stamp(x)
        elif x == "clr":
            lbl[0] += 1; s_.last["clr"] = s_.n - 1
            A(f"s_cmp_lg_u32 s3, 0\ns_cbranch_scc1 L_k{lbl[0]}\nv_lshlrev_b32 v1, 2, v0\nbuffer_store_dword v17, v1, s[{SWS}:{SWS+3}], s77 offen sc1"); A(f"L_k{lbl[0]}:")
        elif x == "atm":
            lbl[0] += 1
            A(f"s_cmp_lg_u32 s3, 0\ns_cbranch_scc1 L_k{lbl[0]}"); s_.wait(["clr"])
            A(f"s_lshl_b32 s13, s72, 2\nv_mov_b32 v2, 1\ns_mov_b64 exec, 1\nbuffer_atomic_add v2, v17, s[{SDBG}:{SDBG+3}], s13 offen\ns_mov_b64 exec, -1"); A(f"L_k{lbl[0]}:")
        elif x == "ci":
            A(f"buffer_load_dword v20, v19, s[{SDBG}:{SDBG+3}], 0 offen sc1"); s_.last["ci"] = s_.n; s_.n += 1
        elif x == "cw":
            assert s_.cur < bars.index("B10")
            lbl[0] += 1; k = lbl[0]; s_.wait(["ci"])
            A(f"v_cmp_gt_u32 vcc, 4, v20\ns_cbranch_vccz L_lr{k}"); A(f"L_ll{k}:")
            A(f"s_sleep 8\nbuffer_load_dword v20, v19, s[{SDBG}:{SDBG+3}], 0 offen sc1\ns_add_u32 s76, s76, 1\ns_waitcnt vmcnt(0)\ns_cmp_ge_u32 s76, {SPIN}\ns_cbranch_scc1 L_lr{k}\nv_cmp_gt_u32 vcc, 4, v20\ns_cbranch_vccnz L_ll{k}")
            A(f"L_lr{k}:")
        elif x == "pr":
            assert s_.cur >= bars.index("B9" if EARLY8 else "B8")
            for t in range(4): A(f"ds_read_b128 {v(32+4*t,4)}, v14 offset:{LOC['P0'][0] + t*1024}")
        elif x == "pub":
            assert "pr" in s_.done
            A(f"s_lshl_b32 s13, s8, 14\ns_add_u32 s68, s13, s73\ns_waitcnt lgkmcnt(0)")
            for t in range(4): A(f"buffer_store_dwordx4 {v(32+4*t,4)}, v14, s[{SWS}:{SWS+3}], s68 offen offset:{t*1024} sc1")
            s_.n += 4; s_.last["pub"] = s_.n - 1
        elif x == "flg":
            assert "cw" in s_.done; s_.wait(["pub"])
            A(f"s_mov_b64 exec, 15\nbuffer_store_dword v15, v7, s[{SWS}:{SWS+3}], s79 offen offset:128 sc1\ns_mov_b64 exec, -1"); s_.n += 1; stamp(x)
        elif x == "pi": A(f"s_add_u32 s78, s77, 128\ns_load_dwordx16 s[80:95], s[30:31], s78 glc")
        elif x == "pw":
            assert PUBC or "flg" in s_.done; lbl[0] += 1; k = lbl[0]
            red = "".join(f"s_and_b64 s[80:81], s[80:81], s[{i}:{i+1}]\n" for i in range(82, 96, 2)) + "s_and_b32 s80, s80, s81\n"
            A(f"s_waitcnt lgkmcnt(0)\n{red}s_cbranch_scc1 L_lr{k}"); A(f"L_ll{k}:")
            A(f"s_load_dwordx16 s[80:95], s[30:31], s78 glc\ns_add_u32 s76, s76, 1\ns_waitcnt lgkmcnt(0)\ns_cmp_ge_u32 s76, {SPIN}\ns_cbranch_scc1 L_lr{k}\n{red}s_cbranch_scc0 L_ll{k}")
            A(f"L_lr{k}:"); stamp(x)
        else:
            its = [f"X{x[1:]}", f"W{x[1:]}"] if x[0] == "S" and int(x[1:]) < 8 else [f"V{int(x[1:])-8}", f"U{int(x[1:])-8}"] if x[0] == "S" else [x]
            ops = []
            for it in its: s_.claim(it); st, o = load_ops(it); A(st); ops.append(o)
            for k in range(4):
                for it, o in zip(its, ops):
                    if k < len(o): A(o[k]); s_.n += 1
            for it in its: s_.last[it] = s_.n - 1
    def sigof(s_): return (s_.cur, tuple(sorted((i, min(s_.n - k, 64)) for i, k in s_.last.items() if first.get(i, -1) > s_.cur or (i in ("ci", "pub") )or (i == "clr" and "atm" not in s_.done))), tuple(sorted(s_.occ)), tuple(sorted(s_.done)))

DEF = ("clr S0 setup S1 B0 S2 B1 0:atm 0:K0 0:K1 S3 B2 S4 B3 S5 B4 1:atm 1:K0 1:K1 S6 B5 S7 B6 S8 B7 S9 ci B8 pr S10 cw pub B9 S11 B10 S12 B11 flg S13 B12 S14 B13 pi S15 B14 pw "
       "P1a P2a P3a B15 P1b P2b P3b Pa Pb")
sched = opts.get("sched", DEF).replace("_", " ").split()
if PUBC: sched = [x for x in sched if x not in ("pr", "pub", "flg")]
NG = len({x.split(":")[0] for x in sched if ":" in x})
L0 = Loader()
k0 = min([i for i, x in enumerate(sched) if ":" in x] + [len(sched)])
for i in range(k0): L0.step(sched[i])
k1 = max([i for i, x in enumerate(sched) if ":" in x] + [k0 - 1]) + 1
def rung(gi, hi):
    Lg = L0.copy()
    for x in sched[k0:hi]:
        if ":" not in x or int(x.split(":")[0]) == gi: Lg.step(x.split(":")[-1])
    return Lg
Lg = L0
if NG:
    pb = oi("parbit", 2)
    A({2: f"s_bfe_u32 s78, s5, {hex(0x10000 | pb)}", 4: f"s_bfe_u32 s78, s5, {hex(0x20000 | pb)}", 3: "s_mul_i32 s78, s5, 3\ns_lshr_b32 s78, s78, 5"}[NG])
    while True:
        sa, sl = len(A.lines), lbl[0]
        sg = {rung(gi, k1).sigof() for gi in range(NG)}
        del A.lines[sa:]; lbl[0] = sl
        if len(sg) == 1: break
        k1 += 1; assert k1 <= len(sched)
    for gi in range(NG):
        if gi: A(f"L_g{gi}:")
        if gi < NG - 1: A(f"s_cmp_lg_u32 s78, {gi}\ns_cbranch_scc1 L_g{gi+1}")
        Lg = rung(gi, k1)
        if gi < NG - 1: A("s_branch L_merge")
    A("L_merge:")
    for x in sched[k1:]: Lg.step(x)
assert Lg.cur == len(bars) - 2
if "show" in opts:
    for it in first: print(it, "first", bars[first[it]], "free", bars[free[it]] if free.get(it, 999) < 999 else None)
A(f"""s_lshl_b32 s13, s11, 2
s_add_u32 s13, s13, s9
s_lshl_b32 s13, s13, 3
s_add_u32 s13, s13, s4
s_lshl_b32 s14, s13, 2
s_add_u32 s14, s14, s3
s_lshl_b32 s14, s14, 13
s_add_u32 s14, s14, {WS_PART}
s_add_u32 s15, s14, 4096
s_lshl_b32 s75, s3, 5
s_add_u32 s13, s77, s75
s_lshl_b32 s75, s3, 6
s_lshl_b32 s77, s9, 8
s_add_u32 s75, s75, s77
s_lshl_b32 s76, s72, 4
v_add_u32 v1, s76, v4
v_lshlrev_b32 v1, 10, v1
v_bfe_u32 v2, v0, 4, 1
v_lshl_add_u32 v1, v2, 5, v1
v_lshrrev_b32 v2, 5, v0
v_lshl_add_u32 v1, v2, 4, v1
v_add_u32 v1, s75, v1
v_add_u32 v14, {OWNP}, v14
s_mov_b32 s77, 0xffff0000
s_mov_b32 s76, 0""")
def acc(p):
    for d in range(4):
        r = 64 + 4*p + d
        if p == 0: A(f"v_lshlrev_b32 v{48+2*d}, 16, v{r}\nv_and_b32 v{49+2*d}, s77, v{r}")
        else: A(f"v_lshlrev_b32 v2, 16, v{r}\nv_and_b32 v3, s77, v{r}\nv_pk_add_f32 v[{48+2*d}:{49+2*d}], v[{48+2*d}:{49+2*d}], v[2:3]")
for p in range(7):
    if p > 0: A(f"s_cmp_lg_u32 s{80+p}, 0\ns_cbranch_scc1 L_fd{p}")
    A(f"L_fw{p}:")
    A(f"s_load_dwordx8 s[80:87], s[30:31], s13 glc\ns_add_u32 s76, s76, 1\ns_cmp_ge_u32 s76, {SPIN}\ns_waitcnt lgkmcnt(0)\ns_cbranch_scc1 L_fd{p}")
    A(f"s_cmp_eq_u32 s{80+p}, 0\ns_cbranch_scc1 L_fw{p}")
    A(f"L_fd{p}:")
    A(f"buffer_load_dwordx4 {v(64+4*p,4)}, v13, s[{SWS}:{SWS+3}], {'s14' if p < 4 else 's15'} offen offset:{(p&3)*1024} sc1")
    stamp(f"f{p}")
A("s_barrier\nds_read_b128 v[40:43], v14\nds_read_b128 v[44:47], v14 offset:1024")
for p in range(6): A(f"s_waitcnt vmcnt({6-p})"); acc(p)
A("s_waitcnt lgkmcnt(0)")
for d in range(4): A(f"v_pk_add_f32 v[{48+2*d}:{49+2*d}], v[{48+2*d}:{49+2*d}], v[{40+2*d}:{41+2*d}]")
A("s_waitcnt vmcnt(0)"); acc(6)
for d in range(4): A(f"v_cvt_pk_bf16_f32 v{56+d}, v{48+2*d}, v{49+2*d}")
A("s_nop 1\nv_permlane16_swap_b32 v56, v58\nv_permlane16_swap_b32 v57, v59")
A(f"buffer_store_dwordx4 v[56:59], v1, s[{SOUT}:{SOUT+3}], 0 offen")
if STAMP:
    A("s_waitcnt vmcnt(0)"); stamp("end")
    A("s_cmp_lg_u32 s3, 0\ns_cbranch_scc1 L_end")
    A(f"s_lshl_b32 s13, s2, 9\ns_add_u32 s13, s13, {hex(WS_STAMP)}\nv_lshlrev_b32 v253, 3, v0\nv_add_u32 v253, s13, v253")
    A(f"v_cmp_gt_u32 vcc, 48, v0\ns_nop 1\ns_mov_b64 exec, vcc")
    A(f"buffer_store_dwordx2 v[254:255], v253, s[{SWS}:{SWS+3}], 0 offen")
A("s_endpgm")

out = HEADER
out += "; @launch grid=(256,1,1) block=(512,1,1) lds=163840\n"
if STAMP:
    nm = {0: "t0"}
    for i, n_ in enumerate(lst): nm[i + 1 + (i + 1 >= 30)] = "L" + n_
    for i, n_ in enumerate(cst): nm[48 + i] = n_
    out += "; stampnames " + " ".join(f"{k}={x}" for k, x in nm.items()) + "\n"
out += f'.amdgcn_target "amdgcn-amd-amdhsa--gfx950"\n.text\n.globl {KN}\n.type {KN},@function\n' + A.text() + C.text() + "L_codeend:\n"
out += '.section .rodata,"a"\n' + kd(KN, 256)
open(sys.argv[1], "w").write(out)
```

```python
import sys, math, struct
from collections import defaultdict
from common import *
opts = dict(a.split("=") if "=" in a else (a, "1") for a in sys.argv[2:])
def oi(k, d): return int(opts.get(k, d))
STAMP = "stamp" in opts
NTK = "" if "nont" in opts else "nt"
MF = "v_mfma_f32_16x16x32_bf16"
KN = NAME + "_kernel"
WS_P, WS_PART, WS_FLAG, WS_STAMP = 0, 0x400000, 0xC00000, 0x9000000
SPIN = 1 << 18
K1 = 1024
SSET = set(opts["sset"].split(",")) if "sset" in opts else None

U = lambda u: (u * 16 * K1, 16 * K1)
LOC = {}
def place(prefix, i0, units):
    for i, u in enumerate(units): LOC[f"{prefix}{i0+i}"] = U(u)
place("X", 0, [int(c) for c in opts.get("xu", "01230123")])
place("W", 0, [int(c) for c in opts.get("wu", "45674567")])
place("V", 0, [int(c) for c in opts.get("vu", "01289012")])
place("U", 0, [int(c) for c in opts.get("uu", "45674567")])
LOC["K0"], LOC["K1"] = U(8), U(9)
LOC["P0"] = LOC["X7"]
place("P", 1, [int(c) for c in opts.get("pu", "894")])
FIN = LOC["P0"][0]

C = Asm()
bars = []; first, free = {}, {}
q = []; pend = set(); dsn = [0]
def _ret(n):
    while len(q) > n:
        it = q.pop(0)[1]
        if it: pend.add(it)
def ds(ins, item=None):
    lim = 13 if STAMP else 15
    if len(q) >= lim: C(f"s_waitcnt lgkmcnt({lim-1})"); _ret(lim - 1)
    C(ins); dsn[0] += 1; q.append((dsn[0], item))
    if item:
        if item not in first: first[item] = len(bars) - 1
        free.pop(item, None)
    return dsn[0]
def need(*ids):
    pos = [k for k, (i, _) in enumerate(q) if i in ids]
    if pos:
        n = len(q) - 1 - max(pos); C(f"s_waitcnt lgkmcnt({n})"); _ret(n)
def drain():
    if q: C("s_waitcnt lgkmcnt(0)"); _ret(0)
def bar(name):
    bars.append(name); C("s_barrier"); cstamp(name)
    live = {it for _, it in q}
    for it in list(pend):
        if it not in live: free[it] = len(bars) - 1; pend.discard(it)
cst = []; CREG = list(range(32, 56, 2)) + [60, 62, 92, 94]
def cstamp(name):
    if STAMP and SSET is not None and name in SSET:
        i = len(cst); cst.append(name); assert i < 16
        if len(q) > 12: C("s_waitcnt lgkmcnt(12)"); _ret(12)
        C(f"s_mem{'real' if 'rt' in opts else ''}time s[{CREG[i]}:{CREG[i]+1}]")
I = lambda x: (lambda: C(x))

VX, VW, LIN0, VOWN = 4, 8, 16, 17
TM = 18
ACC, BR0, PR, VWS = 24, 88, 112, 128
BR = [BR0 + 4*i for i in range(6)]
QB, SC, PB, VK = VWS + 96, VWS + 64, VWS + 48, VWS + 32
C("L_compute:")
C(f"s_setprio {oi('prio', 0)}")
srd_consts(C, [SWS])
C(f"""v_and_b32 v1, 15, v0
v_lshrrev_b32 v2, 4, v0
v_bfe_u32 v3, v0, 1, 3
v_xor_b32 v3, v3, v2
v_lshlrev_b32 v3, 4, v3
v_lshl_add_u32 v3, v1, 7, v3
s_lshl_b32 s70, s3, 12
v_add_u32 v{VX}, s70, v3
v_xor_b32 v{VX+1}, 64, v{VX}
v_add_u32 v{VX+2}, 0x20000, v3
v_xor_b32 v{VX+3}, 64, v{VX+2}
v_lshrrev_b32 v3, 1, v2
v_xor_b32 v3, v3, v1
v_lshlrev_b32 v3, 4, v3
v_lshl_add_u32 v3, v1, 8, v3
v_and_b32 v18, 1, v2
v_lshl_add_u32 v3, v18, 3, v3
s_lshr_b32 s13, s3, 1
s_lshl_b32 s13, s13, 14
s_add_u32 s13, s13, 0x20000
v_add_u32 v{VK}, s13, v3
v_lshlrev_b32 v{LIN0}, 4, v0
v_add_u32 v{VOWN}, s70, v{LIN0}
v_bfe_u32 v1, v0, 2, 2
v_and_b32 v3, 3, v0
v_lshlrev_b32 v3, 3, v3
v_lshl_add_u32 v19, v18, 2, v1
v_lshl_add_u32 v20, v2, 3, v1
v_lshlrev_b32 v20, 8, v20
v_lshl_add_u32 v20, v19, 5, v20
v_add_u32 v20, v20, v3
v_add_u32 v{VW}, 0x10000, v20""")
for i in range(1, 8): C(f"v_xor_b32 v{VW+i}, {i*32}, v{VW}\nv_xor_b32 v{VK+i}, {i*32}, v{VK}")
C(f"""s_lshl_b32 s13, s11, 2
s_add_u32 s13, s13, s9
s_lshl_b32 s13, s13, 3
s_add_u32 s13, s13, s4
s_lshl_b32 s65, s13, 15
s_lshl_b32 s14, s3, 13
s_add_u32 s65, s65, s14
s_lshl_b32 s66, s13, 8
s_lshl_b32 s14, s3, 5
s_add_u32 s66, s66, s14""")
for p in range(7):
    C(f"s_xor_b32 s13, s65, {(7-p) << 15}\ns_add_u32 s{80+p}, s13, {WS_PART + p*1024}")
    C(f"s_xor_b32 s13, s66, {(7-p) << 8}\ns_add_u32 s{72+p}, s13, {WS_FLAG + p*4}")
C(f"""s_lshl_b32 s13, s11, 3
s_add_u32 s13, s13, s4
s_lshl_b32 s64, s13, 16
s_lshl_b32 s14, s8, 14
s_add_u32 s64, s64, s14
s_add_u32 s64, s64, {WS_P}
s_lshl_b32 s67, s11, 13
s_lshl_b32 s14, s4, 8
s_add_u32 s67, s67, s14
s_lshl_b32 s14, s8, 4
s_add_u32 s67, s67, s14
s_lshl_b32 s14, s3, 2
s_add_u32 s67, s67, s14
s_add_u32 s67, s67, {WS_FLAG + 128}""")
cs = struct.unpack("<I", struct.pack("<f", math.log2(math.e) / math.sqrt(128)))[0]
C(f"s_mov_b32 s68, {hex(cs)}\ns_mov_b32 s69, {hex(cs)}\ns_lshl_b32 s71, s3, 6")
C("s_waitcnt lgkmcnt(0)")
srd_ptrs(C, [SWS])

WP = oi('wp', 0)
class Stream:
    def __init__(s_): s_.e = []; s_.fill = defaultdict(list); s_.before = defaultdict(list); s_.id = defaultdict(list); s_.hold = {}
    def rd(s_, m, k): s_.id[m].append(s_.e[m][0][k](BR[m % 6]))
    def prologue(s_, lo):
        for m in range(lo, lo + 6):
            for k in range(len(s_.e[m][0])): s_.rd(m, k)
    def run(s_, lo, hi, stop):
        for m in range(lo, hi):
            for f in s_.before.pop(m, []): f()
            cstamp(f'e{m}')
            assert len(s_.id[m]) == len(s_.e[m][0]), m
            for hh in range(2):
                a_, b_, d, fst, deps = s_.e[m][1][hh ^ (m & 1)]
                extra = s_.id[m+1] if (WP and m % 2 == 0 and m + 1 < hi and m > lo) else []
                need(*s_.id[m], *extra, *deps())
                R = v(BR[m % 6], 4)
                C(f"{MF} {v(d,4)}, {R if a_ is None else v(a_,4)}, {R if b_ is None else v(b_,4)}, {'0' if fst else v(d,4)}")
                if hh == 0 and m > lo and m + 5 < stop and len(s_.e[m+5][0]) == 2: s_.rd(m + 5, 1)
                if hh == 1 and m + 6 < stop: s_.rd(m + 6, 0)
                for f in s_.fill.pop(2*m + hh, []): f()
S = Stream(); pid = {}
def xaddr(a, ss): return (VX + ss + (2 if a >= 128*K1 else 0), a % 65536)
def x_rd(n, qt):
    it = f"X{n//2}"; r, o = xaddr(LOC[it][0], n & 1); assert LOC[it][0] < 65536
    return lambda: pid.__setitem__(("x", n, qt), ds(f"ds_read_b128 {v(PR+8*(n&1)+4*qt,4)}, v{r} offset:{o + qt*2048}", it))
for n in range(16):
    for mt in range(8):
        it = f"W{n//2}"
        rds = [lambda r, it=it, n=n, mt=mt, e=e: ds(f"ds_read_b64_tr_b16 {v(r+2*e,2)}, v{VW + (mt ^ (4*e))} offset:{LOC[it][0]-65536 + (n&1)*8192 + e*1024}", it) for e in range(2)]
        S.e.append((rds, [(None, PR + 8*(n&1) + 4*qt, ACC + 8*mt + 4*qt, n == 0, lambda n=n, qt=qt: [pid[("x", n, qt)]]) for qt in range(2)]))
    if n < 15:
        for qt in range(2): S.fill[2*(8*n + 2 + 2*qt)].append(x_rd(n + 1, qt))
    if n & 1 and n < 15: S.before[8*n + 2].append(lambda n=n: bar(f"B{(n+1)//2}"))
if oi("bk", 0): S.before[122].append(lambda: bar("BK"))
qk = [(kt, s_) for s_ in range(4) for kt in range(4)]
for kt, s_ in qk:
    rds = [lambda r, kt=kt, s_=s_, e=e: ds(f"ds_read_b64{'_tr_b16' if 'ktr' in opts else ''} {v(r+2*e,2)}, v{VK + 2*s_ + e} offset:{kt*4096}", "K") for e in range(2)]
    S.e.append((rds, [(None, QB + 16*qt + 4*s_, SC + 16*qt + 4*kt, s_ == 0, lambda: []) for qt in range(2)]))
for mt in range(8):
    for k, (qt, i) in enumerate([(0, 0), (0, 1), (1, 0), (1, 1)]):
        if "nocvt" not in opts: S.fill[2*123 + 4*mt + k].append(I(f"v_cvt_pk_bf16_f32 v{QB+16*qt+2*mt+i}, v{ACC+8*mt+4*qt+2*i}, v{ACC+8*mt+4*qt+2*i+1}"))
adr = [f"v_subrev_u32 v{VX+k}, s70, v{VX+k}" for k in range(2)] + [f"v_xor_b32 v{VW+k}, s71, v{VW+k}" for k in (0, 1, 4, 5)]
for k, x in enumerate(adr): S.fill[2*(117 + k) if k < 2 else 2*(130 + k)].append(I(x))
M = lambda qt: TM + 2*qt
E2 = 144
OA = VWS + 64
LW = {0: LIN0, 1: VW + 2, 2: VW + 3}
VZ, V1 = VW + 6, VW + 7
def u_rd(n, k):
    it = f"U{n//2}"; nt, e = k >> 1, k & 1
    return lambda: pid.__setitem__(("u", n, k), ds(f"ds_read_b64_tr_b16 {v(PR+8*(n&1)+4*nt+2*e,2)}, v{VW + (nt ^ (4*e))} offset:{LOC[it][0]-65536 + (n&1)*8192 + e*1024}", it))
def vwreg(s_, b, u, nt):
    return ACC + 8*(4*b + 2*u) + 4*nt if s_ in (0, 3) else VWS + 32*(s_ - 1) + 16*b + 8*u + 4*nt
def add_vw(n):
    m0 = len(S.e)
    for rt in range(8):
        it = f"V{n//2}"; r0, o = xaddr(LOC[it][0], n & 1)
        rds = [lambda r, it=it, r0=r0, o=o, rt=rt: ds(f"ds_read_b128 {v(r,4)}, v{r0} offset:{o + rt*2048}", it)]
        S.e.append((rds, [(None, PR + 8*(n&1) + 4*nt, ACC + 8*rt + 4*nt, n % 4 == 0, lambda n=n, nt=nt: [pid[("u", n, 2*nt)], pid[("u", n, 2*nt+1)]]) for nt in range(2)]))
    if n:
        for k in range(4): S.fill[2*(m0 - 6 + k)].append(u_rd(n, k))
        if n % 2 == 0: S.before[m0 - 6].append(lambda n=n: bar(f"B{8 + n//2}"))
    if n % 4 == 3:
        for rt in range(8):
            for k, (nt, i) in enumerate([(0, 0), (0, 1), (1, 0), (1, 1)]):
                S.fill[2*(m0 + rt + 4) + (k >> 1)].append(I(f"v_cvt_pk_bf16_f32 v{vwreg(n//4, rt>>2, (rt>>1)&1, nt)+2*(rt&1)+i}, v{ACC+8*rt+4*nt+2*i}, v{ACC+8*rt+4*nt+2*i+1}"))
NPQ = oi("npq", 2)
def add_pv(p, s_, u):
    it = "P0" if s_ == 0 else f"P{s_}" + "abcd"[p * NPQ // 8]; a = LOC[f"P{s_}"][0] + p*2048 + u*1024
    rds = [lambda r: ds(f"ds_read_b128 {v(r,4)}, v{LW[a // 65536]} offset:{a % 65536}", it)]
    S.e.append((rds, [(vwreg(s_, p >> 2, u, nt), None, OA + 8*p + 4*nt, s_ == 0 and u == 0, lambda: []) for nt in range(2)]))
for n in range(4): add_vw(n)
EP = len(S.e)
for b_ in range(2):
    for u in range(2):
        for p in range(4*b_, 4*b_ + 4): add_pv(p, 0, u)
for n in range(4, 16): add_vw(n)
E3 = len(S.e)
for p in range(8):
    for s_ in range(1, 4):
        for u in range(2): add_pv(p, s_, u)
for s_ in range(1, 4):
    for hf in range(NPQ): LOC[f"P{s_}{'abcd'[hf]}"] = (LOC[f"P{s_}"][0] + hf*16384//NPQ, 16384//NPQ)
for hf in range(NPQ): S.before[E3 + 48*hf//NPQ - 6].append(lambda hf=hf: bar("P" + "abcd"[hf]))
for k, x in enumerate([f"v_add_u32 v{LW[1]}, 0x10000, v{LIN0}", f"v_add_u32 v{LW[2]}, 0x20000, v{LIN0}", f"v_mov_b32 v{VZ}, 0", f"v_mov_b32 v{V1}, -1", "v_lshlrev_b32 v1, 11, v0"]):
    S.fill[2*(E2 + 6 + k) + 1].append(I(x))
vmq = []
def flag(p):
    C(f"s_waitcnt vmcnt({len(vmq) - 1 - vmq.index(f'D{p}')})\ns_mov_b64 exec, 1")
    C(f"buffer_store_dword v{V1}, v{VZ}, s[{SWS}:{SWS+3}], s{72+p} offen sc1\ns_mov_b64 exec, -1"); vmq.append(f"F{p}")
FLAG_LAG = oi("flag", 5)
for p in range(7):
    g0 = 2*(E3 + 6*(p+1) + 2); r = PR + 4*(p & 3)
    for i in range(4): S.fill[g0 + 1 + (i >> 1)].append(I(f"v_cvt_pk_bf16_f32 v{r+i}, v{OA+8*p+2*i}, v{OA+8*p+2*i+1}"))
    S.fill[g0 + 4].append(lambda p=p, r=r: (C(f"buffer_store_dwordx4 {v(r,4)}, v{LIN0}, s[{SWS}:{SWS+3}], s{80+p} offen sc1"), vmq.append(f"D{p}")))
    if p >= FLAG_LAG: S.fill[g0 + 6].append(lambda p=p: flag(p - FLAG_LAG))
bar("B0"); C("s_waitcnt vmcnt(0)")
x_rd(0, 0)(); x_rd(0, 1)(); S.prologue(0)
S.run(0, E2, E2)
cstamp("qk")
if oi("bq", 0): bar("BQ")
C("s_nop 2")
for qt in range(2): C(f"v_max3_f32 v{M(qt)}, v{SC+16*qt}, v{SC+16*qt+1}, v{SC+16*qt+2}")
for i in range(3, 15, 2):
    for qt in range(2): C(f"v_max3_f32 v{M(qt)}, v{M(qt)}, v{SC+16*qt+i}, v{SC+16*qt+i+1}")
for qt in range(2): C(f"v_max_f32 v{M(qt)}, v{M(qt)}, v{SC+16*qt+15}")
def xred(op, fin, fill):
    a_, b_ = M(0), M(1)
    def gap(n):
        for _ in range(n): fill.pop(0)() if fill else C("s_nop 0")
    gap(2); C(f"v_permlane32_swap_b32 v{a_}, v{b_}\n{op} v{a_}, v{a_}, v{b_}\nv_mov_b32 v{b_}, v{a_}")
    gap(2); C(f"v_permlane16_swap_b32 v{a_}, v{b_}\n{op} v{a_}, v{a_}, v{b_}\n{fin[0]}\n{fin[1]}")
    gap(2); C(f"v_permlane32_swap_b32 v{a_}, v{b_}")
xred("v_max_f32", [f"v_mul_f32 v{M(1)}, s68, v{M(0)}", f"v_mul_f32 v{M(0)}, s68, v{M(0)}"], [])
pkf = lambda i: f"v_pk_fma_f32 {v(SC+2*i,2)}, {v(SC+2*i,2)}, s[68:69], {v(M(i>>3),2)} op_sel_hi:[1,1,0] neg_lo:[0,0,1] neg_hi:[0,0,1]"
SM = [TM + 4, 2]
C(pkf(0))
for i in range(16):
    C(f"v_exp_f32 v{SC+2*i}, v{SC+2*i}")
    if i < 15: C(pkf(i + 1))
    C(f"v_exp_f32 v{SC+2*i+1}, v{SC+2*i+1}")
    j = i - 1
    if j >= 0 and j % 8: C(f"v_pk_add_f32 {v(SM[j>>3],2)}, {v(SM[j>>3],2) if j % 8 > 1 else v(SC+2*j-2,2)}, {v(SC+2*j,2)}")
C(f"v_add_f32 v{M(0)}, v{SM[0]}, v{SM[0]+1}\nv_pk_add_f32 {v(SM[1],2)}, {v(SM[1],2)}, {v(SC+30,2)}\nv_add_f32 v{M(1)}, v{SM[1]}, v{SM[1]+1}")
xred("v_add_f32", [f"v_rcp_f32 v{M(1)}, v{M(0)}", f"v_rcp_f32 v{M(0)}, v{M(0)}"], [])
PUBC = oi("pubc", -1); EARLY8 = 0
pst = lambda t: f"buffer_store_dwordx4 {v(PB+4*t,4)}, v{VOWN}, s[{SWS}:{SWS+3}], s64 offen offset:{t*1024} sc1"
for t in range(4):
    for i in range(8*t, 8*t + 8, 2): C(f"v_pk_mul_f32 {v(SC+i,2)}, {v(SC+i,2)}, {v(M(t>>1),2)} op_sel_hi:[1,0]")
    for i in range(4): C(f"v_cvt_pk_bf16_f32 v{PB+4*t+i}, v{SC+8*t+2*i}, v{SC+8*t+2*i+1}")
    ds(f"ds_write_b128 v{VOWN}, {v(PB+4*t,4)} offset:{LOC['P0'][0] + t*1024}")
cstamp("sm")
if PUBC == -2:
    for t in range(4): C(pst(t))
if not PUBC: drain()
bar("B8")
for k in range(4): u_rd(0, k)()
S.prologue(E2)
if PUBC == -1:
    for t in range(4): C(pst(t))
if PUBC > 0:
    for t in range(4): S.fill[2*(E2 + PUBC + oi("pubd", 0)*t)].append(I(pst(t)))
if PUBC: S.fill[2*(E2 + oi("flgc", 46))].append(I(f"s_waitcnt vmcnt(0)\ns_mov_b64 exec, 15\nbuffer_store_dword v{V1}, v1, s[{SWS}:{SWS+3}], s67 offen sc1\ns_mov_b64 exec, -1"))
S.run(E2, len(S.e), len(S.e))
assert not S.fill and not S.before, (dict(S.fill), dict(S.before))
cstamp("T")
C("s_nop 6")
OWNP = LOC["U7"][0]
C(f"v_add_u32 v1, s70, v{LW[OWNP // 65536]}")
for nt in range(2): ds(f"ds_write_b128 v1, {v(OA+56+4*nt,4)} offset:{OWNP % 65536 + nt*1024}")
for p in range(7):
    if f"F{p}" not in vmq: flag(p)
cstamp("fl")
drain(); bar("Z")
assert free["U7"] <= bars.index("Pb")
if STAMP:
    C("s_cmp_lg_u32 s3, 0\ns_cbranch_scc1 L_end")
    C(f"s_lshl_b32 s13, s2, 9\ns_add_u32 s13, s13, {hex(WS_STAMP + 48*8)}")
    for i in range(len(cst)):
        C(f"s_waitcnt lgkmcnt(0)\nv_mov_b32 v2, s{CREG[i]}\nv_mov_b32 v3, s{CREG[i]}\nbuffer_store_dwordx2 v[2:3], v{VZ}, s[{SWS}:{SWS+3}], s13 offen offset:{8*i}")
C("L_end:"); C("s_endpgm")
for k in ("K0", "K1"): first[k], free[k] = first["K"], free["K"]
del first["K"], free["K"], first["P0"]
free["X7"] = 999

A = Asm()
lst = []
def stamp(name):
    if STAMP and (SSET is None or ("L" + name) in SSET):
        if name not in lst: lst.append(name)
        i = lst.index(name) + 1; i += (i >= 30); assert i < 48
        A(f"s_memtime s[98:99]\ns_memrealtime s[96:97]\ns_waitcnt lgkmcnt(0)\nv_writelane_b32 v254, s98, {i}\nv_writelane_b32 v255, s96, {i}")
A(".p2align 8"); A(f"{KN}:")
A("s_cmp_ge_u32 s2, 256\ns_cbranch_scc1 L_end")
A("s_load_dwordx16 s[16:31], s[0:1], 0")
if STAMP: A("s_memtime s[94:95]\ns_memrealtime s[92:93]")
A(f"""v_lshrrev_b32 v1, 6, v0
v_and_b32 v0, 63, v0
v_readfirstlane_b32 s3, v1
s_and_b32 s4, s2, 7
s_lshr_b32 s5, s2, 3
s_and_b32 s8, s5, 3
s_lshr_b32 s11, s5, 2
s_add_u32 s9, s8, s11
s_and_b32 s9, s9, 3""")
NPF = oi("npf", 13)
A("s_getpc_b64 s[6:7]")
A("L_pc:")
A(f"s_lshl_b32 s13, s8, 3\ns_add_u32 s13, s13, s3\ns_mul_i32 s13, s13, {NPF}*64")
A(f"v_min_u32 v1, {NPF-1}, v0\nv_lshlrev_b32 v1, 6, v1\nv_add_u32 v1, s13, v1")
A(f"v_min_u32 v1, L_codeend-L_pc-4, v1")
A("global_load_dword v130, v1, s[6:7]")
A("s_cmp_lt_u32 s3, 4\ns_cbranch_scc1 L_compute")
if "lprio" in opts: A(f"s_setprio {opts['lprio']}")
srd_consts(A, [SX, SWQ, SWS])
ROT = {"8": "s_lshl_b32 s12, s8, 1\ns_add_u32 s12, s12, s11", "8h": "s_lshl_b32 s12, s8, 1\ns_add_u32 s12, s12, s11\ns_add_u32 s12, s12, s4",
       "4": "s_add_u32 s12, s8, s11\ns_lshl_b32 s12, s12, 1", "4h": "s_add_u32 s12, s8, s11\ns_lshl_b32 s12, s12, 1\ns_add_u32 s12, s12, s4",
       "w8": "s_add_u32 s12, s4, s11", "w8x2": "s_lshl_b32 s12, s8, 2\ns_add_u32 s12, s12, s11\ns_add_u32 s12, s12, s4",
       "w4": "s_lshl_b32 s12, s11, 1\ns_add_u32 s12, s12, s4", "w4x2": "s_lshl_b32 s12, s8, 1\ns_add_u32 s12, s12, s11\ns_lshl_b32 s12, s12, 1\ns_add_u32 s12, s12, s4",
       "2": "s_add_u32 s12, s8, s11\ns_lshl_b32 s12, s12, 2", "2h": "s_add_u32 s12, s8, s11\ns_lshl_b32 s12, s12, 2\ns_add_u32 s12, s12, s4"}[opts.get("rot", "w4x2")]
A(f"""s_sub_u32 s3, s3, 4
s_lshl_b32 s10, s4, 2
s_add_u32 s10, s10, s8
{ROT}
v_lshrrev_b32 v1, 3, v0
v_lshrrev_b32 v2, 4, v0
v_and_b32 v3, 7, v0
v_and_b32 v4, 15, v0
s_and_b32 s13, s3, 1
s_lshl_b32 s14, s13, 2
v_add_u32 v5, s14, v2
v_xor_b32 v5, v5, v3
v_lshlrev_b32 v5, 4, v5
s_lshl_b32 s14, s3, 3
v_add_u32 v6, s14, v1
v_lshl_add_u32 v11, v6, 8, v5
v_lshl_add_u32 v8, v6, 10, v5
s_xor_b32 s74, s4, 7
s_and_b32 s14, s74, 1
s_lshl_b32 s14, s14, 14
v_xor_b32 v8, s14, v8
s_lshr_b32 s14, s3, 1
s_xor_b32 s13, s13, s14
s_lshl_b32 s13, s13, 3
v_lshl_add_u32 v5, v2, 1, s13
v_xor_b32 v5, v5, v4
v_lshlrev_b32 v5, 4, v5
s_lshl_b32 s13, s3, 2
v_add_u32 v6, s13, v2
v_lshl_add_u32 v9, v6, 13, v5
s_lshl_b32 s64, s11, 17
s_lshr_b32 s13, s74, 1
s_lshl_b32 s13, s13, 15
s_add_u32 s64, s64, s13
s_lshl_b32 s65, s10, 8
s_lshl_b32 s67, s3, 10
s_lshl_b32 s13, s11, 13
s_lshl_b32 s14, s4, 8
s_add_u32 s13, s13, s14
s_add_u32 s79, s13, {WS_FLAG}
s_lshl_b32 s14, s9, 11
s_add_u32 s77, s79, s14
v_mov_b32 v17, 0
s_waitcnt lgkmcnt(0)""")
srd_ptrs(A, [SX, SWQ, SWS])
if STAMP: A("v_mov_b32 v254, -1\nv_mov_b32 v255, -1\nv_writelane_b32 v254, s94, 0\nv_writelane_b32 v255, s92, 0\ns_getreg_b32 s92, hwreg(HW_REG_XCC_ID)\ns_and_b32 s92, s92, 7\nv_writelane_b32 v254, s92, 30")
stamp("go")
def late_setup():
    srd_consts(A, [SK, SV, SWO, SOUT, SDBG]); srd_ptrs(A, [SK, SV, SWO, SOUT, SDBG])
    A(f"""v_lshl_add_u32 v12, v6, 10, v5
v_xor_b32 v5, v6, v4
v_lshlrev_b32 v5, 4, v5
v_lshl_add_u32 v10, v6, 8, v5
v_lshlrev_b32 v13, 4, v0
s_lshl_b32 s69, s11, 20
s_lshr_b32 s13, s74, 2
s_lshl_b32 s13, s13, 19
s_add_u32 s69, s69, s13
s_lshl_b32 s13, s10, 14
s_add_u32 s66, s69, s13
s_lshl_b32 s13, s4, 16
s_add_u32 s69, s69, s13
s_lshl_b32 s70, s4, 19
s_lshl_b32 s13, s9, 8
s_add_u32 s70, s70, s13
s_lshr_b32 s71, s11, 2
s_lshl_b32 s72, s11, 3
s_add_u32 s72, s72, s4
s_lshl_b32 s73, s72, 16
s_add_u32 s73, s73, {WS_P}
s_lshl_b32 s13, s3, 12
v_add_u32 v14, s13, v13
s_lshl_b32 s14, s8, 4
s_add_u32 s79, s79, s14
s_lshl_b32 s14, s3, 2
s_add_u32 s79, s79, s14
v_lshlrev_b32 v7, 11, v0
v_mov_b32 v15, -1
v_lshlrev_b32 v19, 2, v3
s_lshl_b32 s13, s11, 5
v_add_u32 v19, s13, v19
s_mov_b32 s76, 0""")
def load_ops(it):
    k, a = it[0], LOC[it][0]; i = int(it[1])
    def dma(vo, srd, soff, lds, fl=""): return f"s_add_u32 m0, s67, {lds}\n{soff}\nbuffer_load_dwordx4 v{vo}, s[{srd}:{srd+3}], s68 offen {fl} lds"
    if "dry" in opts and not (k in "XW" and i < 4) and k != "K": return "", []
    if k == "X":
        return (f"s_add_u32 s13, s12, {i}\ns_and_b32 s13, s13, 7\ns_lshl_b32 s14, s13, 7\ns_add_u32 s14, s14, s64",
                [dma(8, SX, f"s_xor_b32 s68, s14, {hex(qq*0x8000)}", a + qq*4096) for qq in range(4)])
    if k == "W":
        return (f"s_add_u32 s13, s12, {i}\ns_and_b32 s13, s13, 7\ns_lshl_b32 s15, s13, 19\ns_add_u32 s15, s15, s65",
                [dma(9, SWQ, f"s_add_u32 s68, s15, {qq*16*8192}", a + qq*4096, "nt" if "wnt" in opts and i == 0 else "") for qq in range(4)])
    if k == "K":
        return ("", [dma(10, SK, f"s_xor_b32 s68, s66, {hex(qq*4096 + i*0x80000)}", a + qq*4096, NTK) for qq in range(4)])
    hd = f"s_add_u32 s13, s8, {i>>1}\ns_and_b32 s13, s13, 3\ns_xor_b32 s75, s71, {i&1}\n"
    if k == "V":
        return (hd + "s_lshl_b32 s13, s13, 14\ns_lshl_b32 s75, s75, 7\ns_add_u32 s14, s13, s75\ns_add_u32 s14, s14, s69",
                [dma(11, SV, f"s_xor_b32 s68, s14, {hex((qq&1)*8192 + (qq>>1)*0x80000)}", a + qq*4096) for qq in range(4)])
    if k == "U":
        return (hd + "s_lshl_b32 s13, s13, 17\ns_lshl_b32 s75, s75, 16\ns_add_u32 s15, s13, s75\ns_add_u32 s15, s15, s70",
                [dma(12, SWO, f"s_add_u32 s68, s15, {qq*16*1024}", a + qq*4096) for qq in range(4)])
    return (f"s_add_u32 s13, s8, {i}\ns_and_b32 s13, s13, 3\ns_lshl_b32 s13, s13, 14\ns_add_u32 s15, s13, s73\ns_add_u32 s15, s15, s67",
            [dma(13, SWS, f"s_add_u32 s68, s15, {'abcd'.index(it[2])*16384//NPQ + qq*4096}", a + qq*4096, "sc1") for qq in range(4//NPQ)])
lbl = [0]
class Loader:
    def __init__(s_): s_.n = 0; s_.last = {}; s_.cur = -1; s_.occ = []; s_.done = set()
    def copy(s_):
        o = Loader(); o.__dict__.update({k: (x.copy() if hasattr(x, "copy") else x) for k, x in s_.__dict__.items()}); return o
    def wait(s_, names): A(f"s_waitcnt vmcnt({min(s_.n - 1 - max(s_.last[i] for i in names), 63)})")
    def claim(s_, x):
        lo, hi = LOC[x][0], LOC[x][0] + LOC[x][1]
        for (a_, b_, it) in s_.occ:
            if a_ < hi and lo < b_: assert free[it] <= s_.cur, f"WAR: {x} after {bars[s_.cur]} but {it} free at {free[it]}"
        s_.occ = [o for o in s_.occ if not (o[0] >= lo and o[1] <= hi)] + [(lo, hi, x)]
        if x[0] == "P": assert "pw" in s_.done
    def step(s_, x):
        s_.done.add(x)
        if x == "setup": late_setup()
        elif x in bars:
            s_.cur += 1; assert bars[s_.cur] == x, (x, bars[s_.cur])
            nd = [i for i, f in first.items() if f == s_.cur]
            if nd: s_.wait(nd)
            A("s_barrier"); stamp(x)
        elif x == "clr":
            lbl[0] += 1; s_.last["clr"] = s_.n - 1
            A(f"s_cmp_lg_u32 s3, 0\ns_cbranch_scc1 L_k{lbl[0]}\nv_lshlrev_b32 v1, 2, v0\nbuffer_store_dword v17, v1, s[{SWS}:{SWS+3}], s77 offen sc1"); A(f"L_k{lbl[0]}:")
        elif x.startswith("pf"):
            lo = int(x[2:] or 0)
            A(f"s_sub_u32 s13, s77, {WS_FLAG}\ns_lshl_b32 s13, s13, 7\ns_lshl_b32 s14, s3, 13\ns_add_u32 s13, s13, s14\ns_add_u32 s14, s13, {WS_PART}\ns_add_u32 s15, s14, 4096")
            A("v_mov_b32 v24, -1\nv_mov_b32 v25, -1\nv_mov_b32 v26, -1\nv_mov_b32 v27, -1\nv_lshlrev_b32 v13, 4, v0")
            for p in range(lo, 7):
                A(f"buffer_store_dwordx4 v[24:27], v13, s[{SWS}:{SWS+3}], {'s14' if p < 4 else 's15'} offen offset:{(p&3)*1024} sc1"); s_.n += 1
            s_.last["pf"] = s_.n - 1
        elif x == "atm":
            lbl[0] += 1
            A(f"s_cmp_lg_u32 s3, 0\ns_cbranch_scc1 L_k{lbl[0]}"); s_.wait(["clr"])
            A(f"s_lshl_b32 s13, s72, 2\nv_mov_b32 v2, 1\ns_mov_b64 exec, 1\nbuffer_atomic_add v2, v17, s[{SDBG}:{SDBG+3}], s13 offen\ns_mov_b64 exec, -1"); A(f"L_k{lbl[0]}:")
        elif x == "ci":
            A(f"buffer_load_dword v20, v19, s[{SDBG}:{SDBG+3}], 0 offen sc1"); s_.last["ci"] = s_.n; s_.n += 1
        elif x == "cw":
            assert s_.cur < bars.index("B10")
            lbl[0] += 1; k = lbl[0]; s_.wait(["ci"])
            A(f"v_cmp_gt_u32 vcc, 4, v20\ns_cbranch_vccz L_lr{k}"); A(f"L_ll{k}:")
            A(f"s_sleep 8\nbuffer_load_dword v20, v19, s[{SDBG}:{SDBG+3}], 0 offen sc1\ns_add_u32 s76, s76, 1\ns_waitcnt vmcnt(0)\ns_cmp_ge_u32 s76, {SPIN}\ns_cbranch_scc1 L_lr{k}\nv_cmp_gt_u32 vcc, 4, v20\ns_cbranch_vccnz L_ll{k}")
            A(f"L_lr{k}:")
        elif x == "pr":
            assert s_.cur >= bars.index("B9" if EARLY8 else "B8")
            for t in range(4): A(f"ds_read_b128 {v(32+4*t,4)}, v14 offset:{LOC['P0'][0] + t*1024}")
        elif x == "pub":
            assert "pr" in s_.done
            A(f"s_lshl_b32 s13, s8, 14\ns_add_u32 s68, s13, s73\ns_waitcnt lgkmcnt(0)")
            for t in range(4): A(f"buffer_store_dwordx4 {v(32+4*t,4)}, v14, s[{SWS}:{SWS+3}], s68 offen offset:{t*1024} sc1")
            s_.n += 4; s_.last["pub"] = s_.n - 1
        elif x == "flg":
            assert "cw" in s_.done; s_.wait(["pub"])
            A(f"s_mov_b64 exec, 15\nbuffer_store_dword v15, v7, s[{SWS}:{SWS+3}], s79 offen offset:128 sc1\ns_mov_b64 exec, -1"); s_.n += 1; stamp(x)
        elif x == "pi": A(f"s_add_u32 s78, s77, 128\ns_load_dwordx16 s[80:95], s[30:31], s78 glc")
        elif x == "pw":
            assert PUBC or "flg" in s_.done; lbl[0] += 1; k = lbl[0]
            red = "".join(f"s_and_b64 s[80:81], s[80:81], s[{i}:{i+1}]\n" for i in range(82, 96, 2)) + "s_and_b32 s80, s80, s81\n"
            A(f"s_waitcnt lgkmcnt(0)\n{red}s_cbranch_scc1 L_lr{k}"); A(f"L_ll{k}:")
            A(f"s_load_dwordx16 s[80:95], s[30:31], s78 glc\ns_add_u32 s76, s76, 1\ns_waitcnt lgkmcnt(0)\ns_cmp_ge_u32 s76, {SPIN}\ns_cbranch_scc1 L_lr{k}\n{red}s_cbranch_scc0 L_ll{k}")
            A(f"L_lr{k}:"); stamp(x)
        else:
            its = [f"X{x[1:]}", f"W{x[1:]}"] if x[0] == "S" and int(x[1:]) < 8 else [f"V{int(x[1:])-8}", f"U{int(x[1:])-8}"] if x[0] == "S" else [x]
            ops = []
            for it in its: s_.claim(it); st, o = load_ops(it); A(st); ops.append(o)
            if "seq" in opts and its[0][0] == "X":
                for o in ops:
                    for z in o: A(z); s_.n += 1
            else:
                for k in range(4):
                    for it, o in zip(its, ops):
                        if k < len(o): A(o[k]); s_.n += 1
            for it in its: s_.last[it] = s_.n - 1
    def sigof(s_): return (s_.cur, tuple(sorted((i, min(s_.n - k, 64)) for i, k in s_.last.items() if first.get(i, -1) > s_.cur or (i in ("ci", "pub") )or (i == "clr" and "atm" not in s_.done))), tuple(sorted(s_.occ)), tuple(sorted(x for x in s_.done if x[0].islower())))

DEF = ("clr S0 setup S1 B0 S2 B1 S3 B2 0:atm 0:K0 0:K1 S4 B3 S5 B4 S6 B5 1:atm 1:K0 1:K1 S7 B6 S8 B7 S9 ci B8 V2 cw B9 U2 S11 B10 S12 B11 S13 B12 S14 B13 pi S15 B14 pw "
       "P1a P2a P3a B15 P1b P2b P3b Pa Pb")
sched = opts.get("sched", DEF).replace("_", " ").split()
if PUBC: sched = [x for x in sched if x not in ("pr", "pub", "flg")]
NG = len({x.split(":")[0] for x in sched if ":" in x})
L0 = Loader()
k0 = min([i for i, x in enumerate(sched) if ":" in x] + [len(sched)])
for i in range(k0): L0.step(sched[i])
k1 = max([i for i, x in enumerate(sched) if ":" in x] + [k0 - 1]) + 1
def rung(gi, hi):
    Lg = L0.copy()
    for x in sched[k0:hi]:
        if ":" not in x or int(x.split(":")[0]) == gi: Lg.step(x.split(":")[-1])
    return Lg
Lg = L0
if NG:
    pb = oi("parbit", 2)
    A({2: f"s_bfe_u32 s78, s5, {hex(0x10000 | pb)}", 4: f"s_bfe_u32 s78, s5, {hex(0x20000 | pb)}", 3: "s_mul_i32 s78, s5, 3\ns_lshr_b32 s78, s78, 5"}[NG])
    while True:
        sa, sl = len(A.lines), lbl[0]
        sg = {rung(gi, k1).sigof() for gi in range(NG)}
        del A.lines[sa:]; lbl[0] = sl
        if len(sg) == 1: break
        k1 += 1; assert k1 <= len(sched)
    for gi in range(NG):
        if gi: A(f"L_g{gi}:")
        if gi < NG - 1: A(f"s_cmp_lg_u32 s78, {gi}\ns_cbranch_scc1 L_g{gi+1}")
        Lg = rung(gi, k1)
        if gi < NG - 1: A("s_branch L_merge")
    A("L_merge:")
    for x in sched[k1:]: Lg.step(x)
assert Lg.cur == len(bars) - 2
if "show" in opts:
    for it in first: print(it, "first", bars[first[it]], "free", bars[free[it]] if free.get(it, 999) < 999 else None)
A(f"""s_lshl_b32 s13, s11, 2
s_add_u32 s13, s13, s9
s_lshl_b32 s13, s13, 3
s_add_u32 s13, s13, s4
s_lshl_b32 s14, s13, 2
s_add_u32 s14, s14, s3
s_lshl_b32 s14, s14, 13
s_add_u32 s14, s14, {WS_PART}
s_add_u32 s15, s14, 4096
s_lshl_b32 s75, s3, 5
s_add_u32 s13, s77, s75
s_lshl_b32 s75, s3, 6
s_lshl_b32 s77, s9, 8
s_add_u32 s75, s75, s77
s_lshl_b32 s76, s72, 4
v_add_u32 v1, s76, v4
v_lshlrev_b32 v1, 10, v1
v_bfe_u32 v2, v0, 4, 1
v_lshl_add_u32 v1, v2, 5, v1
v_lshrrev_b32 v2, 5, v0
v_lshl_add_u32 v1, v2, 4, v1
v_add_u32 v1, s75, v1
v_add_u32 v14, {OWNP}, v14
s_mov_b32 s77, 0xffff0000
s_mov_b32 s76, 0""")
def acc(p):
    for d in range(4):
        r = 64 + 4*p + d
        if p == 0: A(f"v_lshlrev_b32 v{48+2*d}, 16, v{r}\nv_and_b32 v{49+2*d}, s77, v{r}")
        else: A(f"v_lshlrev_b32 v2, 16, v{r}\nv_and_b32 v3, s77, v{r}\nv_pk_add_f32 v[{48+2*d}:{49+2*d}], v[{48+2*d}:{49+2*d}], v[2:3]")
for p in range(7):
    if p > 0: A(f"s_cmp_lg_u32 s{80+p}, 0\ns_cbranch_scc1 L_fd{p}")
    A(f"L_fw{p}:")
    A(f"s_load_dwordx8 s[80:87], s[30:31], s13 glc\ns_add_u32 s76, s76, 1\ns_cmp_ge_u32 s76, {SPIN}\ns_waitcnt lgkmcnt(0)\ns_cbranch_scc1 L_fd{p}")
    A(f"s_cmp_eq_u32 s{80+p}, 0\ns_cbranch_scc1 L_fw{p}")
    A(f"L_fd{p}:")
    A(f"buffer_load_dwordx4 {v(64+4*p,4)}, v13, s[{SWS}:{SWS+3}], {'s14' if p < 4 else 's15'} offen offset:{(p&3)*1024} sc1")
    stamp(f"f{p}")
A("s_barrier\nds_read_b128 v[40:43], v14\nds_read_b128 v[44:47], v14 offset:1024")
for p in range(6): A(f"s_waitcnt vmcnt({6-p})"); acc(p)
A("s_waitcnt lgkmcnt(0)")
for d in range(4): A(f"v_pk_add_f32 v[{48+2*d}:{49+2*d}], v[{48+2*d}:{49+2*d}], v[{40+2*d}:{41+2*d}]")
A("s_waitcnt vmcnt(0)"); acc(6)
for d in range(4): A(f"v_cvt_pk_bf16_f32 v{56+d}, v{48+2*d}, v{49+2*d}")
A("s_nop 1\nv_permlane16_swap_b32 v56, v58\nv_permlane16_swap_b32 v57, v59")
A(f"buffer_store_dwordx4 v[56:59], v1, s[{SOUT}:{SOUT+3}], 0 offen")
if STAMP:
    A("s_waitcnt vmcnt(0)"); stamp("end")
    A("s_cmp_lg_u32 s3, 0\ns_cbranch_scc1 L_end")
    A(f"s_lshl_b32 s13, s2, 9\ns_add_u32 s13, s13, {hex(WS_STAMP)}\nv_lshlrev_b32 v253, 3, v0\nv_add_u32 v253, s13, v253")
    A(f"v_cmp_gt_u32 vcc, 48, v0\ns_nop 1\ns_mov_b64 exec, vcc")
    A(f"buffer_store_dwordx2 v[254:255], v253, s[{SWS}:{SWS+3}], 0 offen")
A("s_endpgm")

out = HEADER
out += "; @launch grid=(256,1,1) block=(512,1,1) lds=163840\n"
if STAMP:
    nm = {0: "t0"}
    for i, n_ in enumerate(lst): nm[i + 1 + (i + 1 >= 30)] = "L" + n_
    for i, n_ in enumerate(cst): nm[48 + i] = n_
    out += "; stampnames " + " ".join(f"{k}={x}" for k, x in nm.items()) + "\n"
out += f'.amdgcn_target "amdgcn-amd-amdhsa--gfx950"\n.text\n.globl {KN}\n.type {KN},@function\n' + A.text() + C.text() + "L_codeend:\n"
out += '.section .rodata,"a"\n' + kd(KN, 256)
open(sys.argv[1], "w").write(out)
```

```python
import sys, math, struct
from collections import defaultdict
from common import *
opts = dict(a.split("=") if "=" in a else (a, "1") for a in sys.argv[2:])
def oi(k, d): return int(opts.get(k, d))
STAMP = "stamp" in opts
NTK = "" if "nont" in opts else "nt"
MF = "v_mfma_f32_16x16x32_bf16"
KN = NAME + "_kernel"
WSB = int(opts.get('wsb', '0'), 0)
WS_P, WS_PART, WS_FLAG, WS_STAMP = WSB, WSB + 0x400000, WSB + 0xC00000, 0x9000000
SPIN = 1 << 18
K1 = 1024
JN = {'1': 's_add_u32 s9, s8, s11', '2': 's_lshl1_add_u32 s9, s11, s8', '0': 's_mov_b32 s9, s8'}[opts.get('jn', '2')]
FSH = oi('fsh', 10); WSH = FSH - 2 if FSH > 8 else 5
SSET = set(opts["sset"].split(",")) if "sset" in opts else None

U = lambda u: (u * 16 * K1, 16 * K1)
LOC = {}
def place(prefix, i0, units):
    for i, u in enumerate(units): LOC[f"{prefix}{i0+i}"] = U(u)
place("X", 0, [int(c) for c in opts.get("xu", "01230123")])
place("W", 0, [int(c) for c in opts.get("wu", "45674567")])
place("V", 0, [int(c) for c in opts.get("vu", "01289012")])
place("U", 0, [int(c) for c in opts.get("uu", "45674567")])
LOC["K0"], LOC["K1"] = U(8), U(9)
LOC["P0"] = LOC["X7"]
place("P", 1, [int(c) for c in opts.get("pu", "894")])
FIN = LOC["P0"][0]

C = Asm()
bars = []; first, free = {}, {}
q = []; pend = set(); dsn = [0]
def _ret(n):
    while len(q) > n:
        it = q.pop(0)[1]
        if it: pend.add(it)
def ds(ins, item=None):
    lim = 13 if STAMP else 15
    if len(q) >= lim: C(f"s_waitcnt lgkmcnt({lim-1})"); _ret(lim - 1)
    C(ins); dsn[0] += 1; q.append((dsn[0], item))
    if item:
        if item not in first: first[item] = len(bars) - 1
        free.pop(item, None)
    return dsn[0]
def need(*ids):
    pos = [k for k, (i, _) in enumerate(q) if i in ids]
    if pos:
        n = len(q) - 1 - max(pos); C(f"s_waitcnt lgkmcnt({n})"); _ret(n)
def drain():
    if q: C("s_waitcnt lgkmcnt(0)"); _ret(0)
def bar(name):
    if opts.get("diagslp") == name: C("s_sleep 5")
    bars.append(name); C("s_barrier"); cstamp(name)
    live = {it for _, it in q}
    for it in list(pend):
        if it not in live: free[it] = len(bars) - 1; pend.discard(it)
cst = []; CREG = list(range(32, 56, 2)) + [60, 62, 92, 94]
def cstamp(name):
    if STAMP and SSET is not None and name in SSET:
        i = len(cst); cst.append(name); assert i < 16
        if len(q) > 12: C("s_waitcnt lgkmcnt(12)"); _ret(12)
        C(f"s_mem{'real' if 'rt' in opts else ''}time s[{CREG[i]}:{CREG[i]+1}]")
I = lambda x: (lambda: C(x))
npad = [0]
PADS = [int(x) for x in opts.get("pads", "").split(",") if x] or ([-1] if "nopad" not in opts else [])
def pad():
    C(f"L_pad{npad[0]}:"); npad[0] += 1; C(f"s_cbranch_vccnz L_pad{npad[0]}")

VX, VW, LIN0, VOWN = 4, 8, 16, 17
TM = 18
ACC, BR0, PR, VWS = 24, 88, 112, 128
BR = [BR0 + 4*i for i in range(6)]
QB, SC, PB, VK = VWS + 96, VWS + 64, VWS + 48, VWS + 32
C("L_compute:")
C(f"s_setprio {oi('prio', 0)}")
srd_consts(C, [SWS])
C(f"""v_and_b32 v1, 15, v0
v_lshrrev_b32 v2, 4, v0
v_bfe_u32 v3, v0, 1, 3
v_xor_b32 v3, v3, v2
v_lshlrev_b32 v3, 4, v3
v_lshl_add_u32 v3, v1, 7, v3
s_lshl_b32 s70, s3, 12
v_add_u32 v{VX}, s70, v3
v_xor_b32 v{VX+1}, 64, v{VX}
v_add_u32 v{VX+2}, 0x20000, v3
v_xor_b32 v{VX+3}, 64, v{VX+2}
v_lshrrev_b32 v3, 1, v2
v_xor_b32 v3, v3, v1
v_lshlrev_b32 v3, 4, v3
v_lshl_add_u32 v3, v1, 8, v3
v_and_b32 v18, 1, v2
v_lshl_add_u32 v3, v18, 3, v3
s_lshr_b32 s13, s3, 1
s_lshl_b32 s13, s13, 14
s_add_u32 s13, s13, 0x20000
v_add_u32 v{VK}, s13, v3
v_lshlrev_b32 v{LIN0}, 4, v0
v_add_u32 v{VOWN}, s70, v{LIN0}
v_bfe_u32 v1, v0, 2, 2
v_and_b32 v3, 3, v0
v_lshlrev_b32 v3, 3, v3
v_lshl_add_u32 v19, v18, 2, v1
v_lshl_add_u32 v20, v2, 3, v1
v_lshlrev_b32 v20, 8, v20
v_lshl_add_u32 v20, v19, 5, v20
v_add_u32 v20, v20, v3
v_add_u32 v{VW}, 0x10000, v20""")
for i in range(1, 8): C(f"v_xor_b32 v{VW+i}, {i*32}, v{VW}\nv_xor_b32 v{VK+i}, {i*32}, v{VK}")
C(f"""s_lshl_b32 s13, s11, 2
s_add_u32 s13, s13, s9
s_lshl_b32 s13, s13, 3
s_add_u32 s13, s13, s4
s_lshl_b32 s65, s13, 15
s_lshl_b32 s14, s3, 13
s_add_u32 s65, s65, s14
s_lshl_b32 s66, s13, {FSH}
s_lshl_b32 s14, s3, {WSH}
s_add_u32 s66, s66, s14""")
for p in range(7):
    C(f"s_xor_b32 s13, s65, {(7-p) << 15}\ns_add_u32 s{80+p}, s13, {WS_PART + p*1024}")
    C(f"s_xor_b32 s13, s66, {(7-p) << FSH}\ns_add_u32 s{72+p}, s13, {WS_FLAG + p*4}")
C(f"""s_lshl_b32 s13, s11, 3
s_add_u32 s13, s13, s4
s_lshl_b32 s64, s13, 16
s_lshl_b32 s14, s8, 14
s_add_u32 s64, s64, s14
s_add_u32 s64, s64, {WS_P}
s_lshl_b32 s67, s11, {FSH+5}
s_lshl_b32 s14, s4, {FSH}
s_add_u32 s67, s67, s14
s_lshl_b32 s14, s8, 4
s_add_u32 s67, s67, s14
s_lshl_b32 s14, s3, 2
s_add_u32 s67, s67, s14
s_add_u32 s67, s67, {WS_FLAG + 128}""")
cs = struct.unpack("<I", struct.pack("<f", math.log2(math.e) / math.sqrt(128)))[0]
C(f"s_mov_b32 s68, {hex(cs)}\ns_mov_b32 s69, {hex(cs)}\ns_lshl_b32 s71, s3, 6")
C("s_waitcnt lgkmcnt(0)")
srd_ptrs(C, [SWS])
if PADS:
    C("s_waitcnt vmcnt(0)\ns_mov_b64 vcc, -1\ns_branch L_hole0"); C("L_back:"); C("s_mov_b64 vcc, 0")

WP = oi('wp', 1)
class Stream:
    def __init__(s_): s_.e = []; s_.fill = defaultdict(list); s_.before = defaultdict(list); s_.id = defaultdict(list); s_.hold = {}
    def rd(s_, m, k): s_.id[m].append(s_.e[m][0][k](BR[m % 6]))
    def prologue(s_, lo):
        for m in range(lo, lo + 6):
            for k in range(len(s_.e[m][0])): s_.rd(m, k)
    def run(s_, lo, hi, stop):
        for m in range(lo, hi):
            for f in s_.before.pop(m, []): f()
            cstamp(f'e{m}')
            if m in PADS: s_.fill[2*m].append(pad)
            assert len(s_.id[m]) == len(s_.e[m][0]), m
            for hh in range(2):
                a_, b_, d, fst, deps = s_.e[m][1][hh ^ (m & 1)]
                extra = s_.id[m+1] if (WP and m % 2 == 0 and m + 1 < hi and m > lo) else []
                need(*s_.id[m], *extra, *deps())
                R = v(BR[m % 6], 4)
                C(f"{MF} {v(d,4)}, {R if a_ is None else v(a_,4)}, {R if b_ is None else v(b_,4)}, {'0' if fst else v(d,4)}")
                if hh == 0 and m > lo and m + 5 < stop and len(s_.e[m+5][0]) == 2: s_.rd(m + 5, 1)
                if hh == 1 and m + 6 < stop: s_.rd(m + 6, 0)
                for f in s_.fill.pop(2*m + hh, []): f()
S = Stream(); pid = {}
def xaddr(a, ss): return (VX + ss + (2 if a >= 128*K1 else 0), a % 65536)
def x_rd(n, qt):
    it = f"X{n//2}"; r, o = xaddr(LOC[it][0], n & 1); assert LOC[it][0] < 65536
    return lambda: pid.__setitem__(("x", n, qt), ds(f"ds_read_b128 {v(PR+8*(n&1)+4*qt,4)}, v{r} offset:{o + qt*2048}", it))
for n in range(16):
    for mt in range(8):
        it = f"W{n//2}"
        rds = [lambda r, it=it, n=n, mt=mt, e=e: ds(f"ds_read_b64_tr_b16 {v(r+2*e,2)}, v{VW + (mt ^ (4*e))} offset:{LOC[it][0]-65536 + (n&1)*8192 + e*1024}", it) for e in range(2)]
        S.e.append((rds, [(None, PR + 8*(n&1) + 4*qt, ACC + 8*mt + 4*qt, n == 0, lambda n=n, qt=qt: [pid[("x", n, qt)]]) for qt in range(2)]))
    if n < 15:
        for qt in range(2): S.fill[2*(8*n + 2 + 2*qt)].append(x_rd(n + 1, qt))
    if n & 1 and n < 15: S.before[8*n + 2].append(lambda n=n: bar(f"B{(n+1)//2}"))
if oi("bk", 1): S.before[122].append(lambda: bar("BK"))
qk = [(kt, s_) for s_ in range(4) for kt in range(4)]
for kt, s_ in qk:
    rds = [lambda r, kt=kt, s_=s_, e=e: ds(f"ds_read_b64{'_tr_b16' if 'ktr' in opts else ''} {v(r+2*e,2)}, v{VK + 2*s_ + e} offset:{kt*4096}", "K") for e in range(2)]
    S.e.append((rds, [(None, QB + 16*qt + 4*s_, SC + 16*qt + 4*kt, s_ == 0, lambda: []) for qt in range(2)]))
for mt in range(8):
    for k, (qt, i) in enumerate([(0, 0), (0, 1), (1, 0), (1, 1)]):
        if "nocvt" not in opts: S.fill[2*123 + 4*mt + k].append(I(f"v_cvt_pk_bf16_f32 v{QB+16*qt+2*mt+i}, v{ACC+8*mt+4*qt+2*i}, v{ACC+8*mt+4*qt+2*i+1}"))
adr = [f"v_subrev_u32 v{VX+k}, s70, v{VX+k}" for k in range(2)] + [f"v_xor_b32 v{VW+k}, s71, v{VW+k}" for k in (0, 1, 4, 5)]
for k, x in enumerate(adr): S.fill[2*(117 + k) if k < 2 else 2*(130 + k)].append(I(x))
M = lambda qt: TM + 2*qt
E2 = 144
OA = VWS + 64
LW = {0: LIN0, 1: VW + 2, 2: VW + 3}
VZ, V1 = VW + 6, VW + 7
def u_rd(n, k):
    it = f"U{n//2}"; nt, e = k >> 1, k & 1
    return lambda: pid.__setitem__(("u", n, k), ds(f"ds_read_b64_tr_b16 {v(PR+8*(n&1)+4*nt+2*e,2)}, v{VW + (nt ^ (4*e))} offset:{LOC[it][0]-65536 + (n&1)*8192 + e*1024}", it))
def vwreg(s_, b, u, nt):
    return ACC + 8*(4*b + 2*u) + 4*nt if s_ in (0, 3) else VWS + 32*(s_ - 1) + 16*b + 8*u + 4*nt
def add_vw(n):
    m0 = len(S.e)
    for rt in range(8):
        it = f"V{n//2}"; r0, o = xaddr(LOC[it][0], n & 1)
        rds = [lambda r, it=it, r0=r0, o=o, rt=rt: ds(f"ds_read_b128 {v(r,4)}, v{r0} offset:{o + rt*2048}", it)]
        S.e.append((rds, [(None, PR + 8*(n&1) + 4*nt, ACC + 8*rt + 4*nt, n % 4 == 0, lambda n=n, nt=nt: [pid[("u", n, 2*nt)], pid[("u", n, 2*nt+1)]]) for nt in range(2)]))
    if n:
        for k in range(4): S.fill[2*(m0 - 6 + k)].append(u_rd(n, k))
        if n % 2 == 0: S.before[m0 - 6].append(lambda n=n: bar(f"B{8 + n//2}"))
    if n % 4 == 3:
        for rt in range(8):
            for k, (nt, i) in enumerate([(0, 0), (0, 1), (1, 0), (1, 1)]):
                S.fill[(2*(m0 + 3) + 4*rt + k) if (n in (3, 15) and oi("cvs", 1)) else 2*(m0 + rt + 4) + (k >> 1)].append(I(f"v_cvt_pk_bf16_f32 v{vwreg(n//4, rt>>2, (rt>>1)&1, nt)+2*(rt&1)+i}, v{ACC+8*rt+4*nt+2*i}, v{ACC+8*rt+4*nt+2*i+1}"))
NPQ = oi("npq", 2)
def add_pv(p, s_, u):
    it = "P0" if s_ == 0 else f"P{s_}" + "abcd"[p * NPQ // 8]; a = LOC[f"P{s_}"][0] + p*2048 + u*1024
    rds = [lambda r: ds(f"ds_read_b128 {v(r,4)}, v{LW[a // 65536]} offset:{a % 65536}", it)]
    S.e.append((rds, [(vwreg(s_, p >> 2, u, nt), None, OA + 8*p + 4*nt, s_ == 0 and u == 0, lambda: []) for nt in range(2)]))
for n in range(4): add_vw(n)
EP = len(S.e)
for b_ in range(2):
    for u in range(2):
        for p in range(4*b_, 4*b_ + 4): add_pv(p, 0, u)
for n in range(4, 16): add_vw(n)
E3 = len(S.e)
for p in range(8):
    for s_ in range(1, 4):
        for u in range(2): add_pv(p, s_, u)
for s_ in range(1, 4):
    for hf in range(NPQ): LOC[f"P{s_}{'abcd'[hf]}"] = (LOC[f"P{s_}"][0] + hf*16384//NPQ, 16384//NPQ)
for hf in range(NPQ): S.before[E3 + 48*hf//NPQ - 6].append(lambda hf=hf: bar("P" + "abcd"[hf]))
for k, x in enumerate([f"v_add_u32 v{LW[1]}, 0x10000, v{LIN0}", f"v_add_u32 v{LW[2]}, 0x20000, v{LIN0}", f"v_mov_b32 v{VZ}, 0", f"v_mov_b32 v{V1}, -1", f"v_lshlrev_b32 v1, {FSH+3}, v0"]):
    S.fill[2*((EP if oi('sovl', 0) else E2) + 6 + k) + 1].append(I(x))
vmq = []
def flag(p):
    C(f"s_waitcnt vmcnt({len(vmq) - 1 - vmq.index(f'D{p}')})\ns_mov_b64 exec, 1")
    C(f"buffer_store_dword v{V1}, v{VZ}, s[{SWS}:{SWS+3}], s{72+p} offen sc1\ns_mov_b64 exec, -1"); vmq.append(f"F{p}")
FLAG_LAG = oi("flag", 4)
for p in range(7):
    g0 = 2*(E3 + 6*(p+1) + 2); r = PR + 4*(p & 3)
    if p >= oi("fastsend", 7):
        ge = 2*(E3 + 6*(p+1) + 1) + 1
        S.fill[ge].append(I("s_nop 1"))
        for i in range(4): S.fill[ge].append(I(f"v_cvt_pk_bf16_f32 v{r+i}, v{OA+8*p+2*i}, v{OA+8*p+2*i+1}"))
        S.fill[ge].append(lambda p=p, r=r: (C(f"buffer_store_dwordx4 {v(r,4)}, v{LIN0}, s[{SWS}:{SWS+3}], s{80+p} offen sc1"), vmq.append(f"D{p}")))
        if p >= FLAG_LAG: S.fill[g0 + 6].append(lambda p=p: flag(p - FLAG_LAG))
        continue
    for i in range(4): S.fill[g0 + 1 + (i >> 1)].append(I(f"v_cvt_pk_bf16_f32 v{r+i}, v{OA+8*p+2*i}, v{OA+8*p+2*i+1}"))
    S.fill[g0 + 4].append(lambda p=p, r=r: (C(f"buffer_store_dwordx4 {v(r,4)}, v{VZ if 'dg2' in opts and p < 6 else LIN0}, s[{SWS}:{SWS+3}], s{80+p} offen sc1"), vmq.append(f"D{p}")))
    if p >= FLAG_LAG: S.fill[g0 + 6].append(lambda p=p: flag(p - FLAG_LAG))
if oi("sovl", 0):
    sm = []
    def op(x, c=4): sm.append((c, I(x)))
    for qt in range(2): op(f"v_max3_f32 v{M(qt)}, v{SC+16*qt}, v{SC+16*qt+1}, v{SC+16*qt+2}", 5)
    for i in range(3, 15, 2):
        for qt in range(2): op(f"v_max3_f32 v{M(qt)}, v{M(qt)}, v{SC+16*qt+i}, v{SC+16*qt+i+1}", 5)
    for qt in range(2): op(f"v_max_f32 v{M(qt)}, v{M(qt)}, v{SC+16*qt+15}")
    def xred(o_, fin, fc):
        a_, b_ = M(0), M(1)
        op("s_nop 1", 8); op(f"v_permlane32_swap_b32 v{a_}, v{b_}", 8); op(f"{o_} v{a_}, v{a_}, v{b_}"); op(f"v_mov_b32 v{b_}, v{a_}")
        op("s_nop 1", 8); op(f"v_permlane16_swap_b32 v{a_}, v{b_}", 8); op(f"{o_} v{a_}, v{a_}, v{b_}"); op(fin[0], fc); op(fin[1], fc)
        op("s_nop 1", 8); op(f"v_permlane32_swap_b32 v{a_}, v{b_}", 8)
    xred("v_max_f32", [f"v_mul_f32 v{M(1)}, s68, v{M(0)}", f"v_mul_f32 v{M(0)}, s68, v{M(0)}"], 4)
    SM = [M(0) + 1, M(1) + 1]
    op(f"v_fma_f32 v{SC}, v{SC}, s68, -v{M(0)}", 5)
    for i in range(32):
        op(f"v_exp_f32 v{SC+i}, v{SC+i}", 8)
        if i < 31: op(f"v_fma_f32 v{SC+i+1}, v{SC+i+1}, s68, -v{M((i+1)>>4)}", 5)
        j = i - 1
        if j >= 0 and j % 16: op(f"v_add_f32 v{SM[j>>4]}, v{SM[j>>4] if j % 16 > 1 else SC+j-1}, v{SC+j}")
    op(f"v_mov_b32 v{M(0)}, v{SM[0]}"); op(f"v_add_f32 v{M(1)}, v{SM[1]}, v{SC+31}")
    xred("v_add_f32", [f"v_rcp_f32 v{M(1)}, v{M(0)}", f"v_rcp_f32 v{M(0)}, v{M(0)}"], 8)
    wr = {}
    for t in range(4):
        for i in range(8): op(f"v_mul_f32 v{SC+8*t+i}, v{M(t>>1)}, v{SC+8*t+i}")
        for i in range(4): op(f"v_cvt_pk_bf16_f32 v{PB+4*t+i}, v{SC+8*t+2*i}, v{SC+8*t+2*i+1}", 5)
        sm.append((8, lambda t=t: wr.__setitem__("l", ds(f"ds_write_b128 v{VOWN}, {v(PB+4*t,4)} offset:{LOC['P0'][0] + t*1024}"))))
    sm.append((0, lambda: cstamp("sm")))
    g_lo, g_hi = 2*E2 - 1, 2*(E2 + oi("smend", 23))
    tot = sum(c for c, _ in sm); acc_ = 0
    for c, f in sm:
        S.fill[g_lo + int(acc_ * (g_hi - g_lo) / tot)].append(f); acc_ += c
    assert E2 + oi("smend", 23) < EP - 6
    S.before[EP - 6].append(lambda: (need(wr["l"]), bar("BP")))
    PUBC = oi("pubc", oi("smend", 23) + 1); EARLY8 = 1
    for t in range(4):
        S.fill[2*(E2 + PUBC + oi("pubd", 0)*t)].append(I(f"buffer_store_dwordx4 {v(PB+4*t,4)}, v{VOWN}, s[{SWS}:{SWS+3}], s64 offen offset:{t*1024} sc1"))
    S.fill[2*(E2 + oi("flgc", 66))].append(I(f"s_waitcnt vmcnt(0)\ns_mov_b64 exec, 15\nbuffer_store_dword v{V1}, v1, s[{SWS}:{SWS+3}], s67 offen sc1\ns_mov_b64 exec, -1"))

    for k in range(4): S.fill[2*(E2 - 5 + k)].append(u_rd(0, k))
    S.before[E2 - 6].append(lambda: bar("B8"))
    if oi("bq", 0): S.before[E2 + 1].append(lambda: bar("BQ"))
    bar("B0"); C("s_waitcnt vmcnt(0)")
    x_rd(0, 0)(); x_rd(0, 1)(); S.prologue(0)
    S.run(0, len(S.e), len(S.e))
    assert not S.fill and not S.before, (dict(S.fill), dict(S.before))
else:
    bar("B0"); C("s_waitcnt vmcnt(0)")
    x_rd(0, 0)(); x_rd(0, 1)(); S.prologue(0)
    S.run(0, E2, E2)
    cstamp("qk")
    if oi("bq", 0): bar("BQ")
    C("s_nop 2")
    for qt in range(2): C(f"v_max3_f32 v{M(qt)}, v{SC+16*qt}, v{SC+16*qt+1}, v{SC+16*qt+2}")
    for i in range(3, 15, 2):
        for qt in range(2): C(f"v_max3_f32 v{M(qt)}, v{M(qt)}, v{SC+16*qt+i}, v{SC+16*qt+i+1}")
    for qt in range(2): C(f"v_max_f32 v{M(qt)}, v{M(qt)}, v{SC+16*qt+15}")
    def xred(op, fin, fill):
        a_, b_ = M(0), M(1)
        def gap(n):
            for _ in range(n): fill.pop(0)() if fill else C("s_nop 0")
        gap(2); C(f"v_permlane32_swap_b32 v{a_}, v{b_}\n{op} v{a_}, v{a_}, v{b_}\nv_mov_b32 v{b_}, v{a_}")
        gap(2); C(f"v_permlane16_swap_b32 v{a_}, v{b_}\n{op} v{a_}, v{a_}, v{b_}\n{fin[0]}\n{fin[1]}")
        gap(2); C(f"v_permlane32_swap_b32 v{a_}, v{b_}")
    xred("v_max_f32", [f"v_mul_f32 v{M(1)}, s68, v{M(0)}", f"v_mul_f32 v{M(0)}, s68, v{M(0)}"], [])
    pkf = lambda i: f"v_pk_fma_f32 {v(SC+2*i,2)}, {v(SC+2*i,2)}, s[68:69], {v(M(i>>3),2)} op_sel_hi:[1,1,0] neg_lo:[0,0,1] neg_hi:[0,0,1]"
    SM = [TM + 4, 2]
    C(pkf(0))
    for i in range(16):
        C(f"v_exp_f32 v{SC+2*i}, v{SC+2*i}")
        if i < 15: C(pkf(i + 1))
        C(f"v_exp_f32 v{SC+2*i+1}, v{SC+2*i+1}")
        j = i - 1
        if j >= 0 and j % 8: C(f"v_pk_add_f32 {v(SM[j>>3],2)}, {v(SM[j>>3],2) if j % 8 > 1 else v(SC+2*j-2,2)}, {v(SC+2*j,2)}")
    C(f"v_add_f32 v{M(0)}, v{SM[0]}, v{SM[0]+1}\nv_pk_add_f32 {v(SM[1],2)}, {v(SM[1],2)}, {v(SC+30,2)}\nv_add_f32 v{M(1)}, v{SM[1]}, v{SM[1]+1}")
    EARLY8 = oi("early8", 0); pro = []
    if EARLY8:
        bar("B8")
        pro = [u_rd(0, k) for k in range(4)] + [lambda m=m: S.rd(m, 0) for m in range(E2, E2 + 6)]
    xred("v_add_f32", [f"v_rcp_f32 v{M(1)}, v{M(0)}", f"v_rcp_f32 v{M(0)}, v{M(0)}"], pro)
    for f in pro: f()
    PUBC = oi("pubc", -1)
    pst = lambda t: f"buffer_store_dwordx4 {v(PB+4*t,4)}, v{VOWN}, s[{SWS}:{SWS+3}], s64 offen offset:{t*1024} sc1"
    for t in range(4):
        for i in range(8*t, 8*t + 8, 2): C(f"v_pk_mul_f32 {v(SC+i,2)}, {v(SC+i,2)}, {v(M(t>>1),2)} op_sel_hi:[1,0]")
        for i in range(4): C(f"v_cvt_pk_bf16_f32 v{PB+4*t+i}, v{SC+8*t+2*i}, v{SC+8*t+2*i+1}")
        lastw = ds(f"ds_write_b128 v{VOWN}, {v(PB+4*t,4)} offset:{LOC['P0'][0] + t*1024}")
        if PUBC == -3: C(pst(t))
    S.before[E2 + 10].insert(0, lambda: need(lastw))
    cstamp("sm")
    if PUBC == -2:
        for t in range(4): C(pst(t))
    if not EARLY8:
        if not PUBC: drain()
        bar("B8")
        for k in range(4): u_rd(0, k)()
        S.prologue(E2)
    if PUBC == -1:
        for t in range(4): C(pst(t))
    if PUBC > 0:
        for t in range(4): S.fill[2*(E2 + PUBC + oi("pubd", 0)*t)].append(I(pst(t)))
    if PUBC: S.fill[2*(E2 + oi("flgc", 34))].append(I(f"s_waitcnt vmcnt(0)\ns_mov_b64 exec, 15\nbuffer_store_dword v{V1}, v1, s[{SWS}:{SWS+3}], s67 offen sc1\ns_mov_b64 exec, -1"))
    S.run(E2, len(S.e), len(S.e))
    assert not S.fill and not S.before, (dict(S.fill), dict(S.before))
cstamp("T")
C("s_nop 6")
OWNP = LOC["U7"][0]
C(f"v_add_u32 v1, s70, v{LW[OWNP // 65536]}")
for nt in range(2): ds(f"ds_write_b128 v1, {v(OA+56+4*nt,4)} offset:{OWNP % 65536 + nt*1024}")
ZE = oi("ze", 1)
if ZE == 1: drain(); bar("Z")
for p in range(7):
    if f"F{p}" not in vmq: flag(p)
cstamp("fl")
if ZE != 1: drain(); bar("Z")
assert free["U7"] <= len(bars) - 2
if STAMP:
    C("s_cmp_lg_u32 s3, 0\ns_cbranch_scc1 L_end")
    C(f"s_lshl_b32 s13, s2, 9\ns_add_u32 s13, s13, {hex(WS_STAMP + 48*8)}")
    for i in range(len(cst)):
        C(f"s_waitcnt lgkmcnt(0)\nv_mov_b32 v2, s{CREG[i]}\nv_mov_b32 v3, s{CREG[i]}\nbuffer_store_dwordx2 v[2:3], v{VZ}, s[{SWS}:{SWS+3}], s13 offen offset:{8*i}")
C("L_end:"); C("s_endpgm")
if PADS: C(f"L_pad{npad[0]}:"); C("s_branch L_back")
for k in ("K0", "K1"): first[k], free[k] = first["K"], free["K"]
del first["K"], free["K"], first["P0"]
free["X7"] = 999

A = Asm()
lst = []
def stamp(name):
    if STAMP and (SSET is None or ("L" + name) in SSET):
        if name not in lst: lst.append(name)
        i = lst.index(name) + 1; i += (i >= 30); assert i < 48
        A(f"s_memtime s[98:99]\ns_memrealtime s[96:97]\ns_waitcnt lgkmcnt(0)\nv_writelane_b32 v254, s98, {i}\nv_writelane_b32 v255, s96, {i}")
if "noal" not in opts: A(".p2align 12")
A(".p2align 8"); A(f"{KN}:")
A(f"s_load_dwordx2 s[{SX}:{SX+1}], s[0:1], 0\ns_load_dwordx2 s[{SWQ}:{SWQ+1}], s[0:1], 24\ns_load_dwordx16 s[16:31], s[0:1], 0")
A("s_cmp_ge_u32 s2, 256\ns_cbranch_scc1 L_end")
if STAMP: A("s_memtime s[94:95]\ns_memrealtime s[92:93]")
A(f"""v_readfirstlane_b32 s3, v0
s_and_b32 s4, s2, 7
s_bfe_u32 s8, s2, 0x20003
s_lshr_b32 s11, s2, 5
s_bitcmp1_b32 s3, 8
s_cbranch_scc1 L_loader""")
NPF = oi("npf", 22)
A("s_lshr_b32 s3, s3, 6\nv_and_b32 v0, 63, v0\ns_getpc_b64 s[6:7]")
A("L_pc:")
A(f"s_lshl_b32 s13, s8, 2\ns_add_u32 s13, s13, s3\ns_mul_i32 s13, s13, {NPF}*64")
A(f"v_min_u32 v1, {NPF-1}, v0\nv_lshlrev_b32 v1, 6, v1\nv_add_u32 v1, s13, v1")
A(f"v_min_u32 v1, L_codeend-L_pc-4, v1")
A("global_load_dword v130, v1, s[6:7]")
A(f"{JN}\ns_and_b32 s9, s9, 3\ns_branch L_compute")
A("L_loader:")
if "lprio" in opts: A(f"s_setprio {opts['lprio']}")
srd_consts(A, [SX, SWQ])
ROT = {"8": "s_lshl_b32 s12, s8, 1\ns_add_u32 s12, s12, s11", "8h": "s_lshl_b32 s12, s8, 1\ns_add_u32 s12, s12, s11\ns_add_u32 s12, s12, s4",
       "4": "s_add_u32 s12, s8, s11\ns_lshl_b32 s12, s12, 1", "4h": "s_add_u32 s12, s8, s11\ns_lshl_b32 s12, s12, 1\ns_add_u32 s12, s12, s4",
       "w8": "s_add_u32 s12, s4, s11", "w8x2": "s_lshl_b32 s12, s8, 2\ns_add_u32 s12, s12, s11\ns_add_u32 s12, s12, s4",
       "w4": "s_lshl_b32 s12, s11, 1\ns_add_u32 s12, s12, s4", "w4x2": "s_lshl1_add_u32 s12, s8, s11\ns_lshl1_add_u32 s12, s12, s4",
       "2": "s_add_u32 s12, s8, s11\ns_lshl_b32 s12, s12, 2", "2h": "s_add_u32 s12, s8, s11\ns_lshl_b32 s12, s12, 2\ns_add_u32 s12, s12, s4"}[opts.get("rot", "w4x2")]
A(f"""v_bfe_u32 v6, v0, 4, 4
v_bfe_u32 v1, v0, 3, 5
v_xor_b32 v2, v6, v0
v_and_b32 v2, 7, v2
v_lshlrev_b32 v2, 4, v2
v_lshl_add_u32 v8, v1, 10, v2
v_bfe_u32 v5, v0, 7, 1
v_lshlrev_b32 v5, 2, v5
v_xor_b32 v5, v5, v6
v_lshlrev_b32 v5, 1, v5
v_xor_b32 v5, v5, v0
v_and_b32 v5, 15, v5
v_lshlrev_b32 v5, 4, v5
v_lshl_add_u32 v9, v6, 13, v5
s_xor_b32 s74, s4, 7
s_lshl_b32 s13, s74, 14
s_and_b32 s14, s13, 0x4000
v_xor_b32 v8, s14, v8
s_xor_b32 s13, s13, s14
s_lshl_b32 s64, s11, 17
s_add_u32 s64, s64, s13
s_lshl2_add_u32 s10, s4, s8
s_lshl_b32 s65, s10, 8
{ROT}
s_bfe_u32 s3, s3, 0x20006
s_lshl_b32 s67, s3, 10""")
KWAIT = [True]
if STAMP: A("s_waitcnt lgkmcnt(0)\nv_mov_b32 v254, -1\nv_mov_b32 v255, -1\nv_writelane_b32 v254, s94, 0\nv_writelane_b32 v255, s92, 0\ns_getreg_b32 s92, hwreg(HW_REG_XCC_ID)\ns_and_b32 s92, s92, 7\nv_writelane_b32 v254, s92, 30")
stamp("go")
def late_setup():
    srd_consts(A, [SK, SV, SWO, SOUT, SDBG, SWS]); srd_ptrs(A, [SK, SV, SWO, SOUT, SDBG, SWS])
    A(f"""v_lshl_add_u32 v11, v1, 8, v2
v_and_b32 v0, 63, v0
v_and_b32 v3, 7, v0
v_and_b32 v4, 15, v0
s_lshr_b32 s5, s2, 3
{JN}
s_and_b32 s9, s9, 3
s_lshl_b32 s13, s11, {FSH+5}
s_lshl_b32 s14, s4, {FSH}
s_add_u32 s13, s13, s14
s_add_u32 s79, s13, {WS_FLAG}
s_lshl_b32 s14, s9, {FSH+3}
s_add_u32 s77, s79, s14
v_mov_b32 v17, 0
v_lshl_add_u32 v12, v6, 10, v5
v_xor_b32 v5, v6, v4
v_lshlrev_b32 v5, 4, v5
v_lshl_add_u32 v10, v6, 8, v5
v_lshlrev_b32 v13, 4, v0
s_lshl_b32 s69, s11, 20
s_lshr_b32 s13, s74, 2
s_lshl_b32 s13, s13, 19
s_add_u32 s69, s69, s13
s_lshl_b32 s13, s10, 14
s_add_u32 s66, s69, s13
s_lshl_b32 s13, s4, 16
s_add_u32 s69, s69, s13
s_lshl_b32 s70, s4, 19
s_lshl_b32 s13, s9, 8
s_add_u32 s70, s70, s13
s_bfe_u32 s71, s11, {hex(0x10000 | oi('flipbit', 2))}
s_lshl_b32 s72, s11, 3
s_add_u32 s72, s72, s4
s_lshl_b32 s73, s72, 16
s_add_u32 s73, s73, {WS_P}
s_lshl_b32 s13, s3, 12
v_add_u32 v14, s13, v13
s_lshl_b32 s14, s8, 4
s_add_u32 s79, s79, s14
s_lshl_b32 s14, s3, 2
s_add_u32 s79, s79, s14
v_lshlrev_b32 v7, {FSH+3}, v0
v_mov_b32 v15, -1
v_lshlrev_b32 v19, 2, v3
s_lshl_b32 s13, s11, 5
v_add_u32 v19, s13, v19
s_mov_b32 s76, 0""")
def load_ops(it):
    k, a = it[0], LOC[it][0]; i = int(it[1])
    def dma(vo, srd, soff, lds, fl=""):
        if it in opts.get("nt", "").split(",") or it[0] in opts.get("nt", "").split(","): fl += " nt"
        return f"s_add_u32 m0, s67, {lds}\n{soff}\nbuffer_load_dwordx4 v{vo}, s[{srd}:{srd+3}], s68 offen {fl} lds"
    if "dry" in opts and not (k in "XW" and i < 4) and k != "K": return "", []
    if k == "X":
        return (f"s_add_u32 s13, s12, {i}\ns_and_b32 s13, s13, 7\ns_lshl_b32 s14, s13, 7\ns_add_u32 s14, s14, s64",
                [dma(8, SX, f"s_xor_b32 s68, s14, {hex(qq*0x8000)}", a + qq*4096) for qq in range(4)])
    if k == "W":
        return (f"s_add_u32 s13, s12, {i}\ns_and_b32 s13, s13, 7\ns_lshl_b32 s15, s13, 19\ns_add_u32 s15, s15, s65",
                [dma(9, SWQ, f"s_add_u32 s68, s15, {qq*16*8192}", a + qq*4096, "nt" if "wnt" in opts and i == 0 else "") for qq in range(4)])
    if k == "K":
        return ("", [dma(10, SK, f"s_xor_b32 s68, s66, {hex(qq*4096 + i*0x80000)}", a + qq*4096, NTK) for qq in range(4)])
    hd = f"s_add_u32 s13, s8, {i>>1}\ns_and_b32 s13, s13, 3\ns_xor_b32 s75, s71, {i&1}\n"
    if k == "V":
        return (hd + "s_lshl_b32 s13, s13, 14\ns_lshl_b32 s75, s75, 7\ns_add_u32 s14, s13, s75\ns_add_u32 s14, s14, s69",
                [dma(11, SV, f"s_xor_b32 s68, s14, {hex((qq&1)*8192 + (qq>>1)*0x80000)}", a + qq*4096) for qq in range(4)])
    if k == "U":
        return (hd + "s_lshl_b32 s13, s13, 17\ns_lshl_b32 s75, s75, 16\ns_add_u32 s15, s13, s75\ns_add_u32 s15, s15, s70",
                [dma(12, SWO, f"s_add_u32 s68, s15, {qq*16*1024}", a + qq*4096) for qq in range(4)])
    return (f"s_add_u32 s13, s8, {i}\ns_and_b32 s13, s13, 3\ns_lshl_b32 s13, s13, 14\ns_add_u32 s15, s13, s73\ns_add_u32 s15, s15, s67",
            [dma(13, SWS, f"s_add_u32 s68, s15, {'abcd'.index(it[2])*16384//NPQ + qq*4096}", a + qq*4096, "sc1") for qq in range(4//NPQ)])
lbl = [0]
class Loader:
    def __init__(s_): s_.n = 0; s_.last = {}; s_.cur = -1; s_.occ = []; s_.done = set(); s_.landed = -2
    def copy(s_):
        o = Loader(); o.__dict__.update({k: (x.copy() if hasattr(x, "copy") else x) for k, x in s_.__dict__.items()}); return o
    def wait(s_, names, note=True):
        hi = max(s_.last[i] for i in names)
        if note and hi <= s_.landed: return
        A(f"s_waitcnt vmcnt({min(s_.n - 1 - hi, 63)})")
        if note: s_.landed = hi
    def claim(s_, x):
        lo, hi = LOC[x][0], LOC[x][0] + LOC[x][1]
        for (a_, b_, it) in s_.occ:
            if a_ < hi and lo < b_: assert free[it] <= s_.cur, f"WAR: {x} after {bars[s_.cur]} but {it} free at {free[it]}"
        s_.occ = [o for o in s_.occ if not (o[0] >= lo and o[1] <= hi)] + [(lo, hi, x)]
        if x[0] == "P": assert "pw" in s_.done
    def step(s_, x):
        s_.done.add(x)
        if x == "setup": late_setup()
        elif x in bars:
            s_.cur += 1; assert bars[s_.cur] == x, (x, bars[s_.cur])
            nd = [i for i, f in first.items() if f == s_.cur]
            if nd: s_.wait(nd)
            A("s_barrier"); stamp(x)
        elif x == "clr":
            assert "setup" in s_.done
            lbl[0] += 1; s_.last["clr"] = s_.n - 1
            A(f"s_cmp_lg_u32 s3, 0\ns_cbranch_scc1 L_k{lbl[0]}")
            if FSH == 8: A(f"v_lshlrev_b32 v1, 2, v0\nbuffer_store_dword v17, v1, s[{SWS}:{SWS+3}], s77 offen sc1")
            else:
                assert FSH == 10
                A(f"v_lshlrev_b32 v1, 4, v0\nv_mov_b32 v28, 0\nv_mov_b32 v29, 0\nv_mov_b32 v30, 0\nv_mov_b32 v31, 0\nbuffer_store_dwordx4 v[28:31], v1, s[{SWS}:{SWS+3}], s77 offen sc1")
            A(f"L_k{lbl[0]}:")
        elif x.startswith("pf"):
            lo = int(x[2:] or 0)
            A(f"s_sub_u32 s13, s77, {WS_FLAG}\ns_lshl_b32 s13, s13, 7\ns_lshl_b32 s14, s3, 13\ns_add_u32 s13, s13, s14\ns_add_u32 s14, s13, {WS_PART}\ns_add_u32 s15, s14, 4096")
            A("v_mov_b32 v24, -1\nv_mov_b32 v25, -1\nv_mov_b32 v26, -1\nv_mov_b32 v27, -1\nv_lshlrev_b32 v13, 4, v0")
            for p in range(lo, 7):
                A(f"buffer_store_dwordx4 v[24:27], v13, s[{SWS}:{SWS+3}], {'s14' if p < 4 else 's15'} offen offset:{(p&3)*1024} sc1"); s_.n += 1
            s_.last["pf"] = s_.n - 1
        elif x == "atm":
            lbl[0] += 1
            A(f"s_cmp_lg_u32 s3, 0\ns_cbranch_scc1 L_k{lbl[0]}"); s_.wait(["clr"], False)
            A(f"s_lshl_b32 s13, s72, 2\nv_mov_b32 v2, 1\ns_mov_b64 exec, 1\nbuffer_atomic_add v2, v17, s[{SDBG}:{SDBG+3}], s13 offen\ns_mov_b64 exec, -1"); A(f"L_k{lbl[0]}:")
        elif x == "ci":
            A(f"buffer_load_dword v20, v19, s[{SDBG}:{SDBG+3}], 0 offen sc1"); s_.last["ci"] = s_.n; s_.n += 1
        elif x == "cw":
            assert s_.cur < bars.index("B10" if oi("flgc", 34) >= 42 else "B9")
            lbl[0] += 1; k = lbl[0]; s_.wait(["ci"])
            A(f"v_cmp_gt_u32 vcc, 4, v20\ns_cbranch_vccz L_lr{k}"); A(f"L_ll{k}:")
            A(f"s_sleep 8\nbuffer_load_dword v20, v19, s[{SDBG}:{SDBG+3}], 0 offen sc1\ns_add_u32 s76, s76, 1\ns_waitcnt vmcnt(0)\ns_cmp_ge_u32 s76, {SPIN}\ns_cbranch_scc1 L_lr{k}\nv_cmp_gt_u32 vcc, 4, v20\ns_cbranch_vccnz L_ll{k}")
            A(f"L_lr{k}:")
        elif x == "pr":
            assert s_.cur >= bars.index("B9" if EARLY8 else "B8")
            for t in range(4): A(f"ds_read_b128 {v(32+4*t,4)}, v14 offset:{LOC['P0'][0] + t*1024}")
        elif x == "pub":
            assert "pr" in s_.done
            A(f"s_lshl_b32 s13, s8, 14\ns_add_u32 s68, s13, s73\ns_waitcnt lgkmcnt(0)")
            for t in range(4): A(f"buffer_store_dwordx4 {v(32+4*t,4)}, v14, s[{SWS}:{SWS+3}], s68 offen offset:{t*1024} sc1")
            s_.n += 4; s_.last["pub"] = s_.n - 1
        elif x == "flg":
            assert "cw" in s_.done; s_.wait(["pub"])
            A(f"s_mov_b64 exec, 15\nbuffer_store_dword v15, v7, s[{SWS}:{SWS+3}], s79 offen offset:128 sc1\ns_mov_b64 exec, -1"); s_.n += 1; stamp(x)
        elif x == "pi": A(f"s_add_u32 s78, s77, 128\ns_load_dwordx16 s[80:95], s[30:31], s78 glc")
        elif x == "pw":
            assert PUBC or "flg" in s_.done; lbl[0] += 1; k = lbl[0]
            red = "".join(f"s_and_b64 s[80:81], s[80:81], s[{i}:{i+1}]\n" for i in range(82, 96, 2)) + "s_and_b32 s80, s80, s81\n"
            A(f"s_waitcnt lgkmcnt(0)\n{red}s_cbranch_scc1 L_lr{k}"); A(f"L_ll{k}:")
            A(f"s_load_dwordx16 s[80:95], s[30:31], s78 glc\ns_add_u32 s76, s76, 1\ns_waitcnt lgkmcnt(0)\ns_cmp_ge_u32 s76, {SPIN}\ns_cbranch_scc1 L_lr{k}\n{red}s_cbranch_scc0 L_ll{k}")
            A(f"L_lr{k}:"); stamp(x)
        else:
            its = [f"X{x[1:]}", f"W{x[1:]}"] if x[0] == "S" and int(x[1:]) < 8 else [f"V{int(x[1:])-8}", f"U{int(x[1:])-8}"] if x[0] == "S" else [x]
            ops = []
            for it in its: s_.claim(it); st, o = load_ops(it); A(st); ops.append(o)
            if KWAIT[0]: ops[0][0] = ops[0][0].replace("buffer_load", "s_waitcnt lgkmcnt(0)\nbuffer_load"); KWAIT[0] = False
            if "seq" in opts and its[0][0] == "X":
                for o in ops:
                    for z in o: A(z); s_.n += 1
            else:
                for k in range(4):
                    for it, o in zip(its, ops):
                        if k < len(o): A(o[k]); s_.n += 1
            for it in its: s_.last[it] = s_.n - 1
    def sigof(s_): return (s_.cur, tuple(sorted((i, min(s_.n - k, 64)) for i, k in s_.last.items() if (first.get(i, -1) > s_.cur and k > s_.landed) or (i == "ci" and "cw" not in s_.done) or (i == "pub" and "flg" not in s_.done) or (i == "clr" and "atm" not in s_.done))), tuple(sorted(s_.occ)), tuple(sorted(x for x in s_.done if x[0].islower())))

DEF = ("S0 setup S1 clr B0 S2 B1 0:atm 0:K0 0:K1 S3 B2 S4 B3 1:atm 1:K0 1:K1 S5 B4 S6 B5 S7 B6 S8 B7 S9 BK ci U2 B8 cw B9 V2 S11 B10 S12 B11 S13 B12 S14 B13 pi S15 B14 pw "
       "P1a P2a P3a B15 P1b P2b P3b Pa Pb")
sched = opts.get("sched", DEF).replace("_", " ").split()
if PUBC: sched = [x for x in sched if x not in ("pr", "pub", "flg")]
NG = len({x.split(":")[0] for x in sched if ":" in x})
L0 = Loader()
k0 = min([i for i, x in enumerate(sched) if ":" in x] + [len(sched)])
for i in range(k0): L0.step(sched[i])
k1 = max([i for i, x in enumerate(sched) if ":" in x] + [k0 - 1]) + 1
def rung(gi, hi):
    Lg = L0.copy()
    for x in sched[k0:hi]:
        if ":" not in x or int(x.split(":")[0]) == gi: Lg.step(x.split(":")[-1])
    return Lg
Lg = L0
if NG:
    pb = oi("parbit", 4)
    A({2: f"s_bfe_u32 s78, s5, {hex(0x10000 | pb)}", 4: f"s_bfe_u32 s78, s5, {hex(0x20000 | pb)}", 3: "s_mul_i32 s78, s5, 3\ns_lshr_b32 s78, s78, 5"}[NG])
    while True:
        sa, sl = len(A.lines), lbl[0]
        sg = {rung(gi, k1).sigof() for gi in range(NG)}
        del A.lines[sa:]; lbl[0] = sl
        if len(sg) == 1: break
        k1 += 1; assert k1 <= len(sched)
    for gi in range(NG):
        if gi: A(f"L_g{gi}:")
        if gi < NG - 1: A(f"s_cmp_lg_u32 s78, {gi}\ns_cbranch_scc1 L_g{gi+1}")
        Lg = rung(gi, k1)
        if gi < NG - 1: A("s_branch L_merge")
        if gi == 0 and PADS: A("L_hole0:"); A("s_branch L_holem")
        if gi == NG - 1 and PADS: A("s_branch L_merge"); A("L_holem:"); A("s_branch L_hole1")
    A("L_merge:")
    for x in sched[k1:]: Lg.step(x)
assert Lg.cur == len(bars) - 2
if "show" in opts:
    for it in first: print(it, "first", bars[first[it]], "free", bars[free[it]] if free.get(it, 999) < 999 else None)
A(f"""s_lshl_b32 s13, s11, 2
s_add_u32 s13, s13, s9
s_lshl_b32 s13, s13, 3
s_add_u32 s13, s13, s4
s_lshl_b32 s14, s13, 2
s_add_u32 s14, s14, s3
s_lshl_b32 s14, s14, 13
s_add_u32 s14, s14, {WS_PART}
s_add_u32 s15, s14, 4096
s_lshl_b32 s75, s3, {WSH}
s_add_u32 s13, s77, s75
s_lshl_b32 s75, s3, 6
s_lshl_b32 s77, s9, 8
s_add_u32 s75, s75, s77
s_lshl_b32 s76, s72, 4
v_add_u32 v1, s76, v4
v_lshlrev_b32 v1, 10, v1
v_bfe_u32 v2, v0, 4, 1
v_lshl_add_u32 v1, v2, 5, v1
v_lshrrev_b32 v2, 5, v0
v_lshl_add_u32 v1, v2, 4, v1
v_add_u32 v1, s75, v1
v_add_u32 v14, {OWNP}, v14
v_and_b32 v22, 7, v0
v_lshlrev_b32 v22, 2, v22
s_mov_b32 s77, 0xffff0000
s_mov_b32 s76, 0""")
def acc(p):
    for d in range(4):
        r = 64 + 4*p + d
        if p == 0: A(f"v_lshlrev_b32 v{48+2*d}, 16, v{r}\nv_and_b32 v{49+2*d}, s77, v{r}")
        else: A(f"v_lshlrev_b32 v2, 16, v{r}\nv_and_b32 v3, s77, v{r}\nv_pk_add_f32 v[{48+2*d}:{49+2*d}], v[{48+2*d}:{49+2*d}], v[2:3]")
FP = oi("fp", 0); PS = oi("ps", 0)
ZB = "s_barrier\nds_read_b128 v[40:43], v14\nds_read_b128 v[44:47], v14 offset:1024"
TP = oi("tp", 3); ntp = [0]
def tpad():
    if TP: A(f"L_tp{ntp[0]}:"); ntp[0] += 1; A(f"s_cbranch_vccnz L_tp{ntp[0]}")
if TP: A("s_mov_b64 vcc, -1\ns_branch L_tp0"); A("L_tb:"); A("s_mov_b64 vcc, 0")
if ZE: A(ZB)
if oi("ps0", 0): A(f"s_sleep {oi('ps0', 0)}")
if FP:
    for i in range(8): A(f"s_mov_b32 s{80+i}, 0")
for p in range(7):
    if "dg3" in opts or "dg4" in opts: A(f"s_branch L_fd{p}")
    if p > 0: A((f"s_bitcmp1_b32 vcc_lo, {p}" if "vp" in opts else f"s_cmp_lg_u32 s{80+p}, 0") + f"\ns_cbranch_scc1 L_fd{p}")
    A(f"L_fw{p}:")
    if FP and p >= oi("fpfrom", 4):
        A(f"s_load_dwordx8 s[80:87], s[30:31], s13 glc\ns_add_u32 s76, s76, 1\ns_cmp_ge_u32 s76, {SPIN}\ns_sleep {FP}\ns_waitcnt lgkmcnt(12)\ns_cbranch_scc1 L_fd{p}")
    elif "vp" in opts:
        A(f"buffer_load_dword v21, v22, s[{SWS}:{SWS+3}], s13 offen sc1\ns_add_u32 s76, s76, 1\ns_waitcnt vmcnt(0)\nv_cmp_ne_u32 vcc, 0, v21\ns_cmp_ge_u32 s76, {SPIN}\ns_cbranch_scc1 L_fd{p}")
    else:
        if PS: A(f"s_sleep {PS}")
        A(f"s_load_dwordx8 s[80:87], s[30:31], s13 glc\ns_add_u32 s76, s76, 1\ns_cmp_ge_u32 s76, {SPIN}\ns_waitcnt lgkmcnt(0)\ns_cbranch_scc1 L_fd{p}")
    A((f"s_bitcmp0_b32 vcc_lo, {p}" if "vp" in opts else f"s_cmp_eq_u32 s{80+p}, 0") + f"\ns_cbranch_scc1 L_fw{p}")
    A(f"L_fd{p}:")
    if not ("dg1" in opts and p < 6) and "dg4" not in opts: A(f"buffer_load_dwordx4 {v(64+4*p,4)}, v13, s[{SWS}:{SWS+3}], {'s14' if p < 4 else 's15'} offen offset:{(p&3)*1024} sc1 {'nt' if 'fnt' in opts else ''}")
    stamp(f"f{p}")
    if p in (2, 6): tpad()
if not ZE: A(ZB)
for p in range(6):
    A(f"s_waitcnt vmcnt({6-p})"); acc(p)
    if p % TP == TP - 1 if TP else False: tpad()
A("s_waitcnt lgkmcnt(0)")
for d in range(4): A(f"v_pk_add_f32 v[{48+2*d}:{49+2*d}], v[{48+2*d}:{49+2*d}], v[{40+2*d}:{41+2*d}]")
A("s_waitcnt vmcnt(0)"); acc(6)
for d in range(4): A(f"v_cvt_pk_bf16_f32 v{56+d}, v{48+2*d}, v{49+2*d}")
A("s_nop 1\nv_permlane16_swap_b32 v56, v58\nv_permlane16_swap_b32 v57, v59")
A(f"buffer_store_dwordx4 v[56:59], v1, s[{SOUT}:{SOUT+3}], 0 offen {opts.get('outf', '').replace('+', ' ')}")
if STAMP:
    A("s_waitcnt vmcnt(0)"); stamp("end")
    A("s_cmp_lg_u32 s3, 0\ns_cbranch_scc1 L_end")
    A(f"s_lshl_b32 s13, s2, 9\ns_add_u32 s13, s13, {hex(WS_STAMP)}\nv_lshlrev_b32 v253, 3, v0\nv_add_u32 v253, s13, v253")
    A(f"v_cmp_gt_u32 vcc, 48, v0\ns_nop 1\ns_mov_b64 exec, vcc")
    A(f"buffer_store_dwordx2 v[254:255], v253, s[{SWS}:{SWS+3}], 0 offen")
A("s_endpgm")
if TP: A(f"L_tp{ntp[0]}:"); A("s_branch L_tb")
if PADS: A("L_hole1:"); A("s_branch L_pad0")

out = HEADER
out += "; @launch grid=(256,1,1) block=(512,1,1) lds=163840\n"
if STAMP:
    nm = {0: "t0"}
    for i, n_ in enumerate(lst): nm[i + 1 + (i + 1 >= 30)] = "L" + n_
    for i, n_ in enumerate(cst): nm[48 + i] = n_
    out += "; stampnames " + " ".join(f"{k}={x}" for k, x in nm.items()) + "\n"
out += f'.amdgcn_target "amdgcn-amd-amdhsa--gfx950"\n.text\n.globl {KN}\n.type {KN},@function\n' + A.text() + C.text() + "L_codeend:\n"
out += '.section .rodata,"a"\n' + kd(KN, 256)
if "nopad" not in opts:
    import subprocess, re
    def addrs(text):
        open("_ap.s", "w").write(text)
        subprocess.run(["clang", "-x", "assembler", "-target", "amdgcn-amd-amdhsa", "-mcpu=gfx950", "-c", "_ap.s", "-o", "_ap.o"], check=True)
        d = subprocess.run(["llvm-objdump", "-d", "--mcpu=gfx950", "_ap.o"], capture_output=True, text=True).stdout
        d = d[d.index("<L_back>:"):]
        return [int(m.group(1), 16) + oi("stub", 0x300) for m in re.finditer(r"// ([0-9A-F]{12}):", d)]
    k = 0
    while True:
        lines = out.split("\n"); i0 = lines.index("L_back:")
        ins = [i for i in range(i0, len(lines)) if lines[i].startswith("    ") and not lines[i].strip().startswith(";")]
        ad = addrs(out)
        cross = [j for j in range(1, min(len(ad), len(ins))) if ad[j] // 4096 != ad[j-1] // 4096]
        if k >= len(cross): break
        j = ins[cross[k]]
        ie = lines.index(f"L_pad{k}:"); lines[ie] = f"L_pad{k+1}:"
        lines[j:j] = [f"L_pad{k}:", f"    s_cbranch_vccnz L_pad{k+1}"]
        out = "\n".join(lines); k += 1
open(sys.argv[1], "w").write(out)
```

```python
import sys, math, struct
from collections import defaultdict
from common import *
opts = dict(a.split("=") if "=" in a else (a, "1") for a in sys.argv[2:])
def oi(k, d): return int(opts.get(k, d))
STAMP = "stamp" in opts
NTK = "" if "nont" in opts else "nt"
MF = "v_mfma_f32_16x16x32_bf16"
KN = NAME + "_kernel"
WSB = int(opts.get('wsb', '0'), 0)
WS_P, WS_PART, WS_FLAG, WS_STAMP = WSB, WSB + 0x400000, WSB + 0xC00000, 0x9000000
SPIN = 1 << 18
K1 = 1024
JN = {'1': 's_add_u32 s9, s8, s11', '2': 's_lshl1_add_u32 s9, s11, s8', '0': 's_mov_b32 s9, s8'}[opts.get('jn', '2')]
FSH = oi('fsh', 10); WSH = FSH - 2 if FSH > 8 else 5
SSET = set(opts["sset"].split(",")) if "sset" in opts else None

U = lambda u: (u * 16 * K1, 16 * K1)
LOC = {}
def place(prefix, i0, units):
    for i, u in enumerate(units): LOC[f"{prefix}{i0+i}"] = U(u)
place("X", 0, [int(c) for c in opts.get("xu", "01230123")])
place("W", 0, [int(c) for c in opts.get("wu", "45674567")])
place("V", 0, [int(c) for c in opts.get("vu", "01289012")])
place("U", 0, [int(c) for c in opts.get("uu", "45674567")])
LOC["K0"], LOC["K1"] = U(8), U(9)
LOC["P0"] = LOC["X7"]
place("P", 1, [int(c) for c in opts.get("pu", "894")])
FIN = LOC["P0"][0]

C = Asm()
bars = []; first, free = {}, {}
q = []; pend = set(); dsn = [0]
def _ret(n):
    while len(q) > n:
        it = q.pop(0)[1]
        if it: pend.add(it)
def ds(ins, item=None):
    lim = 13 if STAMP else 15
    if len(q) >= lim: C(f"s_waitcnt lgkmcnt({lim-1})"); _ret(lim - 1)
    C(ins); dsn[0] += 1; q.append((dsn[0], item))
    if item:
        if item not in first: first[item] = len(bars) - 1
        free.pop(item, None)
    return dsn[0]
def need(*ids):
    pos = [k for k, (i, _) in enumerate(q) if i in ids]
    if pos:
        n = len(q) - 1 - max(pos); C(f"s_waitcnt lgkmcnt({n})"); _ret(n)
def drain():
    if q: C("s_waitcnt lgkmcnt(0)"); _ret(0)
def bar(name):
    if opts.get("diagslp") == name: C("s_sleep 5")
    bars.append(name); C(f"s_barrier                ; {name}"); cstamp(name)
    live = {it for _, it in q}
    for it in list(pend):
        if it not in live: free[it] = len(bars) - 1; pend.discard(it)
cst = []; CREG = list(range(32, 56, 2)) + [60, 62, 92, 94]
def cstamp(name):
    if STAMP and SSET is not None and name in SSET:
        i = len(cst); cst.append(name); assert i < 16
        if len(q) > 12: C("s_waitcnt lgkmcnt(12)"); _ret(12)
        C(f"s_mem{'real' if 'rt' in opts else ''}time s[{CREG[i]}:{CREG[i]+1}]")
I = lambda x: (lambda: C(x))
npad = [0]
PADS = [int(x) for x in opts.get("pads", "").split(",") if x] or ([-1] if "nopad" not in opts else [])
def pad():
    C(f"L_pad{npad[0]}:"); npad[0] += 1; C(f"s_cbranch_vccnz L_pad{npad[0]}")

VX, VW, LIN0, VOWN = 4, 8, 16, 17
TM = 18
ACC, BR0, PR, VWS = 24, 88, 112, 128
BR = [BR0 + 4*i for i in range(6)]
QB, SC, PB, VK = VWS + 96, VWS + 64, VWS + 48, VWS + 32
C("L_compute:")
C(f"s_setprio {oi('prio', 0)}")
srd_consts(C, [SWS])
C(f"""v_and_b32 v1, 15, v0
v_lshrrev_b32 v2, 4, v0
v_bfe_u32 v3, v0, 1, 3
v_xor_b32 v3, v3, v2
v_lshlrev_b32 v3, 4, v3
v_lshl_add_u32 v3, v1, 7, v3
s_lshl_b32 s70, s3, 12
v_add_u32 v{VX}, s70, v3
v_xor_b32 v{VX+1}, 64, v{VX}
v_add_u32 v{VX+2}, 0x20000, v3
v_xor_b32 v{VX+3}, 64, v{VX+2}
v_lshrrev_b32 v3, 1, v2
v_xor_b32 v3, v3, v1
v_lshlrev_b32 v3, 4, v3
v_lshl_add_u32 v3, v1, 8, v3
v_and_b32 v18, 1, v2
v_lshl_add_u32 v3, v18, 3, v3
s_lshr_b32 s13, s3, 1
s_lshl_b32 s13, s13, 14
s_add_u32 s13, s13, 0x20000
v_add_u32 v{VK}, s13, v3
v_lshlrev_b32 v{LIN0}, 4, v0
v_add_u32 v{VOWN}, s70, v{LIN0}
v_bfe_u32 v1, v0, 2, 2
v_and_b32 v3, 3, v0
v_lshlrev_b32 v3, 3, v3
v_lshl_add_u32 v19, v18, 2, v1
v_lshl_add_u32 v20, v2, 3, v1
v_lshlrev_b32 v20, 8, v20
v_lshl_add_u32 v20, v19, 5, v20
v_add_u32 v20, v20, v3
v_add_u32 v{VW}, 0x10000, v20""")
for i in range(1, 8): C(f"v_xor_b32 v{VW+i}, {i*32}, v{VW}\nv_xor_b32 v{VK+i}, {i*32}, v{VK}")
C(f"""s_lshl_b32 s13, s11, 2
s_add_u32 s13, s13, s9
s_lshl_b32 s13, s13, 3
s_add_u32 s13, s13, s4
s_lshl_b32 s65, s13, 15
s_lshl_b32 s14, s3, 13
s_add_u32 s65, s65, s14
s_lshl_b32 s66, s13, {FSH}
s_lshl_b32 s14, s3, {WSH}
s_add_u32 s66, s66, s14""")
for p in range(7):
    C(f"s_xor_b32 s13, s65, {(7-p) << 15}\ns_add_u32 s{80+p}, s13, {WS_PART + p*1024}")
    C(f"s_xor_b32 s13, s66, {(7-p) << FSH}\ns_add_u32 s{72+p}, s13, {WS_FLAG + p*4}")
C(f"""s_lshl_b32 s13, s11, 3
s_add_u32 s13, s13, s4
s_lshl_b32 s64, s13, 16
s_lshl_b32 s14, s8, 14
s_add_u32 s64, s64, s14
s_add_u32 s64, s64, {WS_P}
s_lshl_b32 s67, s11, {FSH+5}
s_lshl_b32 s14, s4, {FSH}
s_add_u32 s67, s67, s14
s_lshl_b32 s14, s8, 4
s_add_u32 s67, s67, s14
s_lshl_b32 s14, s3, 2
s_add_u32 s67, s67, s14
s_add_u32 s67, s67, {WS_FLAG + 128}""")
cs = struct.unpack("<I", struct.pack("<f", math.log2(math.e) / math.sqrt(128)))[0]
C(f"s_mov_b32 s68, {hex(cs)}\ns_mov_b32 s69, {hex(cs)}\ns_lshl_b32 s71, s3, 6")
C("s_waitcnt lgkmcnt(0)")
srd_ptrs(C, [SWS])
if PADS:
    C("s_waitcnt vmcnt(0)\ns_mov_b64 vcc, -1\ns_branch L_hole0"); C("L_back:"); C("s_mov_b64 vcc, 0")

WP = oi('wp', 1)
class Stream:
    def __init__(s_): s_.e = []; s_.fill = defaultdict(list); s_.before = defaultdict(list); s_.id = defaultdict(list); s_.hold = {}
    def rd(s_, m, k): s_.id[m].append(s_.e[m][0][k](BR[m % 6]))
    def prologue(s_, lo):
        for m in range(lo, lo + 6):
            for k in range(len(s_.e[m][0])): s_.rd(m, k)
    def run(s_, lo, hi, stop):
        for m in range(lo, hi):
            for f in s_.before.pop(m, []): f()
            cstamp(f'e{m}')
            if m in PADS: s_.fill[2*m].append(pad)
            assert len(s_.id[m]) == len(s_.e[m][0]), m
            for hh in range(2):
                a_, b_, d, fst, deps = s_.e[m][1][hh ^ (m & 1)]
                extra = s_.id[m+1] if (WP and m % 2 == 0 and m + 1 < hi and m > lo) else []
                need(*s_.id[m], *extra, *deps())
                R = v(BR[m % 6], 4)
                C(f"{MF} {v(d,4)}, {R if a_ is None else v(a_,4)}, {R if b_ is None else v(b_,4)}, {'0' if fst else v(d,4)}")
                if hh == 0 and m > lo and m + 5 < stop and len(s_.e[m+5][0]) == 2: s_.rd(m + 5, 1)
                if hh == 1 and m + 6 < stop: s_.rd(m + 6, 0)
                for f in s_.fill.pop(2*m + hh, []): f()
S = Stream(); pid = {}
def xaddr(a, ss): return (VX + ss + (2 if a >= 128*K1 else 0), a % 65536)
def x_rd(n, qt):
    it = f"X{n//2}"; r, o = xaddr(LOC[it][0], n & 1); assert LOC[it][0] < 65536
    return lambda: pid.__setitem__(("x", n, qt), ds(f"ds_read_b128 {v(PR+8*(n&1)+4*qt,4)}, v{r} offset:{o + qt*2048}", it))
for n in range(16):
    for mt in range(8):
        it = f"W{n//2}"
        rds = [lambda r, it=it, n=n, mt=mt, e=e: ds(f"ds_read_b64_tr_b16 {v(r+2*e,2)}, v{VW + (mt ^ (4*e))} offset:{LOC[it][0]-65536 + (n&1)*8192 + e*1024}", it) for e in range(2)]
        S.e.append((rds, [(None, PR + 8*(n&1) + 4*qt, ACC + 8*mt + 4*qt, n == 0, lambda n=n, qt=qt: [pid[("x", n, qt)]]) for qt in range(2)]))
    if n < 15:
        for qt in range(2): S.fill[2*(8*n + 2 + 2*qt)].append(x_rd(n + 1, qt))
    if n & 1 and n < 15: S.before[8*n + 2].append(lambda n=n: bar(f"B{(n+1)//2}"))
if oi("bk", 1): S.before[122].append(lambda: bar("BK"))
QKO = oi("qko", 0)
qk = [(kt, s_) for s_ in range(4) for kt in range(4)]
if QKO: qk = qk[:8] + [(0, 2), (1, 2), (0, 3), (1, 3), (2, 2), (2, 3), (3, 2), (3, 3)]
for kt, s_ in qk:
    rds = [lambda r, kt=kt, s_=s_, e=e: ds(f"ds_read_b64{'_tr_b16' if 'ktr' in opts else ''} {v(r+2*e,2)}, v{VK + 2*s_ + e} offset:{kt*4096}", "K") for e in range(2)]
    S.e.append((rds, [(None, QB + 16*qt + 4*s_, SC + 16*qt + 4*kt, s_ == 0, lambda: []) for qt in range(2)]))
for mt in range(8):
    for k, (qt, i) in enumerate([(0, 0), (0, 1), (1, 0), (1, 1)]):
        if "nocvt" not in opts: S.fill[2*123 + (4*mt + k if not QKO else (4*mt + k) * 7 // 8)].append(I(f"v_cvt_pk_bf16_f32 v{QB+16*qt+2*mt+i}, v{ACC+8*mt+4*qt+2*i}, v{ACC+8*mt+4*qt+2*i+1}"))
adr = [f"v_subrev_u32 v{VX+k}, s70, v{VX+k}" for k in range(2)] + [f"v_xor_b32 v{VW+k}, s71, v{VW+k}" for k in (0, 1, 4, 5)]
for k, x in enumerate(adr): S.fill[2*(117 + k) if k < 2 else 2*(130 + k)].append(I(x))
M = lambda qt: TM + 2*qt
if QKO:
    for qt in range(2):
        S.fill[2*142 + 0].append(I(f"v_max3_f32 v{M(qt)}, v{SC+16*qt}, v{SC+16*qt+1}, v{SC+16*qt+2}"))
        S.fill[2*143 + 0].append(I(f"v_max3_f32 v{M(qt)}, v{M(qt)}, v{SC+16*qt+3}, v{SC+16*qt+4}"))
        S.fill[2*143 + 1].append(I(f"v_max3_f32 v{M(qt)}, v{M(qt)}, v{SC+16*qt+5}, v{SC+16*qt+6}"))
E2 = 144
OA = VWS + 64
LW = {0: LIN0, 1: VW + 2, 2: VW + 3}
VZ, V1 = VW + 6, VW + 7
def u_rd(n, k):
    it = f"U{n//2}"; nt, e = k >> 1, k & 1
    return lambda: pid.__setitem__(("u", n, k), ds(f"ds_read_b64_tr_b16 {v(PR+8*(n&1)+4*nt+2*e,2)}, v{VW + (nt ^ (4*e))} offset:{LOC[it][0]-65536 + (n&1)*8192 + e*1024}", it))
def vwreg(s_, b, u, nt):
    return ACC + 8*(4*b + 2*u) + 4*nt if s_ in (0, 3) else VWS + 32*(s_ - 1) + 16*b + 8*u + 4*nt
def add_vw(n):
    m0 = len(S.e)
    for rt in range(8):
        it = f"V{n//2}"; r0, o = xaddr(LOC[it][0], n & 1)
        rds = [lambda r, it=it, r0=r0, o=o, rt=rt: ds(f"ds_read_b128 {v(r,4)}, v{r0} offset:{o + rt*2048}", it)]
        S.e.append((rds, [(None, PR + 8*(n&1) + 4*nt, ACC + 8*rt + 4*nt, n % 4 == 0, lambda n=n, nt=nt: [pid[("u", n, 2*nt)], pid[("u", n, 2*nt+1)]]) for nt in range(2)]))
    if n:
        for k in range(4): S.fill[2*(m0 - 6 + k)].append(u_rd(n, k))
        if n % 2 == 0: S.before[m0 - 6].append(lambda n=n: bar(f"B{8 + n//2}"))
    if n % 4 == 3:
        slots = []
        for gq in range(6, 30):
            slots += [gq] * (2 if (gq % 2 == 0 and (gq // 2) % 8 in (6, 7, 0, 1)) or gq in (6, 8, 10) else 1)
        for rt in range(8):
            for k, (nt, i) in enumerate([(0, 0), (0, 1), (1, 0), (1, 1)]):
                S.fill[(2*(m0 + 3) + 4*rt + k) if (n in (3, 15) and oi("cvs", 1)) else (2*m0 + slots[4*rt + k]) if oi("cv2", 1) else 2*(m0 + rt + 4) + (k >> 1)].append(I(f"v_cvt_pk_bf16_f32 v{vwreg(n//4, rt>>2, (rt>>1)&1, nt)+2*(rt&1)+i}, v{ACC+8*rt+4*nt+2*i}, v{ACC+8*rt+4*nt+2*i+1}"))
NPQ = oi("npq", 2)
def add_pv(p, s_, u):
    it = "P0" if s_ == 0 else f"P{s_}" + "abcd"[p * NPQ // 8]; a = LOC[f"P{s_}"][0] + p*2048 + u*1024
    rds = [lambda r: ds(f"ds_read_b128 {v(r,4)}, v{LW[a // 65536]} offset:{a % 65536}", it)]
    S.e.append((rds, [(vwreg(s_, p >> 2, u, nt), None, OA + 8*p + 4*nt, s_ == 0 and u == 0, lambda: []) for nt in range(2)]))
for n in range(4): add_vw(n)
EP = len(S.e)
for b_ in range(2):
    for u in range(2):
        for p in range(4*b_, 4*b_ + 4): add_pv(p, 0, u)
for n in range(4, 16): add_vw(n)
E3 = len(S.e)
for p in range(8):
    for s_ in range(1, 4):
        for u in range(2): add_pv(p, s_, u)
for s_ in range(1, 4):
    for hf in range(NPQ): LOC[f"P{s_}{'abcd'[hf]}"] = (LOC[f"P{s_}"][0] + hf*16384//NPQ, 16384//NPQ)
for hf in range(NPQ): S.before[E3 + 48*hf//NPQ - 6].append(lambda hf=hf: bar("P" + "abcd"[hf]))
for k, x in enumerate([f"v_add_u32 v{LW[1]}, 0x10000, v{LIN0}", f"v_add_u32 v{LW[2]}, 0x20000, v{LIN0}", f"v_mov_b32 v{VZ}, 0", f"v_mov_b32 v{V1}, -1", f"v_lshlrev_b32 v1, {FSH+3}, v0"]):
    S.fill[2*((EP if oi('sovl', 0) else E2) + 6 + k) + 1].append(I(x))
vmq = []
def flag(p):
    C(f"s_waitcnt vmcnt({len(vmq) - 1 - vmq.index(f'D{p}')})\ns_mov_b64 exec, 1")
    C(f"buffer_store_dword v{V1}, v{VZ}, s[{SWS}:{SWS+3}], s{72+p} offen sc1\ns_mov_b64 exec, -1"); vmq.append(f"F{p}")
FLAG_LAG = oi("flag", 4)
for p in range(7):
    g0 = 2*(E3 + 6*(p+1) + 2); r = PR + 4*(p & 3)
    if p >= oi("fastsend", 7):
        ge = 2*(E3 + 6*(p+1) + 1) + 1
        S.fill[ge].append(I("s_nop 1"))
        for i in range(4): S.fill[ge].append(I(f"v_cvt_pk_bf16_f32 v{r+i}, v{OA+8*p+2*i}, v{OA+8*p+2*i+1}"))
        S.fill[ge].append(lambda p=p, r=r: (C(f"buffer_store_dwordx4 {v(r,4)}, v{LIN0}, s[{SWS}:{SWS+3}], s{80+p} offen sc1"), vmq.append(f"D{p}")))
        if p >= FLAG_LAG: S.fill[g0 + 6].append(lambda p=p: flag(p - FLAG_LAG))
        continue
    for i in range(4): S.fill[g0 + (2*((i >> 1) ^ 1) if oi("cv3", 1) else 1 + (i >> 1))].append(I(f"v_cvt_pk_bf16_f32 v{r+i}, v{OA+8*p+2*i}, v{OA+8*p+2*i+1}"))
    S.fill[g0 + 4].append(lambda p=p, r=r: (C(f"buffer_store_dwordx4 {v(r,4)}, v{VZ if 'dg2' in opts and p < 6 else LIN0}, s[{SWS}:{SWS+3}], s{80+p} offen sc1"), vmq.append(f"D{p}")))
    if p >= FLAG_LAG: S.fill[g0 + 6].append(lambda p=p: flag(p - FLAG_LAG))
if oi("sovl", 0):
    sm = []
    def op(x, c=4): sm.append((c, I(x)))
    for qt in range(2): op(f"v_max3_f32 v{M(qt)}, v{SC+16*qt}, v{SC+16*qt+1}, v{SC+16*qt+2}", 5)
    for i in range(3, 15, 2):
        for qt in range(2): op(f"v_max3_f32 v{M(qt)}, v{M(qt)}, v{SC+16*qt+i}, v{SC+16*qt+i+1}", 5)
    for qt in range(2): op(f"v_max_f32 v{M(qt)}, v{M(qt)}, v{SC+16*qt+15}")
    def xred(o_, fin, fc):
        a_, b_ = M(0), M(1)
        op("s_nop 1", 8); op(f"v_permlane32_swap_b32 v{a_}, v{b_}", 8); op(f"{o_} v{a_}, v{a_}, v{b_}"); op(f"v_mov_b32 v{b_}, v{a_}")
        op("s_nop 1", 8); op(f"v_permlane16_swap_b32 v{a_}, v{b_}", 8); op(f"{o_} v{a_}, v{a_}, v{b_}"); op(fin[0], fc); op(fin[1], fc)
        op("s_nop 1", 8); op(f"v_permlane32_swap_b32 v{a_}, v{b_}", 8)
    xred("v_max_f32", [f"v_mul_f32 v{M(1)}, s68, v{M(0)}", f"v_mul_f32 v{M(0)}, s68, v{M(0)}"], 4)
    SM = [M(0) + 1, M(1) + 1]
    op(f"v_fma_f32 v{SC}, v{SC}, s68, -v{M(0)}", 5)
    for i in range(32):
        op(f"v_exp_f32 v{SC+i}, v{SC+i}", 8)
        if i < 31: op(f"v_fma_f32 v{SC+i+1}, v{SC+i+1}, s68, -v{M((i+1)>>4)}", 5)
        j = i - 1
        if j >= 0 and j % 16: op(f"v_add_f32 v{SM[j>>4]}, v{SM[j>>4] if j % 16 > 1 else SC+j-1}, v{SC+j}")
    op(f"v_mov_b32 v{M(0)}, v{SM[0]}"); op(f"v_add_f32 v{M(1)}, v{SM[1]}, v{SC+31}")
    xred("v_add_f32", [f"v_rcp_f32 v{M(1)}, v{M(0)}", f"v_rcp_f32 v{M(0)}, v{M(0)}"], 8)
    wr = {}
    for t in range(4):
        for i in range(8): op(f"v_mul_f32 v{SC+8*t+i}, v{M(t>>1)}, v{SC+8*t+i}")
        for i in range(4): op(f"v_cvt_pk_bf16_f32 v{PB+4*t+i}, v{SC+8*t+2*i}, v{SC+8*t+2*i+1}", 5)
        sm.append((8, lambda t=t: wr.__setitem__("l", ds(f"ds_write_b128 v{VOWN}, {v(PB+4*t,4)} offset:{LOC['P0'][0] + t*1024}"))))
    sm.append((0, lambda: cstamp("sm")))
    g_lo, g_hi = 2*E2 - 1, 2*(E2 + oi("smend", 23))
    tot = sum(c for c, _ in sm); acc_ = 0
    for c, f in sm:
        S.fill[g_lo + int(acc_ * (g_hi - g_lo) / tot)].append(f); acc_ += c
    assert E2 + oi("smend", 23) < EP - 6
    S.before[EP - 6].append(lambda: (need(wr["l"]), bar("BP")))
    PUBC = oi("pubc", oi("smend", 23) + 1); EARLY8 = 1
    for t in range(4):
        S.fill[2*(E2 + PUBC + oi("pubd", 0)*t)].append(I(f"buffer_store_dwordx4 {v(PB+4*t,4)}, v{VOWN}, s[{SWS}:{SWS+3}], s64 offen offset:{t*1024} sc1"))
    S.fill[2*(E2 + oi("flgc", 66))].append(I(f"s_waitcnt vmcnt(0)\ns_mov_b64 exec, 15\nbuffer_store_dword v{V1}, v1, s[{SWS}:{SWS+3}], s67 offen sc1\ns_mov_b64 exec, -1"))

    for k in range(4): S.fill[2*(E2 - 5 + k)].append(u_rd(0, k))
    S.before[E2 - 6].append(lambda: bar("B8"))
    if oi("bq", 0): S.before[E2 + 1].append(lambda: bar("BQ"))
    bar("B0"); C("s_waitcnt vmcnt(0)")
    x_rd(0, 0)(); x_rd(0, 1)(); S.prologue(0)
    S.run(0, len(S.e), len(S.e))
    assert not S.fill and not S.before, (dict(S.fill), dict(S.before))
else:
    bar("B0"); C("s_waitcnt vmcnt(0)")
    x_rd(0, 0)(); x_rd(0, 1)(); S.prologue(0)
    S.run(0, E2, E2)
    cstamp("qk")
    if oi("bq", 0): bar("BQ")
    C.c("softmax over the 64 keys (16 per lane x 4 lane groups), two 16-query tiles")
    if not QKO:
        C("s_nop 2")
        for qt in range(2): C(f"v_max3_f32 v{M(qt)}, v{SC+16*qt}, v{SC+16*qt+1}, v{SC+16*qt+2}")
    for i in range(7 if QKO else 3, 15, 2):
        if QKO and i == 11: C("s_nop 1")
        for qt in range(2): C(f"v_max3_f32 v{M(qt)}, v{M(qt)}, v{SC+16*qt+i}, v{SC+16*qt+i+1}")
    for qt in range(2): C(f"v_max_f32 v{M(qt)}, v{M(qt)}, v{SC+16*qt+15}")
    def xred(op, fin, fill):
        a_, b_ = M(0), M(1)
        def gap(n):
            for _ in range(n): fill.pop(0)() if fill else C("s_nop 0")
        gap(2); C(f"v_permlane32_swap_b32 v{a_}, v{b_}\n{op} v{a_}, v{a_}, v{b_}\nv_mov_b32 v{b_}, v{a_}")
        gap(2); C(f"v_permlane16_swap_b32 v{a_}, v{b_}\n{op} v{a_}, v{a_}, v{b_}\n{fin[0]}\n{fin[1]}")
        gap(2); C(f"v_permlane32_swap_b32 v{a_}, v{b_}")
    xred("v_max_f32", [f"v_mul_f32 v{M(1)}, s68, v{M(0)}", f"v_mul_f32 v{M(0)}, s68, v{M(0)}"], [])
    pkf = lambda i: f"v_pk_fma_f32 {v(SC+2*i,2)}, {v(SC+2*i,2)}, s[68:69], {v(M(i>>3),2)} op_sel_hi:[1,1,0] neg_lo:[0,0,1] neg_hi:[0,0,1]"
    SM = [TM + 4, 2]
    C(pkf(0))
    for i in range(16):
        C(f"v_exp_f32 v{SC+2*i}, v{SC+2*i}")
        if i < 15: C(pkf(i + 1))
        C(f"v_exp_f32 v{SC+2*i+1}, v{SC+2*i+1}")
        j = i - 1
        if j >= 0 and j % 8: C(f"v_pk_add_f32 {v(SM[j>>3],2)}, {v(SM[j>>3],2) if j % 8 > 1 else v(SC+2*j-2,2)}, {v(SC+2*j,2)}")
    C(f"v_add_f32 v{M(0)}, v{SM[0]}, v{SM[0]+1}\nv_pk_add_f32 {v(SM[1],2)}, {v(SM[1],2)}, {v(SC+30,2)}\nv_add_f32 v{M(1)}, v{SM[1]}, v{SM[1]+1}")
    EARLY8 = oi("early8", 0); pro = []
    if EARLY8:
        if EARLY8 == 1: bar("B8")
        pro = [u_rd(0, k) for k in range(4)] + [lambda m=m: S.rd(m, 0) for m in range(E2, E2 + 6)]
    xred("v_add_f32", [f"v_rcp_f32 v{M(1)}, v{M(0)}", f"v_rcp_f32 v{M(0)}, v{M(0)}"], pro)
    for f in pro: f()
    PUBC = oi("pubc", -3)
    pst = lambda t: f"buffer_store_dwordx4 {v(PB+4*t,4)}, v{VOWN}, s[{SWS}:{SWS+3}], s64 offen offset:{t*1024} sc1"
    E8T = oi("e8t", -1)
    for t in range(4):
        if t == E8T:
            bar("B8"); EARLY8 = 3
            for k in range(4): u_rd(0, k)()
            S.prologue(E2)
        for i in range(8*t, 8*t + 8, 2): C(f"v_pk_mul_f32 {v(SC+i,2)}, {v(SC+i,2)}, {v(M(t>>1),2)} op_sel_hi:[1,0]")
        for i in range(4): C(f"v_cvt_pk_bf16_f32 v{PB+4*t+i}, v{SC+8*t+2*i}, v{SC+8*t+2*i+1}")
        lastw = ds(f"ds_write_b128 v{VOWN}, {v(PB+4*t,4)} offset:{LOC['P0'][0] + t*1024}")
        if PUBC == -3: C(pst(t))
    S.before[E2 + 10].insert(0, lambda: need(lastw))
    cstamp("sm")
    if PUBC == -2:
        for t in range(4): C(pst(t))
    if not EARLY8:
        if not PUBC: drain()
        bar("B8")
        for k in range(4): u_rd(0, k)()
        S.prologue(E2)
    if PUBC == -1:
        for t in range(4): C(pst(t))
    if PUBC > 0:
        for t in range(4): S.fill[2*(E2 + PUBC + oi("pubd", 0)*t)].append(I(pst(t)))
    if PUBC: S.fill[2*(E2 + oi("flgc", 34))].append(I(f"s_waitcnt vmcnt(0)\ns_mov_b64 exec, 15\nbuffer_store_dword v{V1}, v1, s[{SWS}:{SWS+3}], s67 offen sc1\ns_mov_b64 exec, -1"))
    S.run(E2, len(S.e), len(S.e))
    assert not S.fill and not S.before, (dict(S.fill), dict(S.before))
cstamp("T")
C("s_nop 6")
OWNP = LOC["U7"][0]
C(f"v_add_u32 v1, s70, v{LW[OWNP // 65536]}")
for nt in range(2): ds(f"ds_write_b128 v1, {v(OA+56+4*nt,4)} offset:{OWNP % 65536 + nt*1024}")
ZE = oi("ze", 1)
if ZE == 1: drain(); bar("Z")
for p in range(7):
    if f"F{p}" not in vmq: flag(p)
cstamp("fl")
if ZE != 1: drain(); bar("Z")
assert free["U7"] <= len(bars) - 2
if STAMP:
    C("s_cmp_lg_u32 s3, 0\ns_cbranch_scc1 L_end")
    C(f"s_lshl_b32 s13, s2, 9\ns_add_u32 s13, s13, {hex(WS_STAMP + 48*8)}")
    for i in range(len(cst)):
        C(f"s_waitcnt lgkmcnt(0)\nv_mov_b32 v2, s{CREG[i]}\nv_mov_b32 v3, s{CREG[i]}\nbuffer_store_dwordx2 v[2:3], v{VZ}, s[{SWS}:{SWS+3}], s13 offen offset:{8*i}")
C("L_end:"); C("s_endpgm")
if PADS: C(f"L_pad{npad[0]}:"); C("s_branch L_back")
for k in ("K0", "K1"): first[k], free[k] = first["K"], free["K"]
del first["K"], free["K"], first["P0"]
free["X7"] = 999

A = Asm()
lst = []
def stamp(name):
    if STAMP and (SSET is None or ("L" + name) in SSET):
        if name not in lst: lst.append(name)
        i = lst.index(name) + 1; i += (i >= 30); assert i < 48
        A(f"s_memtime s[98:99]\ns_memrealtime s[96:97]\ns_waitcnt lgkmcnt(0)\nv_writelane_b32 v254, s98, {i}\nv_writelane_b32 v255, s96, {i}")
if "noal" not in opts: A(".p2align 12")
A(".p2align 8"); A(f"{KN}:")
A(f"s_load_dwordx2 s[{SX}:{SX+1}], s[0:1], 0\ns_load_dwordx2 s[{SWQ}:{SWQ+1}], s[0:1], 24\ns_load_dwordx16 s[16:31], s[0:1], 0")
A("s_cmp_ge_u32 s2, 256\ns_cbranch_scc1 L_end")
if STAMP: A("s_memtime s[94:95]\ns_memrealtime s[92:93]")
A(f"""v_readfirstlane_b32 s3, v0
s_and_b32 s4, s2, 7
s_bfe_u32 s8, s2, 0x20003
s_lshr_b32 s11, s2, 5
s_bitcmp1_b32 s3, 8
s_cbranch_scc1 L_loader""")
NPF = oi("npf", 22)
A("s_lshr_b32 s3, s3, 6\nv_and_b32 v0, 63, v0\ns_getpc_b64 s[6:7]")
A("L_pc:")
A(f"s_lshl_b32 s13, s8, 2\ns_add_u32 s13, s13, s3\ns_mul_i32 s13, s13, {NPF}*64")
A(f"v_min_u32 v1, {NPF-1}, v0\nv_lshlrev_b32 v1, 6, v1\nv_add_u32 v1, s13, v1")
A(f"v_min_u32 v1, L_codeend-L_pc-4, v1")
A("global_load_dword v130, v1, s[6:7]")
A(f"{JN}\ns_and_b32 s9, s9, 3\ns_branch L_compute")
A("L_loader:")
if "lprio" in opts: A(f"s_setprio {opts['lprio']}")
srd_consts(A, [SX, SWQ])
ROT = {"8": "s_lshl_b32 s12, s8, 1\ns_add_u32 s12, s12, s11", "8h": "s_lshl_b32 s12, s8, 1\ns_add_u32 s12, s12, s11\ns_add_u32 s12, s12, s4",
       "4": "s_add_u32 s12, s8, s11\ns_lshl_b32 s12, s12, 1", "4h": "s_add_u32 s12, s8, s11\ns_lshl_b32 s12, s12, 1\ns_add_u32 s12, s12, s4",
       "w8": "s_add_u32 s12, s4, s11", "w8x2": "s_lshl_b32 s12, s8, 2\ns_add_u32 s12, s12, s11\ns_add_u32 s12, s12, s4",
       "w4": "s_lshl1_add_u32 s12, s11, s4", "w2": "s_lshl2_add_u32 s12, s11, s4", "w1": "s_mov_b32 s12, s4", "w4x2": "s_lshl1_add_u32 s12, s8, s11\ns_lshl1_add_u32 s12, s12, s4",
       "2": "s_add_u32 s12, s8, s11\ns_lshl_b32 s12, s12, 2", "2h": "s_add_u32 s12, s8, s11\ns_lshl2_add_u32 s12, s12, s4"}[opts.get("rot", "2h")]
A(f"""v_bfe_u32 v6, v0, 4, 4
v_bfe_u32 v1, v0, 3, 5
v_xor_b32 v2, v6, v0
v_and_b32 v2, 7, v2
v_lshlrev_b32 v2, 4, v2
v_lshl_add_u32 v8, v1, 10, v2
v_bfe_u32 v5, v0, 7, 1
v_lshlrev_b32 v5, 2, v5
v_xor_b32 v5, v5, v6
v_lshlrev_b32 v5, 1, v5
v_xor_b32 v5, v5, v0
v_and_b32 v5, 15, v5
v_lshlrev_b32 v5, 4, v5
v_lshl_add_u32 v9, v6, 13, v5
s_xor_b32 s74, s4, 7
s_lshl_b32 s13, s74, 14
s_and_b32 s14, s13, 0x4000
v_xor_b32 v8, s14, v8
s_xor_b32 s13, s13, s14
s_lshl_b32 s64, s11, 17
s_add_u32 s64, s64, s13
s_lshl2_add_u32 s10, s4, s8
s_lshl_b32 s65, s10, 8
{ROT}
s_bfe_u32 s3, s3, 0x20006
s_lshl_b32 s67, s3, 10""")
KWAIT = [True]
if STAMP: A("s_waitcnt lgkmcnt(0)\nv_mov_b32 v254, -1\nv_mov_b32 v255, -1\nv_writelane_b32 v254, s94, 0\nv_writelane_b32 v255, s92, 0\ns_getreg_b32 s92, hwreg(HW_REG_XCC_ID)\ns_and_b32 s92, s92, 7\nv_writelane_b32 v254, s92, 30")
stamp("go")
def late_setup():
    srd_consts(A, [SK, SV, SWO, SOUT, SDBG, SWS]); srd_ptrs(A, [SK, SV, SWO, SOUT, SDBG, SWS])
    A(f"""v_lshl_add_u32 v11, v1, 8, v2
v_and_b32 v0, 63, v0
v_and_b32 v3, 7, v0
v_and_b32 v4, 15, v0
s_lshr_b32 s5, s2, 3
{JN}
s_and_b32 s9, s9, 3
s_lshl_b32 s13, s11, {FSH+5}
s_lshl_b32 s14, s4, {FSH}
s_add_u32 s13, s13, s14
s_add_u32 s79, s13, {WS_FLAG}
s_lshl_b32 s14, s9, {FSH+3}
s_add_u32 s77, s79, s14
v_mov_b32 v17, 0
v_lshl_add_u32 v12, v6, 10, v5
v_xor_b32 v5, v6, v4
v_lshlrev_b32 v5, 4, v5
v_lshl_add_u32 v10, v6, 8, v5
v_lshlrev_b32 v13, 4, v0
s_lshl_b32 s69, s11, 20
s_lshr_b32 s13, s74, 2
s_lshl_b32 s13, s13, 19
s_add_u32 s69, s69, s13
s_lshl_b32 s13, s10, 14
s_add_u32 s66, s69, s13
s_lshl_b32 s13, s4, 16
s_add_u32 s69, s69, s13
s_lshl_b32 s70, s4, 19
s_lshl_b32 s13, s9, 8
s_add_u32 s70, s70, s13
s_bfe_u32 s71, s11, {hex(0x10000 | oi('flipbit', 2))}
s_lshl_b32 s72, s11, 3
s_add_u32 s72, s72, s4
s_lshl_b32 s73, s72, 16
s_add_u32 s73, s73, {WS_P}
s_lshl_b32 s13, s3, 12
v_add_u32 v14, s13, v13
s_lshl_b32 s14, s8, 4
s_add_u32 s79, s79, s14
s_lshl_b32 s14, s3, 2
s_add_u32 s79, s79, s14
v_lshlrev_b32 v7, {FSH+3}, v0
v_mov_b32 v15, -1
v_lshlrev_b32 v19, 2, v3
s_lshl_b32 s13, s11, 5
v_add_u32 v19, s13, v19
s_mov_b32 s76, 0""")
def load_ops(it):
    k, a = it[0], LOC[it][0]; i = int(it[1])
    def dma(vo, srd, soff, lds, fl=""):
        if it in opts.get("nt", "").split(",") or it[0] in opts.get("nt", "").split(","): fl += " nt"
        return f"s_add_u32 m0, s67, {lds}\n{soff}\nbuffer_load_dwordx4 v{vo}, s[{srd}:{srd+3}], s68 offen {fl} lds"
    if "dry" in opts and not (k in "XW" and i < 4) and k != "K": return "", []
    if k == "X":
        return (f"s_add_u32 s13, s12, {i}\ns_and_b32 s13, s13, 7\ns_lshl_b32 s14, s13, 7\ns_add_u32 s14, s14, s64",
                [dma(8, SX, f"s_xor_b32 s68, s14, {hex(qq*0x8000)}", a + qq*4096) for qq in range(4)])
    if k == "W":
        return (f"s_add_u32 s13, s12, {i}\ns_and_b32 s13, s13, 7\ns_lshl_b32 s15, s13, 19\ns_add_u32 s15, s15, s65",
                [dma(9, SWQ, f"s_add_u32 s68, s15, {qq*16*8192}", a + qq*4096, "nt" if "wnt" in opts and i == 0 else "") for qq in range(4)])
    if k == "K":
        return ("", [dma(10, SK, f"s_xor_b32 s68, s66, {hex(qq*4096 + i*0x80000)}", a + qq*4096, NTK) for qq in range(4)])
    hd = f"s_add_u32 s13, s8, {i>>1}\ns_and_b32 s13, s13, 3\ns_xor_b32 s75, s71, {i&1}\n"
    if k == "V":
        return (hd + "s_lshl_b32 s13, s13, 14\ns_lshl_b32 s75, s75, 7\ns_add_u32 s14, s13, s75\ns_add_u32 s14, s14, s69",
                [dma(11, SV, f"s_xor_b32 s68, s14, {hex((qq&1)*8192 + (qq>>1)*0x80000)}", a + qq*4096) for qq in range(4)])
    if k == "U":
        return (hd + "s_lshl_b32 s13, s13, 17\ns_lshl_b32 s75, s75, 16\ns_add_u32 s15, s13, s75\ns_add_u32 s15, s15, s70",
                [dma(12, SWO, f"s_add_u32 s68, s15, {qq*16*1024}", a + qq*4096) for qq in range(4)])
    return (f"s_add_u32 s13, s8, {i}\ns_and_b32 s13, s13, 3\ns_lshl_b32 s13, s13, 14\ns_add_u32 s15, s13, s73\ns_add_u32 s15, s15, s67",
            [dma(13, SWS, f"s_add_u32 s68, s15, {'abcd'.index(it[2])*16384//NPQ + qq*4096}", a + qq*4096, "sc1") for qq in range(4//NPQ)])
lbl = [0]
class Loader:
    def __init__(s_): s_.n = 0; s_.last = {}; s_.cur = -1; s_.occ = []; s_.done = set(); s_.landed = -2
    def copy(s_):
        o = Loader(); o.__dict__.update({k: (x.copy() if hasattr(x, "copy") else x) for k, x in s_.__dict__.items()}); return o
    def wait(s_, names, note=True):
        hi = max(s_.last[i] for i in names)
        if note and hi <= s_.landed: return
        A(f"s_waitcnt vmcnt({min(s_.n - 1 - hi, 63)})")
        if note: s_.landed = hi
    def claim(s_, x):
        lo, hi = LOC[x][0], LOC[x][0] + LOC[x][1]
        for (a_, b_, it) in s_.occ:
            if a_ < hi and lo < b_: assert free[it] <= s_.cur, f"WAR: {x} after {bars[s_.cur]} but {it} free at {free[it]}"
        s_.occ = [o for o in s_.occ if not (o[0] >= lo and o[1] <= hi)] + [(lo, hi, x)]
        if x[0] == "P": assert "pw" in s_.done
    def step(s_, x):
        s_.done.add(x)
        if x not in bars: A.c(x)
        if x == "setup": late_setup()
        elif x in bars:
            s_.cur += 1; assert bars[s_.cur] == x, (x, bars[s_.cur])
            nd = [i for i, f in first.items() if f == s_.cur]
            if nd: s_.wait(nd)
            A(f"s_barrier                ; {x}"); stamp(x)
        elif x == "clr":
            assert "setup" in s_.done
            lbl[0] += 1; s_.last["clr"] = s_.n - 1
            A(f"s_cmp_lg_u32 s3, 0\ns_cbranch_scc1 L_k{lbl[0]}")
            if FSH == 8: A(f"v_lshlrev_b32 v1, 2, v0\nbuffer_store_dword v17, v1, s[{SWS}:{SWS+3}], s77 offen sc1")
            else:
                assert FSH == 10
                A(f"v_lshlrev_b32 v1, 4, v0\nv_mov_b32 v28, 0\nv_mov_b32 v29, 0\nv_mov_b32 v30, 0\nv_mov_b32 v31, 0\nbuffer_store_dwordx4 v[28:31], v1, s[{SWS}:{SWS+3}], s77 offen sc1")
            A(f"L_k{lbl[0]}:")
        elif x.startswith("pf"):
            lo = int(x[2:] or 0)
            A(f"s_sub_u32 s13, s77, {WS_FLAG}\ns_lshl_b32 s13, s13, 7\ns_lshl_b32 s14, s3, 13\ns_add_u32 s13, s13, s14\ns_add_u32 s14, s13, {WS_PART}\ns_add_u32 s15, s14, 4096")
            A("v_mov_b32 v24, -1\nv_mov_b32 v25, -1\nv_mov_b32 v26, -1\nv_mov_b32 v27, -1\nv_lshlrev_b32 v13, 4, v0")
            for p in range(lo, 7):
                A(f"buffer_store_dwordx4 v[24:27], v13, s[{SWS}:{SWS+3}], {'s14' if p < 4 else 's15'} offen offset:{(p&3)*1024} sc1"); s_.n += 1
            s_.last["pf"] = s_.n - 1
        elif x == "atm":
            lbl[0] += 1
            A(f"s_cmp_lg_u32 s3, 0\ns_cbranch_scc1 L_k{lbl[0]}"); s_.wait(["clr"], False)
            A(f"s_lshl_b32 s13, s72, 2\nv_mov_b32 v2, 1\ns_mov_b64 exec, 1\nbuffer_atomic_add v2, v17, s[{SDBG}:{SDBG+3}], s13 offen\ns_mov_b64 exec, -1"); A(f"L_k{lbl[0]}:")
        elif x[0] == "k" and x[1:].isdigit():
            for c in x[1:]:
                it = f"K{int(c) >> 2}"
                if not any(o[2] == it for o in s_.occ): s_.claim(it)
                A(load_ops(it)[1][int(c) & 3]); s_.last[it] = s_.n; s_.n += 1
        elif x == "ci":
            A(f"buffer_load_dword v20, v19, s[{SDBG}:{SDBG+3}], 0 offen sc1"); s_.last["ci"] = s_.n; s_.n += 1
        elif x == "cw":
            assert s_.cur < bars.index("B10" if oi("flgc", 34) >= 42 else "B9")
            lbl[0] += 1; k = lbl[0]; s_.wait(["ci"])
            A(f"v_cmp_gt_u32 vcc, 4, v20\ns_cbranch_vccz L_lr{k}"); A(f"L_ll{k}:")
            A(f"s_sleep 8\nbuffer_load_dword v20, v19, s[{SDBG}:{SDBG+3}], 0 offen sc1\ns_add_u32 s76, s76, 1\ns_waitcnt vmcnt(0)\ns_cmp_ge_u32 s76, {SPIN}\ns_cbranch_scc1 L_lr{k}\nv_cmp_gt_u32 vcc, 4, v20\ns_cbranch_vccnz L_ll{k}")
            A(f"L_lr{k}:")
        elif x == "pr":
            assert s_.cur >= bars.index("B9" if EARLY8 else "B8")
            for t in range(4): A(f"ds_read_b128 {v(32+4*t,4)}, v14 offset:{LOC['P0'][0] + t*1024}")
        elif x == "pub":
            assert "pr" in s_.done
            A(f"s_lshl_b32 s13, s8, 14\ns_add_u32 s68, s13, s73\ns_waitcnt lgkmcnt(0)")
            for t in range(4): A(f"buffer_store_dwordx4 {v(32+4*t,4)}, v14, s[{SWS}:{SWS+3}], s68 offen offset:{t*1024} sc1")
            s_.n += 4; s_.last["pub"] = s_.n - 1
        elif x == "flg":
            assert "cw" in s_.done; s_.wait(["pub"])
            A(f"s_mov_b64 exec, 15\nbuffer_store_dword v15, v7, s[{SWS}:{SWS+3}], s79 offen offset:128 sc1\ns_mov_b64 exec, -1"); s_.n += 1; stamp(x)
        elif x == "pi": A(f"s_add_u32 s78, s77, 128\ns_load_dwordx16 s[80:95], s[30:31], s78 glc")
        elif x == "pw":
            assert PUBC or "flg" in s_.done; lbl[0] += 1; k = lbl[0]
            red = "".join(f"s_and_b64 s[80:81], s[80:81], s[{i}:{i+1}]\n" for i in range(82, 96, 2)) + "s_and_b32 s80, s80, s81\n"
            A(f"s_waitcnt lgkmcnt(0)\n{red}s_cbranch_scc1 L_lr{k}"); A(f"L_ll{k}:")
            A(f"s_load_dwordx16 s[80:95], s[30:31], s78 glc\ns_add_u32 s76, s76, 1\ns_waitcnt lgkmcnt(0)\ns_cmp_ge_u32 s76, {SPIN}\ns_cbranch_scc1 L_lr{k}\n{red}s_cbranch_scc0 L_ll{k}")
            A(f"L_lr{k}:"); stamp(x)
        else:
            its = [f"X{x[1:]}", f"W{x[1:]}"] if x[0] == "S" and int(x[1:]) < 8 else [f"V{int(x[1:])-8}", f"U{int(x[1:])-8}"] if x[0] == "S" else [x]
            ops = []
            for it in its: s_.claim(it); st, o = load_ops(it); A(st); ops.append(o)
            if KWAIT[0]: ops[0][0] = ops[0][0].replace("buffer_load", "s_waitcnt lgkmcnt(0)\nbuffer_load"); KWAIT[0] = False
            if "seq" in opts and its[0][0] == "X":
                for o in ops:
                    for z in o: A(z); s_.n += 1
            else:
                for k in range(4):
                    for it, o in zip(its, ops):
                        if k < len(o): A(o[k]); s_.n += 1
            for it in its: s_.last[it] = s_.n - 1
    def sigof(s_): return (s_.cur, tuple(sorted((i, min(s_.n - k, 64)) for i, k in s_.last.items() if (first.get(i, -1) > s_.cur and k > s_.landed) or (i == "ci" and "cw" not in s_.done) or (i == "pub" and "flg" not in s_.done) or (i == "clr" and "atm" not in s_.done))), tuple(sorted(s_.occ)), tuple(sorted(x for x in s_.done if x[0].islower() and x[0] != 'k')))

DEF = ("S0 setup S1 clr B0 S2 B1 S3 B2 0:atm 0:K0 0:K1 S4 B3 S5 B4 S6 B5 1:atm 1:K0 1:K1 S7 B6 S8 B7 S9 BK ci U2 B8 cw B9 V2 S11 B10 S12 B11 S13 B12 S14 B13 pi S15 B14 pw "
       "P1a P2a P3a B15 P1b P2b P3b Pa Pb")
sched = opts.get("sched", DEF).replace("_", " ").split()
if PUBC: sched = [x for x in sched if x not in ("pr", "pub", "flg")]
NG = len({x.split(":")[0] for x in sched if ":" in x})
L0 = Loader()
k0 = min([i for i, x in enumerate(sched) if ":" in x] + [len(sched)])
for i in range(k0): L0.step(sched[i])
k1 = max([i for i, x in enumerate(sched) if ":" in x] + [k0 - 1]) + 1
def rung(gi, hi):
    Lg = L0.copy()
    for x in sched[k0:hi]:
        if ":" not in x or int(x.split(":")[0]) == gi: Lg.step(x.split(":")[-1])
    return Lg
Lg = L0
if NG:
    pb = oi("parbit", 4)
    A({2: f"s_bfe_u32 s78, s5, {hex(0x10000 | pb)}", 4: f"s_bfe_u32 s78, s5, {hex(0x20000 | pb)}", 3: "s_mul_i32 s78, s5, 3\ns_lshr_b32 s78, s78, 5"}[NG])
    while True:
        sa, sl = len(A.lines), lbl[0]
        sg = {rung(gi, k1).sigof() for gi in range(NG)}
        del A.lines[sa:]; lbl[0] = sl
        if len(sg) == 1: break
        k1 += 1; assert k1 <= len(sched)
    for gi in range(NG):
        if gi: A(f"L_g{gi}:")
        if gi < NG - 1: A(f"s_cmp_lg_u32 s78, {gi}\ns_cbranch_scc1 L_g{gi+1}")
        Lg = rung(gi, k1)
        if gi < NG - 1: A("s_branch L_merge")
        if gi == 0 and PADS: A("L_hole0:"); A("s_branch L_holem")
        if gi == NG - 1 and PADS: A("s_branch L_merge"); A("L_holem:"); A("s_branch L_hole1")
    A("L_merge:")
    for x in sched[k1:]: Lg.step(x)
assert Lg.cur == len(bars) - 2
if PADS and not NG: HOLE0 = True
for gi in range(max(NG, 1)):
    kp = ''.join(x.split(':')[-1][1:] for x in sched if x.split(':')[-1][0] == 'k' and (':' not in x or int(x.split(':')[0]) == gi))
    assert not kp or sorted(kp) == sorted('01234567'), kp
if "show" in opts:
    for it in first: print(it, "first", bars[first[it]], "free", bars[free[it]] if free.get(it, 999) < 999 else None)
A(f"""s_lshl_b32 s13, s11, 2
s_add_u32 s13, s13, s9
s_lshl_b32 s13, s13, 3
s_add_u32 s13, s13, s4
s_lshl_b32 s14, s13, 2
s_add_u32 s14, s14, s3
s_lshl_b32 s14, s14, 13
s_add_u32 s14, s14, {WS_PART}
s_add_u32 s15, s14, 4096
s_lshl_b32 s75, s3, {WSH}
s_add_u32 s13, s77, s75
s_lshl_b32 s75, s3, 6
s_lshl_b32 s77, s9, 8
s_add_u32 s75, s75, s77
s_lshl_b32 s76, s72, 4
v_add_u32 v1, s76, v4
v_lshlrev_b32 v1, 10, v1
v_bfe_u32 v2, v0, 4, 1
v_lshl_add_u32 v1, v2, 5, v1
v_lshrrev_b32 v2, 5, v0
v_lshl_add_u32 v1, v2, 4, v1
v_add_u32 v1, s75, v1
v_add_u32 v14, {OWNP}, v14
v_and_b32 v22, 7, v0
v_lshlrev_b32 v22, 2, v22
s_mov_b32 s77, 0xffff0000
s_mov_b32 s76, 0""")
def acc(p):
    for d in range(4):
        r = 64 + 4*p + d
        if p == 0: A(f"v_lshlrev_b32 v{48+2*d}, 16, v{r}\nv_and_b32 v{49+2*d}, s77, v{r}")
        else: A(f"v_lshlrev_b32 v2, 16, v{r}\nv_and_b32 v3, s77, v{r}\nv_pk_add_f32 v[{48+2*d}:{49+2*d}], v[{48+2*d}:{49+2*d}], v[2:3]")
FP = oi("fp", 0); PS = oi("ps", 0)
ZB = "s_barrier\nds_read_b128 v[40:43], v14\nds_read_b128 v[44:47], v14 offset:1024"
TP = oi("tp", 3); ntp = [0]
def tpad():
    if TP: A(f"L_tp{ntp[0]}:"); ntp[0] += 1; A(f"s_cbranch_vccnz L_tp{ntp[0]}")
if TP: A("s_mov_b64 vcc, -1\ns_branch L_tp0"); A("L_tb:"); A("s_mov_b64 vcc, 0")
if ZE: A(ZB)
if oi("ps0", 0): A(f"s_sleep {oi('ps0', 0)}")
if FP:
    for i in range(8): A(f"s_mov_b32 s{80+i}, 0")
for p in range(7):
    if "dg3" in opts or "dg4" in opts: A(f"s_branch L_fd{p}")
    if p > 0: A((f"s_bitcmp1_b32 vcc_lo, {p}" if "vp" in opts else f"s_cmp_lg_u32 s{80+p}, 0") + f"\ns_cbranch_scc1 L_fd{p}")
    A(f"L_fw{p}:")
    if FP and p >= oi("fpfrom", 4):
        A(f"s_load_dwordx8 s[80:87], s[30:31], s13 glc\ns_add_u32 s76, s76, 1\ns_cmp_ge_u32 s76, {SPIN}\ns_sleep {FP}\ns_waitcnt lgkmcnt(12)\ns_cbranch_scc1 L_fd{p}")
    elif "vp" in opts:
        A(f"buffer_load_dword v21, v22, s[{SWS}:{SWS+3}], s13 offen sc1\ns_add_u32 s76, s76, 1\ns_waitcnt vmcnt(0)\nv_cmp_ne_u32 vcc, 0, v21\ns_cmp_ge_u32 s76, {SPIN}\ns_cbranch_scc1 L_fd{p}")
    else:
        if PS: A(f"s_sleep {PS}")
        A(f"s_load_dwordx8 s[80:87], s[30:31], s13 glc\ns_add_u32 s76, s76, 1\ns_cmp_ge_u32 s76, {SPIN}\ns_waitcnt lgkmcnt(0)\ns_cbranch_scc1 L_fd{p}")
    A((f"s_bitcmp0_b32 vcc_lo, {p}" if "vp" in opts else f"s_cmp_eq_u32 s{80+p}, 0") + f"\ns_cbranch_scc1 L_fw{p}")
    A(f"L_fd{p}:")
    if not ("dg1" in opts and p < 6) and "dg4" not in opts: A(f"buffer_load_dwordx4 {v(64+4*p,4)}, v13, s[{SWS}:{SWS+3}], {'s14' if p < 4 else 's15'} offen offset:{(p&3)*1024} sc1 {'nt' if 'fnt' in opts else ''}")
    stamp(f"f{p}")
    if p in (2, 6): tpad()
if not ZE: A(ZB)
for p in range(6):
    A(f"s_waitcnt vmcnt({6-p})"); acc(p)
    if p % TP == TP - 1 if TP else False: tpad()
A("s_waitcnt lgkmcnt(0)")
for d in range(4): A(f"v_pk_add_f32 v[{48+2*d}:{49+2*d}], v[{48+2*d}:{49+2*d}], v[{40+2*d}:{41+2*d}]")
A("s_waitcnt vmcnt(0)"); acc(6)
for d in range(4): A(f"v_cvt_pk_bf16_f32 v{56+d}, v{48+2*d}, v{49+2*d}")
A("s_nop 1\nv_permlane16_swap_b32 v56, v58\nv_permlane16_swap_b32 v57, v59")
A(f"buffer_store_dwordx4 v[56:59], v1, s[{SOUT}:{SOUT+3}], 0 offen {opts.get('outf', '').replace('+', ' ')}")
if STAMP:
    A("s_waitcnt vmcnt(0)"); stamp("end")
    A("s_cmp_lg_u32 s3, 0\ns_cbranch_scc1 L_end")
    A(f"s_lshl_b32 s13, s2, 9\ns_add_u32 s13, s13, {hex(WS_STAMP)}\nv_lshlrev_b32 v253, 3, v0\nv_add_u32 v253, s13, v253")
    A(f"v_cmp_gt_u32 vcc, 48, v0\ns_nop 1\ns_mov_b64 exec, vcc")
    A(f"buffer_store_dwordx2 v[254:255], v253, s[{SWS}:{SWS+3}], 0 offen")
A("s_endpgm")
if TP: A(f"L_tp{ntp[0]}:"); A("s_branch L_tb")
if PADS and not NG: A("L_hole0:")
if PADS: A("L_hole1:"); A("s_branch L_pad0")

out = HEADER
out += "; @launch grid=(256,1,1) block=(512,1,1) lds=163840\n"
if STAMP:
    nm = {0: "t0"}
    for i, n_ in enumerate(lst): nm[i + 1 + (i + 1 >= 30)] = "L" + n_
    for i, n_ in enumerate(cst): nm[48 + i] = n_
    out += "; stampnames " + " ".join(f"{k}={x}" for k, x in nm.items()) + "\n"
out += """;
; One persistent launch, one workgroup per CU (generated by a script of mine; all code is hand-scheduled).
;   waves 4-7 stream tiles into LDS (LDS-DMA, XOR-swizzled images); waves 0-3 run 16x16x32 bf16 MFMAs.
;   3. out[:, jn] partial = sum over the 4 heads of P_h (V_h Wo_h[:, jn])   (same function, re-associated).
;   4. the 8 head groups reduce-scatter bf16 partials through d_ws; the owner adds them in fp32 and stores out.
; with the L1 bypassed, so they hold for any workgroup placement.  Flag words are cleared at the start of every
; launch and the clear is certified through counters in d_debug before anyone sets a flag.
"""
out += f'.amdgcn_target "amdgcn-amd-amdhsa--gfx950"\n.text\n.globl {KN}\n.type {KN},@function\n' + A.text() + C.text() + "L_codeend:\n"
out += '.section .rodata,"a"\n' + kd(KN, 256)
if "nopad" not in opts:
    import subprocess, re
    def addrs(text, lab='L_back'):
        open("_ap.s", "w").write(text)
        subprocess.run(["clang", "-x", "assembler", "-target", "amdgcn-amd-amdhsa", "-mcpu=gfx950", "-c", "_ap.s", "-o", "_ap.o"], check=True)
        d = subprocess.run(["llvm-objdump", "-d", "--mcpu=gfx950", "_ap.o"], capture_output=True, text=True).stdout
        d = d[d.index(f"<{lab}>:"):]
        return [int(m.group(1), 16) + oi("stub", 0x300) for m in re.finditer(r"// ([0-9A-F]{12}):", d)]
    if oi("lhole", 0):
        lines = out.split("\n"); i0 = lines.index("L_loader:"); i1 = lines.index("L_tb:") if TP else lines.index("L_fw0:")
        ins = [i for i in range(i0, i1) if lines[i].startswith("    ") and not lines[i].strip().startswith(";")]
        ad = addrs(out, "L_loader")
        cross = [j for j in range(1, len(ins)) if ad[j] // 4096 != ad[j-1] // 4096]
        assert len(cross) <= 1
        if cross:
            j = ins[cross[0]]
            ih = lines.index("L_hole1:"); lines[ih] = "L_hole2:"
            lines[j:j] = ["    s_branch L_hskip", "L_hole1:", "    s_branch L_hole2", "L_hskip:"]
            out = "\n".join(lines)
    k = 0
    while True:
        lines = out.split("\n"); i0 = lines.index("L_back:")
        ins = [i for i in range(i0, lines.index('L_end:')) if lines[i].startswith("    ") and not lines[i].strip().startswith(";")]
        ad = addrs(out)
        cross = [j for j in range(1, min(len(ad), len(ins))) if ad[j] // 4096 != ad[j-1] // 4096]
        if k >= len(cross): break
        j = ins[cross[k]]
        ie = lines.index(f"L_pad{k}:"); lines[ie] = f"L_pad{k+1}:"
        lines[j:j] = [f"L_pad{k}:", f"    s_cbranch_vccnz L_pad{k+1}"]
        out = "\n".join(lines); k += 1
open(sys.argv[1], "w").write(out)
```

```python
import sys, math, struct
from collections import defaultdict
from common import *
opts = dict(a.split("=") if "=" in a else (a, "1") for a in sys.argv[2:])
def oi(k, d): return int(opts.get(k, d))
STAMP = "stamp" in opts
NTK = "" if "nont" in opts else "nt"
MF = "v_mfma_f32_16x16x32_bf16"
KN = NAME + "_kernel"
WSB = int(opts.get('wsb', '0'), 0)
WS_P, WS_PART, WS_FLAG, WS_STAMP = WSB, WSB + 0x400000, WSB + 0xC00000, 0x9000000
SPIN = 1 << 18
K1 = 1024
JN = {'1': 's_add_u32 s9, s8, s11', '2': 's_lshl1_add_u32 s9, s11, s8', '0': 's_mov_b32 s9, s8'}[opts.get('jn', '2')]
FSH = oi('fsh', 10); WSH = FSH - 2 if FSH > 8 else 5
SSET = set(opts["sset"].split(",")) if "sset" in opts else None

U = lambda u: (u * 16 * K1, 16 * K1)
LOC = {}
def place(prefix, i0, units):
    for i, u in enumerate(units): LOC[f"{prefix}{i0+i}"] = U(u)
place("X", 0, [int(c) for c in opts.get("xu", "01230123")])
place("W", 0, [int(c) for c in opts.get("wu", "45674567")])
place("V", 0, [int(c) for c in opts.get("vu", "01289012")])
place("U", 0, [int(c) for c in opts.get("uu", "45674567")])
LOC["K0"], LOC["K1"] = U(8), U(9)
LOC["P0"] = LOC["X7"]
place("P", 1, [int(c) for c in opts.get("pu", "894")])
FIN = LOC["P0"][0]

C = Asm()
bars = []; first, free = {}, {}
q = []; pend = set(); dsn = [0]
def _ret(n):
    while len(q) > n:
        it = q.pop(0)[1]
        if it: pend.add(it)
def ds(ins, item=None):
    lim = 13 if STAMP else 15
    if len(q) >= lim: C(f"s_waitcnt lgkmcnt({lim-1})"); _ret(lim - 1)
    C(ins); dsn[0] += 1; q.append((dsn[0], item))
    if item:
        if item not in first: first[item] = len(bars) - 1
        free.pop(item, None)
    return dsn[0]
def need(*ids):
    pos = [k for k, (i, _) in enumerate(q) if i in ids]
    if pos:
        n = len(q) - 1 - max(pos); C(f"s_waitcnt lgkmcnt({n})"); _ret(n)
def drain():
    if q: C("s_waitcnt lgkmcnt(0)"); _ret(0)
def bar(name):
    if opts.get("diagslp") == name: C("s_sleep 5")
    bars.append(name); C(f"s_barrier                ; {name}"); cstamp(name)
    live = {it for _, it in q}
    for it in list(pend):
        if it not in live: free[it] = len(bars) - 1; pend.discard(it)
cst = []; CREG = list(range(32, 56, 2)) + [60, 62, 92, 94]
def cstamp(name):
    if STAMP and SSET is not None and name in SSET:
        i = len(cst); cst.append(name); assert i < 16
        if len(q) > 12: C("s_waitcnt lgkmcnt(12)"); _ret(12)
        C(f"s_mem{'real' if 'rt' in opts else ''}time s[{CREG[i]}:{CREG[i]+1}]")
I = lambda x: (lambda: C(x))
npad = [0]
PADS = [int(x) for x in opts.get("pads", "").split(",") if x] or ([-1] if "nopad" not in opts else [])
def pad():
    C(f"L_pad{npad[0]}:"); npad[0] += 1; C(f"s_cbranch_vccnz L_pad{npad[0]}")

VX, VW, LIN0, VOWN = 4, 8, 16, 17
TM = 18
ACC, BR0, PR, VWS = 24, 88, 112, 128
BR = [BR0 + 4*i for i in range(6)]
QB, SC, PB, VK = VWS + 96, VWS + 64, VWS + 48, VWS + 32
C("L_compute:")
C(f"s_setprio {oi('prio', 0)}")
srd_consts(C, [SWS])
C(f"""v_and_b32 v1, 15, v0
v_lshrrev_b32 v2, 4, v0
v_bfe_u32 v3, v0, 1, 3
v_xor_b32 v3, v3, v2
v_lshlrev_b32 v3, 4, v3
v_lshl_add_u32 v3, v1, 7, v3
s_lshl_b32 s70, s3, 12
v_add_u32 v{VX}, s70, v3
v_xor_b32 v{VX+1}, 64, v{VX}
v_add_u32 v{VX+2}, 0x20000, v3
v_xor_b32 v{VX+3}, 64, v{VX+2}
v_lshrrev_b32 v3, 1, v2
v_xor_b32 v3, v3, v1
v_lshlrev_b32 v3, 4, v3
v_lshl_add_u32 v3, v1, 8, v3
v_and_b32 v18, 1, v2
v_lshl_add_u32 v3, v18, 3, v3
s_lshr_b32 s13, s3, 1
s_lshl_b32 s13, s13, 14
s_add_u32 s13, s13, 0x20000
v_add_u32 v{VK}, s13, v3
v_lshlrev_b32 v{LIN0}, 4, v0
v_add_u32 v{VOWN}, s70, v{LIN0}
v_bfe_u32 v1, v0, 2, 2
v_and_b32 v3, 3, v0
v_lshlrev_b32 v3, 3, v3
v_lshl_add_u32 v19, v18, 2, v1
v_lshl_add_u32 v20, v2, 3, v1
v_lshlrev_b32 v20, 8, v20
v_lshl_add_u32 v20, v19, 5, v20
v_add_u32 v20, v20, v3
v_add_u32 v{VW}, 0x10000, v20""")
for i in range(1, 8): C(f"v_xor_b32 v{VW+i}, {i*32}, v{VW}\nv_xor_b32 v{VK+i}, {i*32}, v{VK}")
C(f"""s_lshl_b32 s13, s11, 2
s_add_u32 s13, s13, s9
s_lshl_b32 s13, s13, 3
s_add_u32 s13, s13, s4
s_lshl_b32 s65, s13, 15
s_lshl_b32 s14, s3, 13
s_add_u32 s65, s65, s14
s_lshl_b32 s66, s13, {FSH}
s_lshl_b32 s14, s3, {WSH}
s_add_u32 s66, s66, s14""")
for p in range(7):
    C(f"s_xor_b32 s13, s65, {(7-p) << 15}\ns_add_u32 s{80+p}, s13, {WS_PART + p*1024}")
    C(f"s_xor_b32 s13, s66, {(7-p) << FSH}\ns_add_u32 s{72+p}, s13, {WS_FLAG + p*4}")
C(f"""s_lshl_b32 s13, s11, 3
s_add_u32 s13, s13, s4
s_lshl_b32 s64, s13, 16
s_lshl_b32 s14, s8, 14
s_add_u32 s64, s64, s14
s_add_u32 s64, s64, {WS_P}
s_lshl_b32 s67, s11, {FSH+5}
s_lshl_b32 s14, s4, {FSH}
s_add_u32 s67, s67, s14
s_lshl_b32 s14, s8, 4
s_add_u32 s67, s67, s14
s_lshl_b32 s14, s3, 2
s_add_u32 s67, s67, s14
s_add_u32 s67, s67, {WS_FLAG + 128}""")
cs = struct.unpack("<I", struct.pack("<f", math.log2(math.e) / math.sqrt(128)))[0]
C(f"s_mov_b32 s68, {hex(cs)}\ns_mov_b32 s69, {hex(cs)}\ns_lshl_b32 s71, s3, 6")
C("s_waitcnt lgkmcnt(0)")
srd_ptrs(C, [SWS])
if PADS:
    C("s_waitcnt vmcnt(0)\ns_mov_b64 vcc, -1\ns_branch L_hole0"); C("L_back:"); C("s_mov_b64 vcc, 0")

WP = oi('wp', 1)
class Stream:
    def __init__(s_): s_.e = []; s_.fill = defaultdict(list); s_.before = defaultdict(list); s_.id = defaultdict(list); s_.hold = {}
    def rd(s_, m, k): s_.id[m].append(s_.e[m][0][k](BR[m % 6]))
    def prologue(s_, lo):
        for m in range(lo, lo + 6):
            for k in range(len(s_.e[m][0])): s_.rd(m, k)
    def run(s_, lo, hi, stop):
        for m in range(lo, hi):
            for f in s_.before.pop(m, []): f()
            cstamp(f'e{m}')
            if m in PADS: s_.fill[2*m].append(pad)
            assert len(s_.id[m]) == len(s_.e[m][0]), m
            for hh in range(2):
                a_, b_, d, fst, deps = s_.e[m][1][hh ^ (m & 1)]
                extra = s_.id[m+1] if (WP and m % 2 == 0 and m + 1 < hi and m > lo) else []
                need(*s_.id[m], *extra, *deps())
                R = v(BR[m % 6], 4)
                C(f"{MF} {v(d,4)}, {R if a_ is None else v(a_,4)}, {R if b_ is None else v(b_,4)}, {'0' if fst else v(d,4)}")
                if hh == 0 and m > lo and m + 5 < stop and len(s_.e[m+5][0]) == 2: s_.rd(m + 5, 1)
                if hh == 1 and m + 6 < stop: s_.rd(m + 6, 0)
                for f in s_.fill.pop(2*m + hh, []): f()
S = Stream(); pid = {}
def xaddr(a, ss): return (VX + ss + (2 if a >= 128*K1 else 0), a % 65536)
def x_rd(n, qt):
    it = f"X{n//2}"; r, o = xaddr(LOC[it][0], n & 1); assert LOC[it][0] < 65536
    return lambda: pid.__setitem__(("x", n, qt), ds(f"ds_read_b128 {v(PR+8*(n&1)+4*qt,4)}, v{r} offset:{o + qt*2048}", it))
for n in range(16):
    for mt in range(8):
        it = f"W{n//2}"
        rds = [lambda r, it=it, n=n, mt=mt, e=e: ds(f"ds_read_b64_tr_b16 {v(r+2*e,2)}, v{VW + (mt ^ (4*e))} offset:{LOC[it][0]-65536 + (n&1)*8192 + e*1024}", it) for e in range(2)]
        S.e.append((rds, [(None, PR + 8*(n&1) + 4*qt, ACC + 8*mt + 4*qt, n == 0, lambda n=n, qt=qt: [pid[("x", n, qt)]]) for qt in range(2)]))
    if n < 15:
        for qt in range(2): S.fill[2*(8*n + 2 + 2*qt)].append(x_rd(n + 1, qt))
    if n & 1 and n < 15: S.before[8*n + 2].append(lambda n=n: bar(f"B{(n+1)//2}"))
if oi("bk", 1): S.before[122].append(lambda: bar("BK"))
QKO = oi("qko", 0)
qk = [(kt, s_) for s_ in range(4) for kt in range(4)]
if QKO: qk = qk[:8] + [(0, 2), (1, 2), (0, 3), (1, 3), (2, 2), (2, 3), (3, 2), (3, 3)]
for kt, s_ in qk:
    rds = [lambda r, kt=kt, s_=s_, e=e: ds(f"ds_read_b64{'_tr_b16' if 'ktr' in opts else ''} {v(r+2*e,2)}, v{VK + 2*s_ + e} offset:{kt*4096}", "K") for e in range(2)]
    S.e.append((rds, [(None, QB + 16*qt + 4*s_, SC + 16*qt + 4*kt, s_ == 0, lambda: []) for qt in range(2)]))
for mt in range(8):
    for k, (qt, i) in enumerate([(0, 0), (0, 1), (1, 0), (1, 1)]):
        if "nocvt" not in opts: S.fill[2*123 + (4*mt + k if not QKO else (4*mt + k) * 7 // 8)].append(I(f"v_cvt_pk_bf16_f32 v{QB+16*qt+2*mt+i}, v{ACC+8*mt+4*qt+2*i}, v{ACC+8*mt+4*qt+2*i+1}"))
adr = [f"v_subrev_u32 v{VX+k}, s70, v{VX+k}" for k in range(2)] + [f"v_xor_b32 v{VW+k}, s71, v{VW+k}" for k in (0, 1, 4, 5)]
for k, x in enumerate(adr): S.fill[2*(117 + k) if k < 2 else 2*(130 + k)].append(I(x))
M = lambda qt: TM + 2*qt
if QKO:
    for qt in range(2):
        S.fill[2*142 + 0].append(I(f"v_max3_f32 v{M(qt)}, v{SC+16*qt}, v{SC+16*qt+1}, v{SC+16*qt+2}"))
        S.fill[2*143 + 0].append(I(f"v_max3_f32 v{M(qt)}, v{M(qt)}, v{SC+16*qt+3}, v{SC+16*qt+4}"))
        S.fill[2*143 + 1].append(I(f"v_max3_f32 v{M(qt)}, v{M(qt)}, v{SC+16*qt+5}, v{SC+16*qt+6}"))
E2 = 144
OA = VWS + 64
LW = {0: LIN0, 1: VW + 2, 2: VW + 3}
VZ, V1 = VW + 6, VW + 7
def u_rd(n, k):
    it = f"U{n//2}"; nt, e = k >> 1, k & 1
    return lambda: pid.__setitem__(("u", n, k), ds(f"ds_read_b64_tr_b16 {v(PR+8*(n&1)+4*nt+2*e,2)}, v{VW + (nt ^ (4*e))} offset:{LOC[it][0]-65536 + (n&1)*8192 + e*1024}", it))
def vwreg(s_, b, u, nt):
    return ACC + 8*(4*b + 2*u) + 4*nt if s_ in (0, 3) else VWS + 32*(s_ - 1) + 16*b + 8*u + 4*nt
def add_vw(n):
    m0 = len(S.e)
    for rt in range(8):
        it = f"V{n//2}"; r0, o = xaddr(LOC[it][0], n & 1)
        rds = [lambda r, it=it, r0=r0, o=o, rt=rt: ds(f"ds_read_b128 {v(r,4)}, v{r0} offset:{o + rt*2048}", it)]
        S.e.append((rds, [(None, PR + 8*(n&1) + 4*nt, ACC + 8*rt + 4*nt, n % 4 == 0, lambda n=n, nt=nt: [pid[("u", n, 2*nt)], pid[("u", n, 2*nt+1)]]) for nt in range(2)]))
    if n:
        for k in range(4): S.fill[2*(m0 - 6 + k)].append(u_rd(n, k))
        if n % 2 == 0: S.before[m0 - 6].append(lambda n=n: bar(f"B{8 + n//2}"))
    if n % 4 == 3:
        slots = []
        for gq in range(6, 30):
            slots += [gq] * (2 if (gq % 2 == 0 and (gq // 2) % 8 in (6, 7, 0, 1)) or gq in (6, 8, 10) else 1)
        for rt in range(8):
            for k, (nt, i) in enumerate([(0, 0), (0, 1), (1, 0), (1, 1)]):
                S.fill[(2*(m0 + 3) + 4*rt + k) if (n in (3, 15) and oi("cvs", 1)) else (2*m0 + slots[4*rt + k]) if oi("cv2", 1) else 2*(m0 + rt + 4) + (k >> 1)].append(I(f"v_cvt_pk_bf16_f32 v{vwreg(n//4, rt>>2, (rt>>1)&1, nt)+2*(rt&1)+i}, v{ACC+8*rt+4*nt+2*i}, v{ACC+8*rt+4*nt+2*i+1}"))
NPQ = oi("npq", 2)
def add_pv(p, s_, u):
    it = "P0" if s_ == 0 else f"P{s_}" + "abcd"[p * NPQ // 8]; a = LOC[f"P{s_}"][0] + p*2048 + u*1024
    rds = [lambda r: ds(f"ds_read_b128 {v(r,4)}, v{LW[a // 65536]} offset:{a % 65536}", it)]
    S.e.append((rds, [(vwreg(s_, p >> 2, u, nt), None, OA + 8*p + 4*nt, s_ == 0 and u == 0, lambda: []) for nt in range(2)]))
for n in range(4): add_vw(n)
EP = len(S.e)
for b_ in range(2):
    for u in range(2):
        for p in range(4*b_, 4*b_ + 4): add_pv(p, 0, u)
for n in range(4, 16): add_vw(n)
E3 = len(S.e)
for p in range(8):
    for s_ in range(1, 4):
        for u in range(2): add_pv(p, s_, u)
for s_ in range(1, 4):
    for hf in range(NPQ): LOC[f"P{s_}{'abcd'[hf]}"] = (LOC[f"P{s_}"][0] + hf*16384//NPQ, 16384//NPQ)
for hf in range(NPQ): S.before[E3 + 48*hf//NPQ - 6].append(lambda hf=hf: bar("P" + "abcd"[hf]))
for k, x in enumerate([f"v_add_u32 v{LW[1]}, 0x10000, v{LIN0}", f"v_add_u32 v{LW[2]}, 0x20000, v{LIN0}", f"v_mov_b32 v{VZ}, 0", f"v_mov_b32 v{V1}, -1", f"v_lshlrev_b32 v1, {FSH+3}, v0"]):
    S.fill[2*((EP if oi('sovl', 0) else E2) + 6 + k) + 1].append(I(x))
vmq = []
def flag(p):
    C(f"s_waitcnt vmcnt({len(vmq) - 1 - vmq.index(f'D{p}')})\ns_mov_b64 exec, 1")
    C(f"buffer_store_dword v{V1}, v{VZ}, s[{SWS}:{SWS+3}], s{72+p} offen sc1\ns_mov_b64 exec, -1"); vmq.append(f"F{p}")
FLAG_LAG = oi("flag", 4)
for p in range(7):
    g0 = 2*(E3 + 6*(p+1) + 2); r = PR + 4*(p & 3)
    if p >= oi("fastsend", 7):
        ge = 2*(E3 + 6*(p+1) + 1) + 1
        S.fill[ge].append(I("s_nop 1"))
        for i in range(4): S.fill[ge].append(I(f"v_cvt_pk_bf16_f32 v{r+i}, v{OA+8*p+2*i}, v{OA+8*p+2*i+1}"))
        S.fill[ge].append(lambda p=p, r=r: (C(f"buffer_store_dwordx4 {v(r,4)}, v{LIN0}, s[{SWS}:{SWS+3}], s{80+p} offen sc1"), vmq.append(f"D{p}")))
        if p >= FLAG_LAG: S.fill[g0 + 6].append(lambda p=p: flag(p - FLAG_LAG))
        continue
    for i in range(4): S.fill[g0 + (2*((i >> 1) ^ 1) if oi("cv3", 1) else 1 + (i >> 1))].append(I(f"v_cvt_pk_bf16_f32 v{r+i}, v{OA+8*p+2*i}, v{OA+8*p+2*i+1}"))
    S.fill[g0 + 4].append(lambda p=p, r=r: (C(f"buffer_store_dwordx4 {v(r,4)}, v{VZ if 'dg2' in opts and p < 6 else LIN0}, s[{SWS}:{SWS+3}], s{80+p} offen sc1"), vmq.append(f"D{p}")))
    if p >= FLAG_LAG: S.fill[g0 + 6].append(lambda p=p: flag(p - FLAG_LAG))
if oi("sovl", 0):
    sm = []
    def op(x, c=4): sm.append((c, I(x)))
    for qt in range(2): op(f"v_max3_f32 v{M(qt)}, v{SC+16*qt}, v{SC+16*qt+1}, v{SC+16*qt+2}", 5)
    for i in range(3, 15, 2):
        for qt in range(2): op(f"v_max3_f32 v{M(qt)}, v{M(qt)}, v{SC+16*qt+i}, v{SC+16*qt+i+1}", 5)
    for qt in range(2): op(f"v_max_f32 v{M(qt)}, v{M(qt)}, v{SC+16*qt+15}")
    def xred(o_, fin, fc):
        a_, b_ = M(0), M(1)
        op("s_nop 1", 8); op(f"v_permlane32_swap_b32 v{a_}, v{b_}", 8); op(f"{o_} v{a_}, v{a_}, v{b_}"); op(f"v_mov_b32 v{b_}, v{a_}")
        op("s_nop 1", 8); op(f"v_permlane16_swap_b32 v{a_}, v{b_}", 8); op(f"{o_} v{a_}, v{a_}, v{b_}"); op(fin[0], fc); op(fin[1], fc)
        op("s_nop 1", 8); op(f"v_permlane32_swap_b32 v{a_}, v{b_}", 8)
    xred("v_max_f32", [f"v_mul_f32 v{M(1)}, s68, v{M(0)}", f"v_mul_f32 v{M(0)}, s68, v{M(0)}"], 4)
    SM = [M(0) + 1, M(1) + 1]
    op(f"v_fma_f32 v{SC}, v{SC}, s68, -v{M(0)}", 5)
    for i in range(32):
        op(f"v_exp_f32 v{SC+i}, v{SC+i}", 8)
        if i < 31: op(f"v_fma_f32 v{SC+i+1}, v{SC+i+1}, s68, -v{M((i+1)>>4)}", 5)
        j = i - 1
        if j >= 0 and j % 16: op(f"v_add_f32 v{SM[j>>4]}, v{SM[j>>4] if j % 16 > 1 else SC+j-1}, v{SC+j}")
    op(f"v_mov_b32 v{M(0)}, v{SM[0]}"); op(f"v_add_f32 v{M(1)}, v{SM[1]}, v{SC+31}")
    xred("v_add_f32", [f"v_rcp_f32 v{M(1)}, v{M(0)}", f"v_rcp_f32 v{M(0)}, v{M(0)}"], 8)
    wr = {}
    for t in range(4):
        for i in range(8): op(f"v_mul_f32 v{SC+8*t+i}, v{M(t>>1)}, v{SC+8*t+i}")
        for i in range(4): op(f"v_cvt_pk_bf16_f32 v{PB+4*t+i}, v{SC+8*t+2*i}, v{SC+8*t+2*i+1}", 5)
        sm.append((8, lambda t=t: wr.__setitem__("l", ds(f"ds_write_b128 v{VOWN}, {v(PB+4*t,4)} offset:{LOC['P0'][0] + t*1024}"))))
    sm.append((0, lambda: cstamp("sm")))
    g_lo, g_hi = 2*E2 - 1, 2*(E2 + oi("smend", 23))
    tot = sum(c for c, _ in sm); acc_ = 0
    for c, f in sm:
        S.fill[g_lo + int(acc_ * (g_hi - g_lo) / tot)].append(f); acc_ += c
    assert E2 + oi("smend", 23) < EP - 6
    S.before[EP - 6].append(lambda: (need(wr["l"]), bar("BP")))
    PUBC = oi("pubc", oi("smend", 23) + 1); EARLY8 = 1
    for t in range(4):
        S.fill[2*(E2 + PUBC + oi("pubd", 0)*t)].append(I(f"buffer_store_dwordx4 {v(PB+4*t,4)}, v{VOWN}, s[{SWS}:{SWS+3}], s64 offen offset:{t*1024} sc1"))
    S.fill[2*(E2 + oi("flgc", 66))].append(I(f"s_waitcnt vmcnt(0)\ns_mov_b64 exec, 15\nbuffer_store_dword v{V1}, v1, s[{SWS}:{SWS+3}], s67 offen sc1\ns_mov_b64 exec, -1"))

    for k in range(4): S.fill[2*(E2 - 5 + k)].append(u_rd(0, k))
    S.before[E2 - 6].append(lambda: bar("B8"))
    if oi("bq", 0): S.before[E2 + 1].append(lambda: bar("BQ"))
    bar("B0"); C("s_waitcnt vmcnt(0)")
    x_rd(0, 0)(); x_rd(0, 1)(); S.prologue(0)
    S.run(0, len(S.e), len(S.e))
    assert not S.fill and not S.before, (dict(S.fill), dict(S.before))
else:
    bar("B0"); C("s_waitcnt vmcnt(0)")
    x_rd(0, 0)(); x_rd(0, 1)(); S.prologue(0)
    S.run(0, E2, E2)
    cstamp("qk")
    if oi("bq", 0): bar("BQ")
    C.c("softmax over the 64 keys (16 per lane x 4 lane groups), two 16-query tiles")
    if not QKO:
        C("s_nop 2")
        for qt in range(2): C(f"v_max3_f32 v{M(qt)}, v{SC+16*qt}, v{SC+16*qt+1}, v{SC+16*qt+2}")
    for i in range(7 if QKO else 3, 15, 2):
        if QKO and i == 11: C("s_nop 1")
        for qt in range(2): C(f"v_max3_f32 v{M(qt)}, v{M(qt)}, v{SC+16*qt+i}, v{SC+16*qt+i+1}")
    for qt in range(2): C(f"v_max_f32 v{M(qt)}, v{M(qt)}, v{SC+16*qt+15}")
    def xred(op, fin, fill):
        a_, b_ = M(0), M(1)
        def gap(n):
            for _ in range(n): fill.pop(0)() if fill else C("s_nop 0")
        gap(2); C(f"v_permlane32_swap_b32 v{a_}, v{b_}\n{op} v{a_}, v{a_}, v{b_}\nv_mov_b32 v{b_}, v{a_}")
        gap(2); C(f"v_permlane16_swap_b32 v{a_}, v{b_}\n{op} v{a_}, v{a_}, v{b_}\n{fin[0]}\n{fin[1]}")
        gap(2); C(f"v_permlane32_swap_b32 v{a_}, v{b_}")
    xred("v_max_f32", [f"v_mul_f32 v{M(1)}, s68, v{M(0)}", f"v_mul_f32 v{M(0)}, s68, v{M(0)}"], [])
    pkf = lambda i: f"v_pk_fma_f32 {v(SC+2*i,2)}, {v(SC+2*i,2)}, s[68:69], {v(M(i>>3),2)} op_sel_hi:[1,1,0] neg_lo:[0,0,1] neg_hi:[0,0,1]"
    SM = [TM + 4, 2]
    C(pkf(0))
    for i in range(16):
        C(f"v_exp_f32 v{SC+2*i}, v{SC+2*i}")
        if i < 15: C(pkf(i + 1))
        C(f"v_exp_f32 v{SC+2*i+1}, v{SC+2*i+1}")
        j = i - 1
        if j >= 0 and j % 8: C(f"v_pk_add_f32 {v(SM[j>>3],2)}, {v(SM[j>>3],2) if j % 8 > 1 else v(SC+2*j-2,2)}, {v(SC+2*j,2)}")
    C(f"v_add_f32 v{M(0)}, v{SM[0]}, v{SM[0]+1}\nv_pk_add_f32 {v(SM[1],2)}, {v(SM[1],2)}, {v(SC+30,2)}\nv_add_f32 v{M(1)}, v{SM[1]}, v{SM[1]+1}")
    EARLY8 = oi("early8", 0); pro = []
    if EARLY8:
        if EARLY8 == 1: bar("B8")
        pro = [u_rd(0, k) for k in range(4)] + [lambda m=m: S.rd(m, 0) for m in range(E2, E2 + 6)]
    xred("v_add_f32", [f"v_rcp_f32 v{M(1)}, v{M(0)}", f"v_rcp_f32 v{M(0)}, v{M(0)}"], pro)
    for f in pro: f()
    PUBC = oi("pubc", -3)
    pst = lambda t: f"buffer_store_dwordx4 {v(PB+4*t,4)}, v{VOWN}, s[{SWS}:{SWS+3}], s64 offen offset:{t*1024} sc1"
    E8T = oi("e8t", -1)
    for t in range(4):
        if t == E8T:
            bar("B8"); EARLY8 = 3
            for k in range(4): u_rd(0, k)()
            S.prologue(E2)
        for i in range(8*t, 8*t + 8, 2): C(f"v_pk_mul_f32 {v(SC+i,2)}, {v(SC+i,2)}, {v(M(t>>1),2)} op_sel_hi:[1,0]")
        for i in range(4): C(f"v_cvt_pk_bf16_f32 v{PB+4*t+i}, v{SC+8*t+2*i}, v{SC+8*t+2*i+1}")
        lastw = ds(f"ds_write_b128 v{VOWN}, {v(PB+4*t,4)} offset:{LOC['P0'][0] + t*1024}")
        if PUBC == -3: C(pst(t))
    S.before[E2 + 10].insert(0, lambda: need(lastw))
    cstamp("sm")
    if PUBC == -2:
        for t in range(4): C(pst(t))
    if not EARLY8:
        if not PUBC: drain()
        bar("B8")
        for k in range(4): u_rd(0, k)()
        S.prologue(E2)
    if PUBC == -1:
        for t in range(4): C(pst(t))
    if PUBC > 0:
        for t in range(4): S.fill[2*(E2 + PUBC + oi("pubd", 0)*t)].append(I(pst(t)))
    if PUBC: S.fill[2*(E2 + oi("flgc", 34))].append(I(f"s_waitcnt vmcnt(0)\ns_mov_b64 exec, 15\nbuffer_store_dword v{V1}, v1, s[{SWS}:{SWS+3}], s67 offen sc1\ns_mov_b64 exec, -1"))
    S.run(E2, len(S.e), len(S.e))
    assert not S.fill and not S.before, (dict(S.fill), dict(S.before))
cstamp("T")
C("s_nop 6")
OWNP = LOC["U7"][0]
C(f"v_add_u32 v1, s70, v{LW[OWNP // 65536]}")
for nt in range(2): ds(f"ds_write_b128 v1, {v(OA+56+4*nt,4)} offset:{OWNP % 65536 + nt*1024}")
ZE = oi("ze", 1)
if ZE == 1: drain(); bar("Z")
for p in range(7):
    if f"F{p}" not in vmq: flag(p)
cstamp("fl")
if ZE != 1: drain(); bar("Z")
assert free["U7"] <= len(bars) - 2
if STAMP:
    C("s_cmp_lg_u32 s3, 0\ns_cbranch_scc1 L_end")
    C(f"s_lshl_b32 s13, s2, 9\ns_add_u32 s13, s13, {hex(WS_STAMP + 48*8)}")
    for i in range(len(cst)):
        C(f"s_waitcnt lgkmcnt(0)\nv_mov_b32 v2, s{CREG[i]}\nv_mov_b32 v3, s{CREG[i]}\nbuffer_store_dwordx2 v[2:3], v{VZ}, s[{SWS}:{SWS+3}], s13 offen offset:{8*i}")
C("L_end:"); C("s_endpgm")
if PADS: C(f"L_pad{npad[0]}:"); C("s_branch L_back")
for k in ("K0", "K1"): first[k], free[k] = first["K"], free["K"]
del first["K"], free["K"], first["P0"]
free["X7"] = 999

A = Asm()
lst = []
def stamp(name):
    if opts.get("amp") == name: A("s_memrealtime s[98:99]")
    if STAMP and (SSET is None or ("L" + name) in SSET):
        if name not in lst: lst.append(name)
        i = lst.index(name) + 1; i += (i >= 30); assert i < 48
        A(f"s_memtime s[98:99]\ns_memrealtime s[96:97]\ns_waitcnt lgkmcnt(0)\nv_writelane_b32 v254, s98, {i}\nv_writelane_b32 v255, s96, {i}")
if "noal" not in opts: A(".p2align 12")
A(".p2align 8"); A(f"{KN}:")
if "amp" in opts: A("s_memrealtime s[96:97]")
A(f"s_load_dwordx2 s[{SX}:{SX+1}], s[0:1], 0\ns_load_dwordx2 s[{SWQ}:{SWQ+1}], s[0:1], 24\ns_load_dwordx16 s[16:31], s[0:1], 0")
A("s_cmp_ge_u32 s2, 256\ns_cbranch_scc1 L_end")
if STAMP: A("s_memtime s[94:95]\ns_memrealtime s[92:93]")
A(f"""v_readfirstlane_b32 s3, v0
s_and_b32 s4, s2, 7
s_bfe_u32 s8, s2, 0x20003
s_lshr_b32 s11, s2, 5
s_bitcmp1_b32 s3, 8
s_cbranch_scc1 L_loader""")
NPF = oi("npf", 22)
A("s_lshr_b32 s3, s3, 6\nv_and_b32 v0, 63, v0\ns_getpc_b64 s[6:7]")
A("L_pc:")
A(f"s_lshl_b32 s13, s8, 2\ns_add_u32 s13, s13, s3\ns_mul_i32 s13, s13, {NPF}*64")
A(f"v_min_u32 v1, {NPF-1}, v0\nv_lshlrev_b32 v1, 6, v1\nv_add_u32 v1, s13, v1")
A(f"v_min_u32 v1, L_codeend-L_pc-4, v1")
A("global_load_dword v130, v1, s[6:7]")
A(f"{JN}\ns_and_b32 s9, s9, 3\ns_branch L_compute")
A("L_loader:")
if "lprio" in opts: A(f"s_setprio {opts['lprio']}")
srd_consts(A, [SX, SWQ])
ROT = {"8": "s_lshl_b32 s12, s8, 1\ns_add_u32 s12, s12, s11", "8h": "s_lshl_b32 s12, s8, 1\ns_add_u32 s12, s12, s11\ns_add_u32 s12, s12, s4",
       "4": "s_add_u32 s12, s8, s11\ns_lshl_b32 s12, s12, 1", "4h": "s_add_u32 s12, s8, s11\ns_lshl_b32 s12, s12, 1\ns_add_u32 s12, s12, s4",
       "w8": "s_add_u32 s12, s4, s11", "w8x2": "s_lshl_b32 s12, s8, 2\ns_add_u32 s12, s12, s11\ns_add_u32 s12, s12, s4",
       "w4": "s_lshl1_add_u32 s12, s11, s4", "w2": "s_lshl2_add_u32 s12, s11, s4", "w1": "s_mov_b32 s12, s4", "w4x2": "s_lshl1_add_u32 s12, s8, s11\ns_lshl1_add_u32 s12, s12, s4",
       "2": "s_add_u32 s12, s8, s11\ns_lshl_b32 s12, s12, 2", "2h": "s_add_u32 s12, s8, s11\ns_lshl2_add_u32 s12, s12, s4"}[opts.get("rot", "2h")]
A(f"""v_bfe_u32 v6, v0, 4, 4
v_bfe_u32 v1, v0, 3, 5
v_xor_b32 v2, v6, v0
v_and_b32 v2, 7, v2
v_lshlrev_b32 v2, 4, v2
v_lshl_add_u32 v8, v1, 10, v2
v_bfe_u32 v5, v0, 7, 1
v_lshlrev_b32 v5, 2, v5
v_xor_b32 v5, v5, v6
v_lshlrev_b32 v5, 1, v5
v_xor_b32 v5, v5, v0
v_and_b32 v5, 15, v5
v_lshlrev_b32 v5, 4, v5
v_lshl_add_u32 v9, v6, 13, v5
s_xor_b32 s74, s4, 7
s_lshl_b32 s13, s74, 14
s_and_b32 s14, s13, 0x4000
v_xor_b32 v8, s14, v8
s_xor_b32 s13, s13, s14
s_lshl_b32 s64, s11, 17
s_add_u32 s64, s64, s13
s_lshl2_add_u32 s10, s4, s8
s_lshl_b32 s65, s10, 8
{ROT}
s_bfe_u32 s3, s3, 0x20006
s_lshl_b32 s67, s3, 10""")
KWAIT = [True]
if STAMP: A("s_waitcnt lgkmcnt(0)\nv_mov_b32 v254, -1\nv_mov_b32 v255, -1\nv_writelane_b32 v254, s94, 0\nv_writelane_b32 v255, s92, 0\ns_getreg_b32 s92, hwreg(HW_REG_XCC_ID)\ns_and_b32 s92, s92, 7\nv_writelane_b32 v254, s92, 30")
stamp("go")
def late_setup():
    srd_consts(A, [SK, SV, SWO, SOUT, SDBG, SWS]); srd_ptrs(A, [SK, SV, SWO, SOUT, SDBG, SWS])
    A(f"""v_lshl_add_u32 v11, v1, 8, v2
v_and_b32 v0, 63, v0
v_and_b32 v3, 7, v0
v_and_b32 v4, 15, v0
s_lshr_b32 s5, s2, 3
{JN}
s_and_b32 s9, s9, 3
s_lshl_b32 s13, s11, {FSH+5}
s_lshl_b32 s14, s4, {FSH}
s_add_u32 s13, s13, s14
s_add_u32 s79, s13, {WS_FLAG}
s_lshl_b32 s14, s9, {FSH+3}
s_add_u32 s77, s79, s14
v_mov_b32 v17, 0
v_lshl_add_u32 v12, v6, 10, v5
v_xor_b32 v5, v6, v4
v_lshlrev_b32 v5, 4, v5
v_lshl_add_u32 v10, v6, 8, v5
v_lshlrev_b32 v13, 4, v0
s_lshl_b32 s69, s11, 20
s_lshr_b32 s13, s74, 2
s_lshl_b32 s13, s13, 19
s_add_u32 s69, s69, s13
s_lshl_b32 s13, s10, 14
s_add_u32 s66, s69, s13
s_lshl_b32 s13, s4, 16
s_add_u32 s69, s69, s13
s_lshl_b32 s70, s4, 19
s_lshl_b32 s13, s9, 8
s_add_u32 s70, s70, s13
s_bfe_u32 s71, s11, {hex(0x10000 | oi('flipbit', 2))}
s_lshl_b32 s72, s11, 3
s_add_u32 s72, s72, s4
s_lshl_b32 s73, s72, 16
s_add_u32 s73, s73, {WS_P}
s_lshl_b32 s13, s3, 12
v_add_u32 v14, s13, v13
s_lshl_b32 s14, s8, 4
s_add_u32 s79, s79, s14
s_lshl_b32 s14, s3, 2
s_add_u32 s79, s79, s14
v_lshlrev_b32 v7, {FSH+3}, v0
v_mov_b32 v15, -1
v_lshlrev_b32 v19, 2, v3
s_lshl_b32 s13, s11, 5
v_add_u32 v19, s13, v19
s_mov_b32 s76, 0""")
def load_ops(it):
    k, a = it[0], LOC[it][0]; i = int(it[1])
    def dma(vo, srd, soff, lds, fl=""):
        if it in opts.get("nt", "").split(",") or it[0] in opts.get("nt", "").split(","): fl += " nt"
        return f"s_add_u32 m0, s67, {lds}\n{soff}\nbuffer_load_dwordx4 v{vo}, s[{srd}:{srd+3}], s68 offen {fl} lds"
    if "dry" in opts and not (k in "XW" and i < 4) and k != "K": return "", []
    if k == "X":
        return (f"s_add_u32 s13, s12, {i}\ns_and_b32 s13, s13, 7\ns_lshl_b32 s14, s13, 7\ns_add_u32 s14, s14, s64",
                [dma(8, SX, f"s_xor_b32 s68, s14, {hex(qq*0x8000)}", a + qq*4096) for qq in range(4)])
    if k == "W":
        return (f"s_add_u32 s13, s12, {i}\ns_and_b32 s13, s13, 7\ns_lshl_b32 s15, s13, 19\ns_add_u32 s15, s15, s65",
                [dma(9, SWQ, f"s_add_u32 s68, s15, {qq*16*8192}", a + qq*4096, "nt" if "wnt" in opts and i == 0 else "") for qq in range(4)])
    if k == "K":
        return ("", [dma(10, SK, f"s_xor_b32 s68, s66, {hex(qq*4096 + i*0x80000)}", a + qq*4096, NTK) for qq in range(4)])
    hd = f"s_add_u32 s13, s8, {i>>1}\ns_and_b32 s13, s13, 3\ns_xor_b32 s75, s71, {i&1}\n"
    if k == "V":
        return (hd + "s_lshl_b32 s13, s13, 14\ns_lshl_b32 s75, s75, 7\ns_add_u32 s14, s13, s75\ns_add_u32 s14, s14, s69",
                [dma(11, SV, f"s_xor_b32 s68, s14, {hex((qq&1)*8192 + (qq>>1)*0x80000)}", a + qq*4096) for qq in range(4)])
    if k == "U":
        return (hd + "s_lshl_b32 s13, s13, 17\ns_lshl_b32 s75, s75, 16\ns_add_u32 s15, s13, s75\ns_add_u32 s15, s15, s70",
                [dma(12, SWO, f"s_add_u32 s68, s15, {qq*16*1024}", a + qq*4096) for qq in range(4)])
    return (f"s_add_u32 s13, s8, {i}\ns_and_b32 s13, s13, 3\ns_lshl_b32 s13, s13, 14\ns_add_u32 s15, s13, s73\ns_add_u32 s15, s15, s67",
            [dma(13, SWS, f"s_add_u32 s68, s15, {'abcd'.index(it[2])*16384//NPQ + qq*4096}", a + qq*4096, "sc1") for qq in range(4//NPQ)])
lbl = [0]
class Loader:
    def __init__(s_): s_.n = 0; s_.last = {}; s_.cur = -1; s_.occ = []; s_.done = set(); s_.landed = -2
    def copy(s_):
        o = Loader(); o.__dict__.update({k: (x.copy() if hasattr(x, "copy") else x) for k, x in s_.__dict__.items()}); return o
    def wait(s_, names, note=True):
        hi = max(s_.last[i] for i in names)
        if note and hi <= s_.landed: return
        A(f"s_waitcnt vmcnt({min(s_.n - 1 - hi, 63)})")
        if note: s_.landed = hi
    def claim(s_, x):
        lo, hi = LOC[x][0], LOC[x][0] + LOC[x][1]
        for (a_, b_, it) in s_.occ:
            if a_ < hi and lo < b_: assert free[it] <= s_.cur, f"WAR: {x} after {bars[s_.cur]} but {it} free at {free[it]}"
        s_.occ = [o for o in s_.occ if not (o[0] >= lo and o[1] <= hi)] + [(lo, hi, x)]
        if x[0] == "P": assert "pw" in s_.done
    def step(s_, x):
        s_.done.add(x)
        if x not in bars: A.c(x)
        if x == "setup": late_setup()
        elif x in bars:
            s_.cur += 1; assert bars[s_.cur] == x, (x, bars[s_.cur])
            nd = [i for i, f in first.items() if f == s_.cur]
            if nd: s_.wait(nd)
            A(f"s_barrier                ; {x}"); stamp(x)
        elif x == "clr":
            assert "setup" in s_.done
            lbl[0] += 1; s_.last["clr"] = s_.n - 1
            A(f"s_cmp_lg_u32 s3, 0\ns_cbranch_scc1 L_k{lbl[0]}")
            if FSH == 8: A(f"v_lshlrev_b32 v1, 2, v0\nbuffer_store_dword v17, v1, s[{SWS}:{SWS+3}], s77 offen sc1")
            else:
                assert FSH == 10
                A(f"v_lshlrev_b32 v1, 4, v0\nv_mov_b32 v28, 0\nv_mov_b32 v29, 0\nv_mov_b32 v30, 0\nv_mov_b32 v31, 0\nbuffer_store_dwordx4 v[28:31], v1, s[{SWS}:{SWS+3}], s77 offen sc1")
            A(f"L_k{lbl[0]}:")
        elif x.startswith("pf"):
            lo = int(x[2:] or 0)
            A(f"s_sub_u32 s13, s77, {WS_FLAG}\ns_lshl_b32 s13, s13, 7\ns_lshl_b32 s14, s3, 13\ns_add_u32 s13, s13, s14\ns_add_u32 s14, s13, {WS_PART}\ns_add_u32 s15, s14, 4096")
            A("v_mov_b32 v24, -1\nv_mov_b32 v25, -1\nv_mov_b32 v26, -1\nv_mov_b32 v27, -1\nv_lshlrev_b32 v13, 4, v0")
            for p in range(lo, 7):
                A(f"buffer_store_dwordx4 v[24:27], v13, s[{SWS}:{SWS+3}], {'s14' if p < 4 else 's15'} offen offset:{(p&3)*1024} sc1"); s_.n += 1
            s_.last["pf"] = s_.n - 1
        elif x == "atm":
            lbl[0] += 1
            A(f"s_cmp_lg_u32 s3, 0\ns_cbranch_scc1 L_k{lbl[0]}"); s_.wait(["clr"], False)
            A(f"s_lshl_b32 s13, s72, 2\nv_mov_b32 v2, 1\ns_mov_b64 exec, 1\nbuffer_atomic_add v2, v17, s[{SDBG}:{SDBG+3}], s13 offen\ns_mov_b64 exec, -1"); A(f"L_k{lbl[0]}:")
        elif x[0] == "k" and x[1:].isdigit():
            for c in x[1:]:
                it = f"K{int(c) >> 2}"
                if not any(o[2] == it for o in s_.occ): s_.claim(it)
                A(load_ops(it)[1][int(c) & 3]); s_.last[it] = s_.n; s_.n += 1
        elif x == "ci":
            A(f"buffer_load_dword v20, v19, s[{SDBG}:{SDBG+3}], 0 offen sc1"); s_.last["ci"] = s_.n; s_.n += 1
        elif x == "cw":
            assert s_.cur < bars.index("B10" if oi("flgc", 34) >= 42 else "B9")
            lbl[0] += 1; k = lbl[0]; s_.wait(["ci"])
            A(f"v_cmp_gt_u32 vcc, 4, v20\ns_cbranch_vccz L_lr{k}"); A(f"L_ll{k}:")
            A(f"s_sleep 8\nbuffer_load_dword v20, v19, s[{SDBG}:{SDBG+3}], 0 offen sc1\ns_add_u32 s76, s76, 1\ns_waitcnt vmcnt(0)\ns_cmp_ge_u32 s76, {SPIN}\ns_cbranch_scc1 L_lr{k}\nv_cmp_gt_u32 vcc, 4, v20\ns_cbranch_vccnz L_ll{k}")
            A(f"L_lr{k}:")
        elif x == "pr":
            assert s_.cur >= bars.index("B9" if EARLY8 else "B8")
            for t in range(4): A(f"ds_read_b128 {v(32+4*t,4)}, v14 offset:{LOC['P0'][0] + t*1024}")
        elif x == "pub":
            assert "pr" in s_.done
            A(f"s_lshl_b32 s13, s8, 14\ns_add_u32 s68, s13, s73\ns_waitcnt lgkmcnt(0)")
            for t in range(4): A(f"buffer_store_dwordx4 {v(32+4*t,4)}, v14, s[{SWS}:{SWS+3}], s68 offen offset:{t*1024} sc1")
            s_.n += 4; s_.last["pub"] = s_.n - 1
        elif x == "flg":
            assert "cw" in s_.done; s_.wait(["pub"])
            A(f"s_mov_b64 exec, 15\nbuffer_store_dword v15, v7, s[{SWS}:{SWS+3}], s79 offen offset:128 sc1\ns_mov_b64 exec, -1"); s_.n += 1; stamp(x)
        elif x == "pi": A(f"s_add_u32 s78, s77, 128\ns_load_dwordx16 s[80:95], s[30:31], s78 glc")
        elif x == "pw":
            assert PUBC or "flg" in s_.done; lbl[0] += 1; k = lbl[0]
            red = "".join(f"s_and_b64 s[80:81], s[80:81], s[{i}:{i+1}]\n" for i in range(82, 96, 2)) + "s_and_b32 s80, s80, s81\n"
            A(f"s_waitcnt lgkmcnt(0)\n{red}s_cbranch_scc1 L_lr{k}"); A(f"L_ll{k}:")
            A(f"s_load_dwordx16 s[80:95], s[30:31], s78 glc\ns_add_u32 s76, s76, 1\ns_waitcnt lgkmcnt(0)\ns_cmp_ge_u32 s76, {SPIN}\ns_cbranch_scc1 L_lr{k}\n{red}s_cbranch_scc0 L_ll{k}")
            A(f"L_lr{k}:"); stamp(x)
        else:
            its = [f"X{x[1:]}", f"W{x[1:]}"] if x[0] == "S" and int(x[1:]) < 8 else [f"V{int(x[1:])-8}", f"U{int(x[1:])-8}"] if x[0] == "S" else [x]
            ops = []
            for it in its: s_.claim(it); st, o = load_ops(it); A(st); ops.append(o)
            if KWAIT[0]: ops[0][0] = ops[0][0].replace("buffer_load", "s_waitcnt lgkmcnt(0)\nbuffer_load"); KWAIT[0] = False
            if "seq" in opts and its[0][0] == "X":
                for o in ops:
                    for z in o: A(z); s_.n += 1
            else:
                for k in range(4):
                    for it, o in zip(its, ops):
                        if k < len(o): A(o[k]); s_.n += 1
            for it in its: s_.last[it] = s_.n - 1
    def sigof(s_): return (s_.cur, tuple(sorted((i, min(s_.n - k, 64)) for i, k in s_.last.items() if (first.get(i, -1) > s_.cur and k > s_.landed) or (i == "ci" and "cw" not in s_.done) or (i == "pub" and "flg" not in s_.done) or (i == "clr" and "atm" not in s_.done))), tuple(sorted(s_.occ)), tuple(sorted(x for x in s_.done if x[0].islower() and x[0] != 'k')))

DEF = ("S0 setup S1 clr B0 S2 B1 0:atm 0:K0 S3 B2 1:atm 1:K0 S4 B3 0:K1 S5 B4 1:K1 S6 B5 S7 B6 S8 B7 S9 BK ci U2 B8 cw B9 V2 S11 B10 S12 B11 S13 B12 S14 B13 pi S15 B14 pw "
       "P1a P2a P3a B15 P1b P2b P3b Pa Pb")
sched = opts.get("sched", DEF).replace("_", " ").split()
if PUBC: sched = [x for x in sched if x not in ("pr", "pub", "flg")]
NG = len({x.split(":")[0] for x in sched if ":" in x})
L0 = Loader()
k0 = min([i for i, x in enumerate(sched) if ":" in x] + [len(sched)])
for i in range(k0): L0.step(sched[i])
k1 = max([i for i, x in enumerate(sched) if ":" in x] + [k0 - 1]) + 1
def rung(gi, hi):
    Lg = L0.copy()
    for x in sched[k0:hi]:
        if ":" not in x or int(x.split(":")[0]) == gi: Lg.step(x.split(":")[-1])
    return Lg
Lg = L0
if NG:
    pb = oi("parbit", 4)
    A({2: f"s_bfe_u32 s78, s5, {hex(0x10000 | pb)}", 4: f"s_bfe_u32 s78, s5, {hex(0x20000 | pb)}", 3: "s_mul_i32 s78, s5, 3\ns_lshr_b32 s78, s78, 5"}[NG])
    while True:
        sa, sl = len(A.lines), lbl[0]
        sg = {rung(gi, k1).sigof() for gi in range(NG)}
        del A.lines[sa:]; lbl[0] = sl
        if len(sg) == 1: break
        k1 += 1; assert k1 <= len(sched)
    for gi in range(NG):
        if gi: A(f"L_g{gi}:")
        if gi < NG - 1: A(f"s_cmp_lg_u32 s78, {gi}\ns_cbranch_scc1 L_g{gi+1}")
        Lg = rung(gi, k1)
        if gi < NG - 1: A("s_branch L_merge")
        if gi == 0 and PADS: A("L_hole0:"); A("s_branch L_holem")
        if gi == NG - 1 and PADS: A("s_branch L_merge"); A("L_holem:"); A("s_branch L_hole1")
    A("L_merge:")
    for x in sched[k1:]: Lg.step(x)
assert Lg.cur == len(bars) - 2
if PADS and not NG: HOLE0 = True
for gi in range(max(NG, 1)):
    kp = ''.join(x.split(':')[-1][1:] for x in sched if x.split(':')[-1][0] == 'k' and (':' not in x or int(x.split(':')[0]) == gi))
    assert not kp or sorted(kp) == sorted('01234567'), kp
if "show" in opts:
    for it in first: print(it, "first", bars[first[it]], "free", bars[free[it]] if free.get(it, 999) < 999 else None)
A(f"""s_lshl_b32 s13, s11, 2
s_add_u32 s13, s13, s9
s_lshl_b32 s13, s13, 3
s_add_u32 s13, s13, s4
s_lshl_b32 s14, s13, 2
s_add_u32 s14, s14, s3
s_lshl_b32 s14, s14, 13
s_add_u32 s14, s14, {WS_PART}
s_add_u32 s15, s14, 4096
s_lshl_b32 s75, s3, {WSH}
s_add_u32 s13, s77, s75
s_lshl_b32 s75, s3, 6
s_lshl_b32 s77, s9, 8
s_add_u32 s75, s75, s77
s_lshl_b32 s76, s72, 4
v_add_u32 v1, s76, v4
v_lshlrev_b32 v1, 10, v1
v_bfe_u32 v2, v0, 4, 1
v_lshl_add_u32 v1, v2, 5, v1
v_lshrrev_b32 v2, 5, v0
v_lshl_add_u32 v1, v2, 4, v1
v_add_u32 v1, s75, v1
v_add_u32 v14, {OWNP}, v14
v_and_b32 v22, 7, v0
v_lshlrev_b32 v22, 2, v22
s_mov_b32 s77, 0xffff0000
s_mov_b32 s76, 0""")
def acc(p):
    for d in range(4):
        r = 64 + 4*p + d
        if p == 0: A(f"v_lshlrev_b32 v{48+2*d}, 16, v{r}\nv_and_b32 v{49+2*d}, s77, v{r}")
        else: A(f"v_lshlrev_b32 v2, 16, v{r}\nv_and_b32 v3, s77, v{r}\nv_pk_add_f32 v[{48+2*d}:{49+2*d}], v[{48+2*d}:{49+2*d}], v[2:3]")
FP = oi("fp", 0); PS = oi("ps", 0)
ZB = "s_barrier\nds_read_b128 v[40:43], v14\nds_read_b128 v[44:47], v14 offset:1024"
TP = oi("tp", 3); ntp = [0]
def tpad():
    if TP: A(f"L_tp{ntp[0]}:"); ntp[0] += 1; A(f"s_cbranch_vccnz L_tp{ntp[0]}")
if TP: A("s_mov_b64 vcc, -1\ns_branch L_tp0"); A("L_tb:"); A("s_mov_b64 vcc, 0")
if ZE: A(ZB)
if oi("ps0", 0): A(f"s_sleep {oi('ps0', 0)}")
if FP:
    for i in range(8): A(f"s_mov_b32 s{80+i}, 0")
for p in range(7):
    if "dg3" in opts or "dg4" in opts: A(f"s_branch L_fd{p}")
    if p > 0: A((f"s_bitcmp1_b32 vcc_lo, {p}" if "vp" in opts else f"s_cmp_lg_u32 s{80+p}, 0") + f"\ns_cbranch_scc1 L_fd{p}")
    A(f"L_fw{p}:")
    if FP and p >= oi("fpfrom", 4):
        A(f"s_load_dwordx8 s[80:87], s[30:31], s13 glc\ns_add_u32 s76, s76, 1\ns_cmp_ge_u32 s76, {SPIN}\ns_sleep {FP}\ns_waitcnt lgkmcnt(12)\ns_cbranch_scc1 L_fd{p}")
    elif "vp" in opts:
        A(f"buffer_load_dword v21, v22, s[{SWS}:{SWS+3}], s13 offen sc1\ns_add_u32 s76, s76, 1\ns_waitcnt vmcnt(0)\nv_cmp_ne_u32 vcc, 0, v21\ns_cmp_ge_u32 s76, {SPIN}\ns_cbranch_scc1 L_fd{p}")
    else:
        if PS: A(f"s_sleep {PS}")
        A(f"s_load_dwordx8 s[80:87], s[30:31], s13 glc\ns_add_u32 s76, s76, 1\ns_cmp_ge_u32 s76, {SPIN}\ns_waitcnt lgkmcnt(0)\ns_cbranch_scc1 L_fd{p}")
    A((f"s_bitcmp0_b32 vcc_lo, {p}" if "vp" in opts else f"s_cmp_eq_u32 s{80+p}, 0") + f"\ns_cbranch_scc1 L_fw{p}")
    A(f"L_fd{p}:")
    if not ("dg1" in opts and p < 6) and "dg4" not in opts: A(f"buffer_load_dwordx4 {v(64+4*p,4)}, v13, s[{SWS}:{SWS+3}], {'s14' if p < 4 else 's15'} offen offset:{(p&3)*1024} sc1 {'nt' if 'fnt' in opts else ''}")
    stamp(f"f{p}")
    if p in (2, 6): tpad()
if not ZE: A(ZB)
for p in range(6):
    A(f"s_waitcnt vmcnt({6-p})"); acc(p)
    if p % TP == TP - 1 if TP else False: tpad()
A("s_waitcnt lgkmcnt(0)")
for d in range(4): A(f"v_pk_add_f32 v[{48+2*d}:{49+2*d}], v[{48+2*d}:{49+2*d}], v[{40+2*d}:{41+2*d}]")
A("s_waitcnt vmcnt(0)"); acc(6)
for d in range(4): A(f"v_cvt_pk_bf16_f32 v{56+d}, v{48+2*d}, v{49+2*d}")
A("s_nop 1\nv_permlane16_swap_b32 v56, v58\nv_permlane16_swap_b32 v57, v59")
A(f"buffer_store_dwordx4 v[56:59], v1, s[{SOUT}:{SOUT+3}], 0 offen {opts.get('outf', '').replace('+', ' ')}")
if "amp" in opts:
    if opts["amp"] == "end": A("s_waitcnt vmcnt(0)\ns_memrealtime s[98:99]")
    if opts["amp"] == "none": A("s_mov_b32 s98, s96")
    A(f"s_cmp_lg_u32 s2, {oi('ampwg', 77)}\ns_cbranch_scc1 L_end\ns_waitcnt lgkmcnt(0)\ns_sub_u32 s13, s98, s96\ns_min_u32 s13, s13, 3000\ns_lshl_b32 s13, s13, 3\ns_add_u32 s13, s13, 4000\ns_add_u32 s13, s13, s96\ns_mov_b32 s15, 0")
    A("L_amp:")
    A("s_memrealtime s[98:99]\ns_waitcnt lgkmcnt(0)\ns_add_u32 s15, s15, 1\ns_cmp_gt_u32 s15, 30000\ns_cbranch_scc1 L_end\ns_sub_u32 s14, s98, s13\ns_cmp_lt_i32 s14, 0\ns_cbranch_scc1 L_amp")
if STAMP:
    A("s_waitcnt vmcnt(0)"); stamp("end")
    A("s_cmp_lg_u32 s3, 0\ns_cbranch_scc1 L_end")
    A(f"s_lshl_b32 s13, s2, 9\ns_add_u32 s13, s13, {hex(WS_STAMP)}\nv_lshlrev_b32 v253, 3, v0\nv_add_u32 v253, s13, v253")
    A(f"v_cmp_gt_u32 vcc, 48, v0\ns_nop 1\ns_mov_b64 exec, vcc")
    A(f"buffer_store_dwordx2 v[254:255], v253, s[{SWS}:{SWS+3}], 0 offen")
A("s_endpgm")
if TP: A(f"L_tp{ntp[0]}:"); A("s_branch L_tb")
if PADS and not NG: A("L_hole0:")
if PADS: A("L_hole1:"); A("s_branch L_pad0")

out = HEADER
out += "; @launch grid=(256,1,1) block=(512,1,1) lds=163840\n"
if STAMP:
    nm = {0: "t0"}
    for i, n_ in enumerate(lst): nm[i + 1 + (i + 1 >= 30)] = "L" + n_
    for i, n_ in enumerate(cst): nm[48 + i] = n_
    out += "; stampnames " + " ".join(f"{k}={x}" for k, x in nm.items()) + "\n"
out += """;
; One persistent launch, one workgroup per CU (generated by a script of mine; all code is hand-scheduled).
;   waves 4-7 stream tiles into LDS (LDS-DMA, XOR-swizzled images); waves 0-3 run 16x16x32 bf16 MFMAs.
;   3. out[:, jn] partial = sum over the 4 heads of P_h (V_h Wo_h[:, jn])   (same function, re-associated).
;   4. the 8 head groups reduce-scatter bf16 partials through d_ws; the owner adds them in fp32 and stores out.
; with the L1 bypassed, so they hold for any workgroup placement.  Flag words are cleared at the start of every
; launch and the clear is certified through counters in d_debug before anyone sets a flag.
"""
out += f'.amdgcn_target "amdgcn-amd-amdhsa--gfx950"\n.text\n.globl {KN}\n.type {KN},@function\n' + A.text() + C.text() + "L_codeend:\n"
out += '.section .rodata,"a"\n' + kd(KN, 256)
if "nopad" not in opts:
    import subprocess, re
    def addrs(text, lab='L_back'):
        open("_ap.s", "w").write(text)
        subprocess.run(["clang", "-x", "assembler", "-target", "amdgcn-amd-amdhsa", "-mcpu=gfx950", "-c", "_ap.s", "-o", "_ap.o"], check=True)
        d = subprocess.run(["llvm-objdump", "-d", "--mcpu=gfx950", "_ap.o"], capture_output=True, text=True).stdout
        d = d[d.index(f"<{lab}>:"):]
        return [int(m.group(1), 16) + oi("stub", 0x300) for m in re.finditer(r"// ([0-9A-F]{12}):", d)]
    if oi("lhole", 0):
        lines = out.split("\n"); i0 = lines.index("L_loader:"); i1 = lines.index("L_tb:") if TP else lines.index("L_fw0:")
        ins = [i for i in range(i0, i1) if lines[i].startswith("    ") and not lines[i].strip().startswith(";")]
        ad = addrs(out, "L_loader")
        cross = [j for j in range(1, len(ins)) if ad[j] // 4096 != ad[j-1] // 4096]
        assert len(cross) <= 1
        if cross:
            j = ins[cross[0]]
            ih = lines.index("L_hole1:"); lines[ih] = "L_hole2:"
            lines[j:j] = ["    s_branch L_hskip", "L_hole1:", "    s_branch L_hole2", "L_hskip:"]
            out = "\n".join(lines)
    k = 0
    while True:
        lines = out.split("\n"); i0 = lines.index("L_back:")
        ins = [i for i in range(i0, lines.index('L_end:')) if lines[i].startswith("    ") and not lines[i].strip().startswith(";")]
        ad = addrs(out)
        cross = [j for j in range(1, min(len(ad), len(ins))) if ad[j] // 4096 != ad[j-1] // 4096]
        if k >= len(cross): break
        j = ins[cross[k]]
        ie = lines.index(f"L_pad{k}:"); lines[ie] = f"L_pad{k+1}:"
        lines[j:j] = [f"L_pad{k}:", f"    s_cbranch_vccnz L_pad{k+1}"]
        out = "\n".join(lines); k += 1
open(sys.argv[1], "w").write(out)
```

```python
import sys, math, struct
from collections import defaultdict
from common import *
opts = dict(a.split("=") if "=" in a else (a, "1") for a in sys.argv[2:])
def oi(k, d): return int(opts.get(k, d))
STAMP = "stamp" in opts
NTK = "" if "nont" in opts else "nt"
MF = "v_mfma_f32_16x16x32_bf16"
KN = NAME + "_kernel"
WSB = int(opts.get('wsb', '0'), 0)
WS_P, WS_PART, WS_FLAG, WS_STAMP = WSB, WSB + 0x400000, WSB + 0xC00000, 0x9000000
SPIN = 1 << 18
K1 = 1024
JN = {'1': 's_add_u32 s9, s8, s11', '2': 's_lshl1_add_u32 s9, s11, s8', '0': 's_mov_b32 s9, s8'}[opts.get('jn', '2')]
FSH = oi('fsh', 10); WSH = FSH - 2 if FSH > 8 else 5
SSET = set(opts["sset"].split(",")) if "sset" in opts else None

U = lambda u: (u * 16 * K1, 16 * K1)
LOC = {}
def place(prefix, i0, units):
    for i, u in enumerate(units): LOC[f"{prefix}{i0+i}"] = U(u)
place("X", 0, [int(c) for c in opts.get("xu", "01230123")])
place("W", 0, [int(c) for c in opts.get("wu", "45674567")])
place("V", 0, [int(c) for c in opts.get("vu", "01289012")])
place("U", 0, [int(c) for c in opts.get("uu", "45674567")])
LOC["K0"], LOC["K1"] = U(8), U(9)
LOC["P0"] = LOC["X7"]
place("P", 1, [int(c) for c in opts.get("pu", "894")])
FIN = LOC["P0"][0]

C = Asm()
bars = []; first, free = {}, {}
q = []; pend = set(); dsn = [0]
def _ret(n):
    while len(q) > n:
        it = q.pop(0)[1]
        if it: pend.add(it)
def ds(ins, item=None):
    lim = 13 if STAMP else 15
    if len(q) >= lim: C(f"s_waitcnt lgkmcnt({lim-1})"); _ret(lim - 1)
    C(ins); dsn[0] += 1; q.append((dsn[0], item))
    if item:
        if item not in first: first[item] = len(bars) - 1
        free.pop(item, None)
    return dsn[0]
def need(*ids):
    pos = [k for k, (i, _) in enumerate(q) if i in ids]
    if pos:
        n = len(q) - 1 - max(pos); C(f"s_waitcnt lgkmcnt({n})"); _ret(n)
def drain():
    if q: C("s_waitcnt lgkmcnt(0)"); _ret(0)
def bar(name):
    if opts.get("diagslp") == name: C("s_sleep 5")
    bars.append(name); C(f"s_barrier                ; {name}"); cstamp(name)
    live = {it for _, it in q}
    for it in list(pend):
        if it not in live: free[it] = len(bars) - 1; pend.discard(it)
cst = []; CREG = list(range(32, 56, 2)) + [60, 62, 92, 94]
def cstamp(name):
    if STAMP and SSET is not None and name in SSET:
        i = len(cst); cst.append(name); assert i < 16
        if len(q) > 12: C("s_waitcnt lgkmcnt(12)"); _ret(12)
        C(f"s_mem{'real' if 'rt' in opts else ''}time s[{CREG[i]}:{CREG[i]+1}]")
I = lambda x: (lambda: C(x))
npad = [0]
PADS = [int(x) for x in opts.get("pads", "").split(",") if x] or ([-1] if "nopad" not in opts else [])
def pad():
    C(f"L_pad{npad[0]}:"); npad[0] += 1; C(f"s_cbranch_vccnz L_pad{npad[0]}")

VX, VW, LIN0, VOWN = 4, 8, 16, 17
TM = 18
ACC, BR0, PR, VWS = 24, 88, 112, 128
BR = [BR0 + 4*i for i in range(6)]
QB, SC, PB, VK = VWS + 96, VWS + 64, VWS + 48, VWS + 32
C("L_compute:")
C(f"s_setprio {oi('prio', 0)}")
srd_consts(C, [SWS])
C(f"""v_and_b32 v1, 15, v0
v_lshrrev_b32 v2, 4, v0
v_bfe_u32 v3, v0, 1, 3
v_xor_b32 v3, v3, v2
v_lshlrev_b32 v3, 4, v3
v_lshl_add_u32 v3, v1, 7, v3
s_lshl_b32 s70, s3, 12
v_add_u32 v{VX}, s70, v3
v_xor_b32 v{VX+1}, 64, v{VX}
v_add_u32 v{VX+2}, 0x20000, v3
v_xor_b32 v{VX+3}, 64, v{VX+2}
v_lshrrev_b32 v3, 1, v2
v_xor_b32 v3, v3, v1
v_lshlrev_b32 v3, 4, v3
v_lshl_add_u32 v3, v1, 8, v3
v_and_b32 v18, 1, v2
v_lshl_add_u32 v3, v18, 3, v3
s_lshr_b32 s13, s3, 1
s_lshl_b32 s13, s13, 14
s_add_u32 s13, s13, 0x20000
v_add_u32 v{VK}, s13, v3
v_lshlrev_b32 v{LIN0}, 4, v0
v_add_u32 v{VOWN}, s70, v{LIN0}
v_bfe_u32 v1, v0, 2, 2
v_and_b32 v3, 3, v0
v_lshlrev_b32 v3, 3, v3
v_lshl_add_u32 v19, v18, 2, v1
v_lshl_add_u32 v20, v2, 3, v1
v_lshlrev_b32 v20, 8, v20
v_lshl_add_u32 v20, v19, 5, v20
v_add_u32 v20, v20, v3
v_add_u32 v{VW}, 0x10000, v20""")
for i in range(1, 8): C(f"v_xor_b32 v{VW+i}, {i*32}, v{VW}\nv_xor_b32 v{VK+i}, {i*32}, v{VK}")
C(f"""s_lshl_b32 s13, s11, 2
s_add_u32 s13, s13, s9
s_lshl_b32 s13, s13, 3
s_add_u32 s13, s13, s4
s_lshl_b32 s65, s13, 15
s_lshl_b32 s14, s3, 13
s_add_u32 s65, s65, s14
s_lshl_b32 s66, s13, {FSH}
s_lshl_b32 s14, s3, {WSH}
s_add_u32 s66, s66, s14""")
for p in range(7):
    C(f"s_xor_b32 s13, s65, {(7-p) << 15}\ns_add_u32 s{80+p}, s13, {WS_PART + p*1024}")
    C(f"s_xor_b32 s13, s66, {(7-p) << FSH}\ns_add_u32 s{72+p}, s13, {WS_FLAG + p*4}")
C(f"""s_lshl_b32 s13, s11, 3
s_add_u32 s13, s13, s4
s_lshl_b32 s64, s13, 16
s_lshl_b32 s14, s8, 14
s_add_u32 s64, s64, s14
s_add_u32 s64, s64, {WS_P}
s_lshl_b32 s67, s11, {FSH+5}
s_lshl_b32 s14, s4, {FSH}
s_add_u32 s67, s67, s14
s_lshl_b32 s14, s8, 4
s_add_u32 s67, s67, s14
s_lshl_b32 s14, s3, 2
s_add_u32 s67, s67, s14
s_add_u32 s67, s67, {WS_FLAG + 128}""")
cs = struct.unpack("<I", struct.pack("<f", math.log2(math.e) / math.sqrt(128)))[0]
C(f"s_mov_b32 s68, {hex(cs)}\ns_mov_b32 s69, {hex(cs)}\ns_lshl_b32 s71, s3, 6")
C("s_waitcnt lgkmcnt(0)")
srd_ptrs(C, [SWS])
if PADS:
    C("s_waitcnt vmcnt(0)\ns_mov_b64 vcc, -1\ns_branch L_hole0"); C("L_back:"); C("s_mov_b64 vcc, 0")

WP = oi('wp', 1)
class Stream:
    def __init__(s_): s_.e = []; s_.fill = defaultdict(list); s_.before = defaultdict(list); s_.id = defaultdict(list); s_.hold = {}
    def rd(s_, m, k): s_.id[m].append(s_.e[m][0][k](BR[m % 6]))
    def prologue(s_, lo):
        for m in range(lo, lo + 6):
            for k in range(len(s_.e[m][0])): s_.rd(m, k)
    def run(s_, lo, hi, stop):
        for m in range(lo, hi):
            for f in s_.before.pop(m, []): f()
            cstamp(f'e{m}')
            if m in PADS: s_.fill[2*m].append(pad)
            assert len(s_.id[m]) == len(s_.e[m][0]), m
            for hh in range(2):
                a_, b_, d, fst, deps = s_.e[m][1][hh ^ (m & 1)]
                extra = s_.id[m+1] if (WP and m % 2 == 0 and m + 1 < hi and m > lo) else []
                need(*s_.id[m], *extra, *deps())
                R = v(BR[m % 6], 4)
                C(f"{MF} {v(d,4)}, {R if a_ is None else v(a_,4)}, {R if b_ is None else v(b_,4)}, {'0' if fst else v(d,4)}")
                if hh == 0 and m > lo and m + 5 < stop and len(s_.e[m+5][0]) == 2: s_.rd(m + 5, 1)
                if hh == 1 and m + 6 < stop: s_.rd(m + 6, 0)
                for f in s_.fill.pop(2*m + hh, []): f()
S = Stream(); pid = {}
def xaddr(a, ss): return (VX + ss + (2 if a >= 128*K1 else 0), a % 65536)
def x_rd(n, qt):
    it = f"X{n//2}"; r, o = xaddr(LOC[it][0], n & 1); assert LOC[it][0] < 65536
    return lambda: pid.__setitem__(("x", n, qt), ds(f"ds_read_b128 {v(PR+8*(n&1)+4*qt,4)}, v{r} offset:{o + qt*2048}", it))
for n in range(16):
    for mt in range(8):
        it = f"W{n//2}"
        rds = [lambda r, it=it, n=n, mt=mt, e=e: ds(f"ds_read_b64_tr_b16 {v(r+2*e,2)}, v{VW + (mt ^ (4*e))} offset:{LOC[it][0]-65536 + (n&1)*8192 + e*1024}", it) for e in range(2)]
        S.e.append((rds, [(None, PR + 8*(n&1) + 4*qt, ACC + 8*mt + 4*qt, n == 0, lambda n=n, qt=qt: [pid[("x", n, qt)]]) for qt in range(2)]))
    if n < 15:
        for qt in range(2): S.fill[2*(8*n + 2 + 2*qt)].append(x_rd(n + 1, qt))
    if n & 1 and n < 15: S.before[8*n + 2].append(lambda n=n: bar(f"B{(n+1)//2}"))
if oi("bk", 1): S.before[122].append(lambda: bar("BK"))
QKO = oi("qko", 0)
qk = [(kt, s_) for s_ in range(4) for kt in range(4)]
if QKO: qk = qk[:8] + [(0, 2), (1, 2), (0, 3), (1, 3), (2, 2), (2, 3), (3, 2), (3, 3)]
for kt, s_ in qk:
    rds = [lambda r, kt=kt, s_=s_, e=e: ds(f"ds_read_b64{'_tr_b16' if 'ktr' in opts else ''} {v(r+2*e,2)}, v{VK + 2*s_ + e} offset:{kt*4096}", "K") for e in range(2)]
    S.e.append((rds, [(None, QB + 16*qt + 4*s_, SC + 16*qt + 4*kt, s_ == 0, lambda: []) for qt in range(2)]))
for mt in range(8):
    for k, (qt, i) in enumerate([(0, 0), (0, 1), (1, 0), (1, 1)]):
        if "nocvt" not in opts: S.fill[2*123 + (4*mt + k if not QKO else (4*mt + k) * 7 // 8)].append(I(f"v_cvt_pk_bf16_f32 v{QB+16*qt+2*mt+i}, v{ACC+8*mt+4*qt+2*i}, v{ACC+8*mt+4*qt+2*i+1}"))
adr = [f"v_subrev_u32 v{VX+k}, s70, v{VX+k}" for k in range(2)] + [f"v_xor_b32 v{VW+k}, s71, v{VW+k}" for k in (0, 1, 4, 5)]
for k, x in enumerate(adr): S.fill[2*(117 + k) if k < 2 else 2*(130 + k)].append(I(x))
M = lambda qt: TM + 2*qt
if QKO:
    for qt in range(2):
        S.fill[2*142 + 0].append(I(f"v_max3_f32 v{M(qt)}, v{SC+16*qt}, v{SC+16*qt+1}, v{SC+16*qt+2}"))
        S.fill[2*143 + 0].append(I(f"v_max3_f32 v{M(qt)}, v{M(qt)}, v{SC+16*qt+3}, v{SC+16*qt+4}"))
        S.fill[2*143 + 1].append(I(f"v_max3_f32 v{M(qt)}, v{M(qt)}, v{SC+16*qt+5}, v{SC+16*qt+6}"))
E2 = 144
OA = VWS + 64
LW = {0: LIN0, 1: VW + 2, 2: VW + 3}
VZ, V1 = VW + 6, VW + 7
def u_rd(n, k):
    it = f"U{n//2}"; nt, e = k >> 1, k & 1
    return lambda: pid.__setitem__(("u", n, k), ds(f"ds_read_b64_tr_b16 {v(PR+8*(n&1)+4*nt+2*e,2)}, v{VW + (nt ^ (4*e))} offset:{LOC[it][0]-65536 + (n&1)*8192 + e*1024}", it))
def vwreg(s_, b, u, nt):
    return ACC + 8*(4*b + 2*u) + 4*nt if s_ in (0, 3) else VWS + 32*(s_ - 1) + 16*b + 8*u + 4*nt
def add_vw(n):
    m0 = len(S.e)
    for rt in range(8):
        it = f"V{n//2}"; r0, o = xaddr(LOC[it][0], n & 1)
        rds = [lambda r, it=it, r0=r0, o=o, rt=rt: ds(f"ds_read_b128 {v(r,4)}, v{r0} offset:{o + rt*2048}", it)]
        S.e.append((rds, [(None, PR + 8*(n&1) + 4*nt, ACC + 8*rt + 4*nt, n % 4 == 0, lambda n=n, nt=nt: [pid[("u", n, 2*nt)], pid[("u", n, 2*nt+1)]]) for nt in range(2)]))
    if n:
        for k in range(4): S.fill[2*(m0 - 6 + k)].append(u_rd(n, k))
        if n % 2 == 0: S.before[m0 - 6].append(lambda n=n: bar(f"B{8 + n//2}"))
    if n % 4 == 3:
        slots = []
        for gq in range(6, 30):
            slots += [gq] * (2 if (gq % 2 == 0 and (gq // 2) % 8 in (6, 7, 0, 1)) or gq in (6, 8, 10) else 1)
        for rt in range(8):
            for k, (nt, i) in enumerate([(0, 0), (0, 1), (1, 0), (1, 1)]):
                S.fill[(2*(m0 + 3) + 4*rt + k) if (n in (3, 15) and oi("cvs", 1)) else (2*m0 + slots[4*rt + k]) if oi("cv2", 1) else 2*(m0 + rt + 4) + (k >> 1)].append(I(f"v_cvt_pk_bf16_f32 v{vwreg(n//4, rt>>2, (rt>>1)&1, nt)+2*(rt&1)+i}, v{ACC+8*rt+4*nt+2*i}, v{ACC+8*rt+4*nt+2*i+1}"))
NPQ = oi("npq", 2)
def add_pv(p, s_, u):
    it = "P0" if s_ == 0 else f"P{s_}" + "abcd"[p * NPQ // 8]; a = LOC[f"P{s_}"][0] + p*2048 + u*1024
    rds = [lambda r: ds(f"ds_read_b128 {v(r,4)}, v{LW[a // 65536]} offset:{a % 65536}", it)]
    S.e.append((rds, [(vwreg(s_, p >> 2, u, nt), None, OA + 8*p + 4*nt, s_ == 0 and u == 0, lambda: []) for nt in range(2)]))
for n in range(4): add_vw(n)
EP = len(S.e)
for b_ in range(2):
    for u in range(2):
        for p in range(4*b_, 4*b_ + 4): add_pv(p, 0, u)
for n in range(4, 16): add_vw(n)
E3 = len(S.e)
for p in range(8):
    for s_ in range(1, 4):
        for u in range(2): add_pv(p, s_, u)
for s_ in range(1, 4):
    for hf in range(NPQ): LOC[f"P{s_}{'abcd'[hf]}"] = (LOC[f"P{s_}"][0] + hf*16384//NPQ, 16384//NPQ)
for hf in range(NPQ): S.before[E3 + 48*hf//NPQ - 6].append(lambda hf=hf: bar("P" + "abcd"[hf]))
for k, x in enumerate([f"v_add_u32 v{LW[1]}, 0x10000, v{LIN0}", f"v_add_u32 v{LW[2]}, 0x20000, v{LIN0}", f"v_mov_b32 v{VZ}, 0", f"v_mov_b32 v{V1}, -1", f"v_lshlrev_b32 v1, {FSH+3}, v0"]):
    S.fill[2*((EP if oi('sovl', 0) else E2) + 6 + k) + 1].append(I(x))
vmq = []
def flag(p):
    C(f"s_waitcnt vmcnt({len(vmq) - 1 - vmq.index(f'D{p}')})\ns_mov_b64 exec, 1")
    C(f"buffer_store_dword v{V1}, v{VZ}, s[{SWS}:{SWS+3}], s{72+p} offen sc1\ns_mov_b64 exec, -1"); vmq.append(f"F{p}")
FLAG_LAG = oi("flag", 4)
for p in range(7):
    g0 = 2*(E3 + 6*(p+1) + 2); r = PR + 4*(p & 3)
    if p >= oi("fastsend", 7):
        ge = 2*(E3 + 6*(p+1) + 1) + 1
        S.fill[ge].append(I("s_nop 1"))
        for i in range(4): S.fill[ge].append(I(f"v_cvt_pk_bf16_f32 v{r+i}, v{OA+8*p+2*i}, v{OA+8*p+2*i+1}"))
        S.fill[ge].append(lambda p=p, r=r: (C(f"buffer_store_dwordx4 {v(r,4)}, v{LIN0}, s[{SWS}:{SWS+3}], s{80+p} offen sc1"), vmq.append(f"D{p}")))
        if p >= FLAG_LAG: S.fill[g0 + 6].append(lambda p=p: flag(p - FLAG_LAG))
        continue
    for i in range(4): S.fill[g0 + (2*((i >> 1) ^ 1) if oi("cv3", 1) else 1 + (i >> 1))].append(I(f"v_cvt_pk_bf16_f32 v{r+i}, v{OA+8*p+2*i}, v{OA+8*p+2*i+1}"))
    S.fill[g0 + 4].append(lambda p=p, r=r: (C(f"buffer_store_dwordx4 {v(r,4)}, v{VZ if 'dg2' in opts and p < 6 else LIN0}, s[{SWS}:{SWS+3}], s{80+p} offen sc1"), vmq.append(f"D{p}")))
    if p >= FLAG_LAG: S.fill[g0 + 6].append(lambda p=p: flag(p - FLAG_LAG))
if oi("sovl", 0):
    sm = []
    def op(x, c=4): sm.append((c, I(x)))
    for qt in range(2): op(f"v_max3_f32 v{M(qt)}, v{SC+16*qt}, v{SC+16*qt+1}, v{SC+16*qt+2}", 5)
    for i in range(3, 15, 2):
        for qt in range(2): op(f"v_max3_f32 v{M(qt)}, v{M(qt)}, v{SC+16*qt+i}, v{SC+16*qt+i+1}", 5)
    for qt in range(2): op(f"v_max_f32 v{M(qt)}, v{M(qt)}, v{SC+16*qt+15}")
    def xred(o_, fin, fc):
        a_, b_ = M(0), M(1)
        op("s_nop 1", 8); op(f"v_permlane32_swap_b32 v{a_}, v{b_}", 8); op(f"{o_} v{a_}, v{a_}, v{b_}"); op(f"v_mov_b32 v{b_}, v{a_}")
        op("s_nop 1", 8); op(f"v_permlane16_swap_b32 v{a_}, v{b_}", 8); op(f"{o_} v{a_}, v{a_}, v{b_}"); op(fin[0], fc); op(fin[1], fc)
        op("s_nop 1", 8); op(f"v_permlane32_swap_b32 v{a_}, v{b_}", 8)
    xred("v_max_f32", [f"v_mul_f32 v{M(1)}, s68, v{M(0)}", f"v_mul_f32 v{M(0)}, s68, v{M(0)}"], 4)
    SM = [M(0) + 1, M(1) + 1]
    op(f"v_fma_f32 v{SC}, v{SC}, s68, -v{M(0)}", 5)
    for i in range(32):
        op(f"v_exp_f32 v{SC+i}, v{SC+i}", 8)
        if i < 31: op(f"v_fma_f32 v{SC+i+1}, v{SC+i+1}, s68, -v{M((i+1)>>4)}", 5)
        j = i - 1
        if j >= 0 and j % 16: op(f"v_add_f32 v{SM[j>>4]}, v{SM[j>>4] if j % 16 > 1 else SC+j-1}, v{SC+j}")
    op(f"v_mov_b32 v{M(0)}, v{SM[0]}"); op(f"v_add_f32 v{M(1)}, v{SM[1]}, v{SC+31}")
    xred("v_add_f32", [f"v_rcp_f32 v{M(1)}, v{M(0)}", f"v_rcp_f32 v{M(0)}, v{M(0)}"], 8)
    wr = {}
    for t in range(4):
        for i in range(8): op(f"v_mul_f32 v{SC+8*t+i}, v{M(t>>1)}, v{SC+8*t+i}")
        for i in range(4): op(f"v_cvt_pk_bf16_f32 v{PB+4*t+i}, v{SC+8*t+2*i}, v{SC+8*t+2*i+1}", 5)
        sm.append((8, lambda t=t: wr.__setitem__("l", ds(f"ds_write_b128 v{VOWN}, {v(PB+4*t,4)} offset:{LOC['P0'][0] + t*1024}"))))
    sm.append((0, lambda: cstamp("sm")))
    g_lo, g_hi = 2*E2 - 1, 2*(E2 + oi("smend", 23))
    tot = sum(c for c, _ in sm); acc_ = 0
    for c, f in sm:
        S.fill[g_lo + int(acc_ * (g_hi - g_lo) / tot)].append(f); acc_ += c
    assert E2 + oi("smend", 23) < EP - 6
    S.before[EP - 6].append(lambda: (need(wr["l"]), bar("BP")))
    PUBC = oi("pubc", oi("smend", 23) + 1); EARLY8 = 1
    for t in range(4):
        S.fill[2*(E2 + PUBC + oi("pubd", 0)*t)].append(I(f"buffer_store_dwordx4 {v(PB+4*t,4)}, v{VOWN}, s[{SWS}:{SWS+3}], s64 offen offset:{t*1024} sc1"))
    S.fill[2*(E2 + oi("flgc", 66))].append(I(f"s_waitcnt vmcnt(0)\ns_mov_b64 exec, 15\nbuffer_store_dword v{V1}, v1, s[{SWS}:{SWS+3}], s67 offen sc1\ns_mov_b64 exec, -1"))

    for k in range(4): S.fill[2*(E2 - 5 + k)].append(u_rd(0, k))
    S.before[E2 - 6].append(lambda: bar("B8"))
    if oi("bq", 0): S.before[E2 + 1].append(lambda: bar("BQ"))
    bar("B0"); C("s_waitcnt vmcnt(0)")
    x_rd(0, 0)(); x_rd(0, 1)(); S.prologue(0)
    S.run(0, len(S.e), len(S.e))
    assert not S.fill and not S.before, (dict(S.fill), dict(S.before))
else:
    bar("B0"); C("s_waitcnt vmcnt(0)")
    x_rd(0, 0)(); x_rd(0, 1)(); S.prologue(0)
    S.run(0, E2, E2)
    cstamp("qk")
    if oi("bq", 0): bar("BQ")
    C.c("softmax over the 64 keys (16 per lane x 4 lane groups), two 16-query tiles")
    if not QKO:
        C("s_nop 2")
        for qt in range(2): C(f"v_max3_f32 v{M(qt)}, v{SC+16*qt}, v{SC+16*qt+1}, v{SC+16*qt+2}")
    for i in range(7 if QKO else 3, 15, 2):
        if QKO and i == 11: C("s_nop 1")
        for qt in range(2): C(f"v_max3_f32 v{M(qt)}, v{M(qt)}, v{SC+16*qt+i}, v{SC+16*qt+i+1}")
    for qt in range(2): C(f"v_max_f32 v{M(qt)}, v{M(qt)}, v{SC+16*qt+15}")
    def xred(op, fin, fill):
        a_, b_ = M(0), M(1)
        def gap(n):
            for _ in range(n): fill.pop(0)() if fill else C("s_nop 0")
        gap(2); C(f"v_permlane32_swap_b32 v{a_}, v{b_}\n{op} v{a_}, v{a_}, v{b_}\nv_mov_b32 v{b_}, v{a_}")
        gap(2); C(f"v_permlane16_swap_b32 v{a_}, v{b_}\n{op} v{a_}, v{a_}, v{b_}\n{fin[0]}\n{fin[1]}")
        gap(2); C(f"v_permlane32_swap_b32 v{a_}, v{b_}")
    xred("v_max_f32", [f"v_mul_f32 v{M(1)}, s68, v{M(0)}", f"v_mul_f32 v{M(0)}, s68, v{M(0)}"], [])
    pkf = lambda i: f"v_pk_fma_f32 {v(SC+2*i,2)}, {v(SC+2*i,2)}, s[68:69], {v(M(i>>3),2)} op_sel_hi:[1,1,0] neg_lo:[0,0,1] neg_hi:[0,0,1]"
    SM = [TM + 4, 2]
    C(pkf(0))
    for i in range(16):
        C(f"v_exp_f32 v{SC+2*i}, v{SC+2*i}")
        if i < 15: C(pkf(i + 1))
        C(f"v_exp_f32 v{SC+2*i+1}, v{SC+2*i+1}")
        j = i - 1
        if j >= 0 and j % 8: C(f"v_pk_add_f32 {v(SM[j>>3],2)}, {v(SM[j>>3],2) if j % 8 > 1 else v(SC+2*j-2,2)}, {v(SC+2*j,2)}")
    C(f"v_add_f32 v{M(0)}, v{SM[0]}, v{SM[0]+1}\nv_pk_add_f32 {v(SM[1],2)}, {v(SM[1],2)}, {v(SC+30,2)}\nv_add_f32 v{M(1)}, v{SM[1]}, v{SM[1]+1}")
    EARLY8 = oi("early8", 0); pro = []
    if EARLY8:
        if EARLY8 == 1: bar("B8")
        pro = [u_rd(0, k) for k in range(4)] + [lambda m=m: S.rd(m, 0) for m in range(E2, E2 + 6)]
    xred("v_add_f32", [f"v_rcp_f32 v{M(1)}, v{M(0)}", f"v_rcp_f32 v{M(0)}, v{M(0)}"], pro)
    for f in pro: f()
    PUBC = oi("pubc", -3)
    pst = lambda t: f"buffer_store_dwordx4 {v(PB+4*t,4)}, v{VOWN}, s[{SWS}:{SWS+3}], s64 offen offset:{t*1024} sc1"
    E8T = oi("e8t", -1)
    for t in range(4):
        if t == E8T:
            bar("B8"); EARLY8 = 3
            for k in range(4): u_rd(0, k)()
            S.prologue(E2)
        for i in range(8*t, 8*t + 8, 2): C(f"v_pk_mul_f32 {v(SC+i,2)}, {v(SC+i,2)}, {v(M(t>>1),2)} op_sel_hi:[1,0]")
        for i in range(4): C(f"v_cvt_pk_bf16_f32 v{PB+4*t+i}, v{SC+8*t+2*i}, v{SC+8*t+2*i+1}")
        lastw = ds(f"ds_write_b128 v{VOWN}, {v(PB+4*t,4)} offset:{LOC['P0'][0] + t*1024}")
        if PUBC == -3: C(pst(t))
    S.before[E2 + 10].insert(0, lambda: need(lastw))
    cstamp("sm")
    if PUBC == -2:
        for t in range(4): C(pst(t))
    if not EARLY8:
        if not PUBC: drain()
        bar("B8")
        for k in range(4): u_rd(0, k)()
        S.prologue(E2)
    if PUBC == -1:
        for t in range(4): C(pst(t))
    if PUBC > 0:
        for t in range(4): S.fill[2*(E2 + PUBC + oi("pubd", 0)*t)].append(I(pst(t)))
    if PUBC: S.fill[2*(E2 + oi("flgc", 34))].append(I(f"s_waitcnt vmcnt(0)\ns_mov_b64 exec, 15\nbuffer_store_dword v{V1}, v1, s[{SWS}:{SWS+3}], s67 offen sc1\ns_mov_b64 exec, -1"))
    S.run(E2, len(S.e), len(S.e))
    assert not S.fill and not S.before, (dict(S.fill), dict(S.before))
cstamp("T")
C("s_nop 6")
OWNP = LOC["U7"][0]
C(f"v_add_u32 v1, s70, v{LW[OWNP // 65536]}")
for nt in range(2): ds(f"ds_write_b128 v1, {v(OA+56+4*nt,4)} offset:{OWNP % 65536 + nt*1024}")
ZE = oi("ze", 1)
if ZE == 1: drain(); bar("Z")
for p in range(7):
    if f"F{p}" not in vmq: flag(p)
cstamp("fl")
if ZE != 1: drain(); bar("Z")
assert free["U7"] <= len(bars) - 2
if STAMP:
    C("s_cmp_lg_u32 s3, 0\ns_cbranch_scc1 L_end")
    C(f"s_lshl_b32 s13, s2, 9\ns_add_u32 s13, s13, {hex(WS_STAMP + 48*8)}")
    for i in range(len(cst)):
        C(f"s_waitcnt lgkmcnt(0)\nv_mov_b32 v2, s{CREG[i]}\nv_mov_b32 v3, s{CREG[i]}\nbuffer_store_dwordx2 v[2:3], v{VZ}, s[{SWS}:{SWS+3}], s13 offen offset:{8*i}")
C("L_end:"); C("s_endpgm")
if PADS: C(f"L_pad{npad[0]}:"); C("s_branch L_back")
for k in ("K0", "K1"): first[k], free[k] = first["K"], free["K"]
del first["K"], free["K"], first["P0"]
free["X7"] = 999

A = Asm()
lst = []
def stamp(name):
    if opts.get("amp") == name: A("s_memrealtime s[98:99]")
    if STAMP and (SSET is None or ("L" + name) in SSET):
        if name not in lst: lst.append(name)
        i = lst.index(name) + 1; i += (i >= 30); assert i < 48
        A(f"s_memtime s[98:99]\ns_memrealtime s[96:97]\ns_waitcnt lgkmcnt(0)\nv_writelane_b32 v254, s98, {i}\nv_writelane_b32 v255, s96, {i}")
if "noal" not in opts: A(".p2align 12")
A(".p2align 8"); A(f"{KN}:")
if "amp" in opts: A("s_memrealtime s[96:97]")
A(f"s_load_dwordx2 s[{SX}:{SX+1}], s[0:1], 0\ns_load_dwordx2 s[{SWQ}:{SWQ+1}], s[0:1], 24\ns_load_dwordx16 s[16:31], s[0:1], 0")
A("s_cmp_ge_u32 s2, 256\ns_cbranch_scc1 L_end")
if STAMP: A("s_memtime s[94:95]\ns_memrealtime s[92:93]")
A(f"""v_readfirstlane_b32 s3, v0
s_and_b32 s4, s2, 7
s_bfe_u32 s8, s2, 0x20003
s_lshr_b32 s11, s2, 5
s_bitcmp1_b32 s3, 8
s_cbranch_scc1 L_loader""")
NPF = oi("npf", 22)
A("s_lshr_b32 s3, s3, 6\nv_and_b32 v0, 63, v0\ns_getpc_b64 s[6:7]")
A("L_pc:")
A(f"s_lshl_b32 s13, s8, 2\ns_add_u32 s13, s13, s3\ns_mul_i32 s13, s13, {NPF}*64")
A(f"v_min_u32 v1, {NPF-1}, v0\nv_lshlrev_b32 v1, 6, v1\nv_add_u32 v1, s13, v1")
A(f"v_min_u32 v1, L_codeend-L_pc-4, v1")
A("global_load_dword v130, v1, s[6:7]")
A(f"{JN}\ns_and_b32 s9, s9, 3\ns_branch L_compute")
A("L_loader:")
if "lprio" in opts: A(f"s_setprio {opts['lprio']}")
srd_consts(A, [SX, SWQ])
ROT = {"8": "s_lshl_b32 s12, s8, 1\ns_add_u32 s12, s12, s11", "8h": "s_lshl_b32 s12, s8, 1\ns_add_u32 s12, s12, s11\ns_add_u32 s12, s12, s4",
       "4": "s_add_u32 s12, s8, s11\ns_lshl_b32 s12, s12, 1", "4h": "s_add_u32 s12, s8, s11\ns_lshl_b32 s12, s12, 1\ns_add_u32 s12, s12, s4",
       "w8": "s_add_u32 s12, s4, s11", "w8x2": "s_lshl_b32 s12, s8, 2\ns_add_u32 s12, s12, s11\ns_add_u32 s12, s12, s4",
       "w4": "s_lshl1_add_u32 s12, s11, s4", "w2": "s_lshl2_add_u32 s12, s11, s4", "w1": "s_mov_b32 s12, s4", "w4x2": "s_lshl1_add_u32 s12, s8, s11\ns_lshl1_add_u32 s12, s12, s4",
       "2": "s_add_u32 s12, s8, s11\ns_lshl_b32 s12, s12, 2", "2h": "s_add_u32 s12, s8, s11\ns_lshl2_add_u32 s12, s12, s4"}[opts.get("rot", "2h")]
A(f"""v_bfe_u32 v6, v0, 4, 4
v_bfe_u32 v1, v0, 3, 5
v_xor_b32 v2, v6, v0
v_and_b32 v2, 7, v2
v_lshlrev_b32 v2, 4, v2
v_lshl_add_u32 v8, v1, 10, v2
v_bfe_u32 v5, v0, 7, 1
v_lshlrev_b32 v5, 2, v5
v_xor_b32 v5, v5, v6
v_lshlrev_b32 v5, 1, v5
v_xor_b32 v5, v5, v0
v_and_b32 v5, 15, v5
v_lshlrev_b32 v5, 4, v5
v_lshl_add_u32 v9, v6, 13, v5
s_xor_b32 s74, s4, 7
s_lshl_b32 s13, s74, 14
s_and_b32 s14, s13, 0x4000
v_xor_b32 v8, s14, v8
s_xor_b32 s13, s13, s14
s_lshl_b32 s64, s11, 17
s_add_u32 s64, s64, s13
s_lshl2_add_u32 s10, s4, s8
s_lshl_b32 s65, s10, 8
{ROT}
s_bfe_u32 s3, s3, 0x20006
s_lshl_b32 s67, s3, 10""")
KWAIT = [True]
if STAMP: A("s_waitcnt lgkmcnt(0)\nv_mov_b32 v254, -1\nv_mov_b32 v255, -1\nv_writelane_b32 v254, s94, 0\nv_writelane_b32 v255, s92, 0\ns_getreg_b32 s92, hwreg(HW_REG_XCC_ID)\ns_and_b32 s92, s92, 7\nv_writelane_b32 v254, s92, 30")
stamp("go")
def late_setup():
    srd_consts(A, [SK, SV, SWO, SOUT, SDBG, SWS]); srd_ptrs(A, [SK, SV, SWO, SOUT, SDBG, SWS])
    A(f"""v_lshl_add_u32 v11, v1, 8, v2
v_and_b32 v0, 63, v0
v_and_b32 v3, 7, v0
v_and_b32 v4, 15, v0
s_lshr_b32 s5, s2, 3
{JN}
s_and_b32 s9, s9, 3
s_lshl_b32 s13, s11, {FSH+5}
s_lshl_b32 s14, s4, {FSH}
s_add_u32 s13, s13, s14
s_add_u32 s79, s13, {WS_FLAG}
s_lshl_b32 s14, s9, {FSH+3}
s_add_u32 s77, s79, s14
v_mov_b32 v17, 0
v_lshl_add_u32 v12, v6, 10, v5
v_xor_b32 v5, v6, v4
v_lshlrev_b32 v5, 4, v5
v_lshl_add_u32 v10, v6, 8, v5
v_lshlrev_b32 v13, 4, v0
s_lshl_b32 s69, s11, 20
s_lshr_b32 s13, s74, 2
s_lshl_b32 s13, s13, 19
s_add_u32 s69, s69, s13
s_lshl_b32 s13, s10, 14
s_add_u32 s66, s69, s13
s_lshl_b32 s13, s4, 16
s_add_u32 s69, s69, s13
s_lshl_b32 s70, s4, 19
s_lshl_b32 s13, s9, 8
s_add_u32 s70, s70, s13
s_bfe_u32 s71, s11, {hex(0x10000 | oi('flipbit', 2))}
s_lshl_b32 s72, s11, 3
s_add_u32 s72, s72, s4
s_lshl_b32 s73, s72, 16
s_add_u32 s73, s73, {WS_P}
s_lshl_b32 s13, s3, 12
v_add_u32 v14, s13, v13
s_lshl_b32 s14, s8, 4
s_add_u32 s79, s79, s14
s_lshl_b32 s14, s3, 2
s_add_u32 s79, s79, s14
v_lshlrev_b32 v7, {FSH+3}, v0
v_mov_b32 v15, -1
v_lshlrev_b32 v19, 2, v3
s_lshl_b32 s13, s11, 5
v_add_u32 v19, s13, v19
s_mov_b32 s76, 0""")
def load_ops(it):
    k, a = it[0], LOC[it][0]; i = int(it[1])
    def dma(vo, srd, soff, lds, fl=""):
        if it in opts.get("nt", "").split(",") or it[0] in opts.get("nt", "").split(","): fl += " nt"
        return f"s_add_u32 m0, s67, {lds}\n{soff}\nbuffer_load_dwordx4 v{vo}, s[{srd}:{srd+3}], s68 offen {fl} lds"
    if "dry" in opts and not (k in "XW" and i < 4) and k != "K": return "", []
    if k == "X":
        return (f"s_add_u32 s13, s12, {i}\ns_and_b32 s13, s13, 7\ns_lshl_b32 s14, s13, 7\ns_add_u32 s14, s14, s64",
                [dma(8, SX, f"s_xor_b32 s68, s14, {hex(qq*0x8000)}", a + qq*4096) for qq in range(4)])
    if k == "W":
        return (f"s_add_u32 s13, s12, {i}\ns_and_b32 s13, s13, 7\ns_lshl_b32 s15, s13, 19\ns_add_u32 s15, s15, s65",
                [dma(9, SWQ, f"s_add_u32 s68, s15, {qq*16*8192}", a + qq*4096, "nt" if "wnt" in opts and i == 0 else "") for qq in range(4)])
    if k == "K":
        return ("", [dma(10, SK, f"s_xor_b32 s68, s66, {hex(qq*4096 + i*0x80000)}", a + qq*4096, NTK) for qq in range(4)])
    hd = f"s_add_u32 s13, s8, {i>>1}\ns_and_b32 s13, s13, 3\ns_xor_b32 s75, s71, {i&1}\n"
    if k == "V":
        return (hd + "s_lshl_b32 s13, s13, 14\ns_lshl_b32 s75, s75, 7\ns_add_u32 s14, s13, s75\ns_add_u32 s14, s14, s69",
                [dma(11, SV, f"s_xor_b32 s68, s14, {hex((qq&1)*8192 + (qq>>1)*0x80000)}", a + qq*4096) for qq in range(4)])
    if k == "U":
        return (hd + "s_lshl_b32 s13, s13, 17\ns_lshl_b32 s75, s75, 16\ns_add_u32 s15, s13, s75\ns_add_u32 s15, s15, s70",
                [dma(12, SWO, f"s_add_u32 s68, s15, {qq*16*1024}", a + qq*4096) for qq in range(4)])
    return (f"s_add_u32 s13, s8, {i}\ns_and_b32 s13, s13, 3\ns_lshl_b32 s13, s13, 14\ns_add_u32 s15, s13, s73\ns_add_u32 s15, s15, s67",
            [dma(13, SWS, f"s_add_u32 s68, s15, {'abcd'.index(it[2])*16384//NPQ + qq*4096}", a + qq*4096, "sc1") for qq in range(4//NPQ)])
lbl = [0]
class Loader:
    def __init__(s_): s_.n = 0; s_.last = {}; s_.cur = -1; s_.occ = []; s_.done = set(); s_.landed = -2
    def copy(s_):
        o = Loader(); o.__dict__.update({k: (x.copy() if hasattr(x, "copy") else x) for k, x in s_.__dict__.items()}); return o
    def wait(s_, names, note=True):
        hi = max(s_.last[i] for i in names)
        if note and hi <= s_.landed: return
        A(f"s_waitcnt vmcnt({min(s_.n - 1 - hi, 63)})")
        if note: s_.landed = hi
    def claim(s_, x):
        lo, hi = LOC[x][0], LOC[x][0] + LOC[x][1]
        for (a_, b_, it) in s_.occ:
            if a_ < hi and lo < b_: assert free[it] <= s_.cur, f"WAR: {x} after {bars[s_.cur]} but {it} free at {free[it]}"
        s_.occ = [o for o in s_.occ if not (o[0] >= lo and o[1] <= hi)] + [(lo, hi, x)]
        if x[0] == "P": assert "pw" in s_.done
    def step(s_, x):
        s_.done.add(x)
        if x not in bars: A.c(x)
        if x == "setup": late_setup()
        elif x in bars:
            s_.cur += 1; assert bars[s_.cur] == x, (x, bars[s_.cur])
            nd = [i for i, f in first.items() if f == s_.cur]
            if nd: s_.wait(nd)
            A(f"s_barrier                ; {x}"); stamp(x)
        elif x == "clr":
            assert "setup" in s_.done
            lbl[0] += 1; s_.last["clr"] = s_.n - 1
            A(f"s_cmp_lg_u32 s3, 0\ns_cbranch_scc1 L_k{lbl[0]}")
            if FSH == 8: A(f"v_lshlrev_b32 v1, 2, v0\nbuffer_store_dword v17, v1, s[{SWS}:{SWS+3}], s77 offen sc1")
            else:
                assert FSH == 10
                A(f"v_lshlrev_b32 v1, 4, v0\nv_mov_b32 v28, 0\nv_mov_b32 v29, 0\nv_mov_b32 v30, 0\nv_mov_b32 v31, 0\nbuffer_store_dwordx4 v[28:31], v1, s[{SWS}:{SWS+3}], s77 offen sc1")
            A(f"L_k{lbl[0]}:")
        elif x.startswith("pf"):
            lo = int(x[2:] or 0)
            A(f"s_sub_u32 s13, s77, {WS_FLAG}\ns_lshl_b32 s13, s13, 7\ns_lshl_b32 s14, s3, 13\ns_add_u32 s13, s13, s14\ns_add_u32 s14, s13, {WS_PART}\ns_add_u32 s15, s14, 4096")
            A("v_mov_b32 v24, -1\nv_mov_b32 v25, -1\nv_mov_b32 v26, -1\nv_mov_b32 v27, -1\nv_lshlrev_b32 v13, 4, v0")
            for p in range(lo, 7):
                A(f"buffer_store_dwordx4 v[24:27], v13, s[{SWS}:{SWS+3}], {'s14' if p < 4 else 's15'} offen offset:{(p&3)*1024} sc1"); s_.n += 1
            s_.last["pf"] = s_.n - 1
        elif x == "atm":
            lbl[0] += 1
            A(f"s_cmp_lg_u32 s3, 0\ns_cbranch_scc1 L_k{lbl[0]}"); s_.wait(["clr"], False)
            A(f"s_lshl_b32 s13, s72, 2\nv_mov_b32 v2, 1\ns_mov_b64 exec, 1\nbuffer_atomic_add v2, v17, s[{SDBG}:{SDBG+3}], s13 offen\ns_mov_b64 exec, -1"); A(f"L_k{lbl[0]}:")
        elif x[0] == "k" and x[1:].isdigit():
            for c in x[1:]:
                it = f"K{int(c) >> 2}"
                if not any(o[2] == it for o in s_.occ): s_.claim(it)
                A(load_ops(it)[1][int(c) & 3]); s_.last[it] = s_.n; s_.n += 1
        elif x == "ci" and opts.get("amp") == "skew" and "sk" not in s_.done:
            s_.done.add("sk")
            A(f"s_lshl_b32 s13, s2, 7\ns_add_u32 s13, s13, 0x40000\nv_mov_b32 v23, s96\nbuffer_store_dword v23, v17, s[{SWS}:{SWS+3}], s13 offen sc1"); s_.n += 1
            s_.step("ci")
        elif x == "ci":
            A(f"buffer_load_dword v20, v19, s[{SDBG}:{SDBG+3}], 0 offen sc1"); s_.last["ci"] = s_.n; s_.n += 1
        elif x == "cw":
            assert s_.cur < bars.index("B10" if oi("flgc", 34) >= 42 else "B9")
            lbl[0] += 1; k = lbl[0]; s_.wait(["ci"])
            A(f"v_cmp_gt_u32 vcc, 4, v20\ns_cbranch_vccz L_lr{k}"); A(f"L_ll{k}:")
            A(f"s_sleep 8\nbuffer_load_dword v20, v19, s[{SDBG}:{SDBG+3}], 0 offen sc1\ns_add_u32 s76, s76, 1\ns_waitcnt vmcnt(0)\ns_cmp_ge_u32 s76, {SPIN}\ns_cbranch_scc1 L_lr{k}\nv_cmp_gt_u32 vcc, 4, v20\ns_cbranch_vccnz L_ll{k}")
            A(f"L_lr{k}:")
        elif x == "pr":
            assert s_.cur >= bars.index("B9" if EARLY8 else "B8")
            for t in range(4): A(f"ds_read_b128 {v(32+4*t,4)}, v14 offset:{LOC['P0'][0] + t*1024}")
        elif x == "pub":
            assert "pr" in s_.done
            A(f"s_lshl_b32 s13, s8, 14\ns_add_u32 s68, s13, s73\ns_waitcnt lgkmcnt(0)")
            for t in range(4): A(f"buffer_store_dwordx4 {v(32+4*t,4)}, v14, s[{SWS}:{SWS+3}], s68 offen offset:{t*1024} sc1")
            s_.n += 4; s_.last["pub"] = s_.n - 1
        elif x == "flg":
            assert "cw" in s_.done; s_.wait(["pub"])
            A(f"s_mov_b64 exec, 15\nbuffer_store_dword v15, v7, s[{SWS}:{SWS+3}], s79 offen offset:128 sc1\ns_mov_b64 exec, -1"); s_.n += 1; stamp(x)
        elif x == "pi": A(f"s_add_u32 s78, s77, 128\ns_load_dwordx16 s[80:95], s[30:31], s78 glc")
        elif x == "pw":
            assert PUBC or "flg" in s_.done; lbl[0] += 1; k = lbl[0]
            red = "".join(f"s_and_b64 s[80:81], s[80:81], s[{i}:{i+1}]\n" for i in range(82, 96, 2)) + "s_and_b32 s80, s80, s81\n"
            A(f"s_waitcnt lgkmcnt(0)\n{red}s_cbranch_scc1 L_lr{k}"); A(f"L_ll{k}:")
            A(f"s_load_dwordx16 s[80:95], s[30:31], s78 glc\ns_add_u32 s76, s76, 1\ns_waitcnt lgkmcnt(0)\ns_cmp_ge_u32 s76, {SPIN}\ns_cbranch_scc1 L_lr{k}\n{red}s_cbranch_scc0 L_ll{k}")
            A(f"L_lr{k}:"); stamp(x)
        else:
            its = [f"X{x[1:]}", f"W{x[1:]}"] if x[0] == "S" and int(x[1:]) < 8 else [f"V{int(x[1:])-8}", f"U{int(x[1:])-8}"] if x[0] == "S" else [x]
            ops = []
            for it in its: s_.claim(it); st, o = load_ops(it); A(st); ops.append(o)
            if KWAIT[0]: ops[0][0] = ops[0][0].replace("buffer_load", "s_waitcnt lgkmcnt(0)\nbuffer_load"); KWAIT[0] = False
            if "seq" in opts and its[0][0] == "X":
                for o in ops:
                    for z in o: A(z); s_.n += 1
            else:
                for k in range(4):
                    for it, o in zip(its, ops):
                        if k < len(o): A(o[k]); s_.n += 1
            for it in its: s_.last[it] = s_.n - 1
    def sigof(s_): return (s_.cur, tuple(sorted((i, min(s_.n - k, 64)) for i, k in s_.last.items() if (first.get(i, -1) > s_.cur and k > s_.landed) or (i == "ci" and "cw" not in s_.done) or (i == "pub" and "flg" not in s_.done) or (i == "clr" and "atm" not in s_.done))), tuple(sorted(s_.occ)), tuple(sorted(x for x in s_.done if x[0].islower() and x[0] != 'k')))

DEF = ("S0 setup S1 clr B0 S2 B1 0:atm 0:K0 S3 B2 1:atm 1:K0 S4 B3 0:K1 S5 B4 1:K1 S6 B5 S7 B6 S8 B7 S9 BK ci U2 B8 cw B9 V2 S11 B10 S12 B11 S13 B12 S14 B13 pi S15 B14 pw "
       "P1a P2a P3a B15 P1b P2b P3b Pa Pb")
sched = opts.get("sched", DEF).replace("_", " ").split()
if PUBC: sched = [x for x in sched if x not in ("pr", "pub", "flg")]
NG = len({x.split(":")[0] for x in sched if ":" in x})
L0 = Loader()
k0 = min([i for i, x in enumerate(sched) if ":" in x] + [len(sched)])
for i in range(k0): L0.step(sched[i])
k1 = max([i for i, x in enumerate(sched) if ":" in x] + [k0 - 1]) + 1
def rung(gi, hi):
    Lg = L0.copy()
    for x in sched[k0:hi]:
        if ":" not in x or int(x.split(":")[0]) == gi: Lg.step(x.split(":")[-1])
    return Lg
Lg = L0
if NG:
    pb = oi("parbit", 4)
    A({2: f"s_bfe_u32 s78, s5, {hex(0x10000 | pb)}", 4: f"s_bfe_u32 s78, s5, {hex(0x20000 | pb)}", 3: "s_mul_i32 s78, s5, 3\ns_lshr_b32 s78, s78, 5"}[NG])
    while True:
        sa, sl = len(A.lines), lbl[0]
        sg = {rung(gi, k1).sigof() for gi in range(NG)}
        del A.lines[sa:]; lbl[0] = sl
        if len(sg) == 1: break
        k1 += 1; assert k1 <= len(sched)
    for gi in range(NG):
        if gi: A(f"L_g{gi}:")
        if gi < NG - 1: A(f"s_cmp_lg_u32 s78, {gi}\ns_cbranch_scc1 L_g{gi+1}")
        Lg = rung(gi, k1)
        if gi < NG - 1: A("s_branch L_merge")
        if gi == 0 and PADS: A("L_hole0:"); A("s_branch L_holem")
        if gi == NG - 1 and PADS: A("s_branch L_merge"); A("L_holem:"); A("s_branch L_hole1")
    A("L_merge:")
    for x in sched[k1:]: Lg.step(x)
assert Lg.cur == len(bars) - 2
if PADS and not NG: HOLE0 = True
for gi in range(max(NG, 1)):
    kp = ''.join(x.split(':')[-1][1:] for x in sched if x.split(':')[-1][0] == 'k' and (':' not in x or int(x.split(':')[0]) == gi))
    assert not kp or sorted(kp) == sorted('01234567'), kp
if "show" in opts:
    for it in first: print(it, "first", bars[first[it]], "free", bars[free[it]] if free.get(it, 999) < 999 else None)
A(f"""s_lshl_b32 s13, s11, 2
s_add_u32 s13, s13, s9
s_lshl_b32 s13, s13, 3
s_add_u32 s13, s13, s4
s_lshl_b32 s14, s13, 2
s_add_u32 s14, s14, s3
s_lshl_b32 s14, s14, 13
s_add_u32 s14, s14, {WS_PART}
s_add_u32 s15, s14, 4096
s_lshl_b32 s75, s3, {WSH}
s_add_u32 s13, s77, s75
s_lshl_b32 s75, s3, 6
s_lshl_b32 s77, s9, 8
s_add_u32 s75, s75, s77
s_lshl_b32 s76, s72, 4
v_add_u32 v1, s76, v4
v_lshlrev_b32 v1, 10, v1
v_bfe_u32 v2, v0, 4, 1
v_lshl_add_u32 v1, v2, 5, v1
v_lshrrev_b32 v2, 5, v0
v_lshl_add_u32 v1, v2, 4, v1
v_add_u32 v1, s75, v1
v_add_u32 v14, {OWNP}, v14
v_and_b32 v22, 7, v0
v_lshlrev_b32 v22, 2, v22
s_mov_b32 s77, 0xffff0000
s_mov_b32 s76, 0""")
def acc(p):
    for d in range(4):
        r = 64 + 4*p + d
        if p == 0: A(f"v_lshlrev_b32 v{48+2*d}, 16, v{r}\nv_and_b32 v{49+2*d}, s77, v{r}")
        else: A(f"v_lshlrev_b32 v2, 16, v{r}\nv_and_b32 v3, s77, v{r}\nv_pk_add_f32 v[{48+2*d}:{49+2*d}], v[{48+2*d}:{49+2*d}], v[2:3]")
FP = oi("fp", 0); PS = oi("ps", 0)
ZB = "s_barrier\nds_read_b128 v[40:43], v14\nds_read_b128 v[44:47], v14 offset:1024"
TP = oi("tp", 3); ntp = [0]
def tpad():
    if TP: A(f"L_tp{ntp[0]}:"); ntp[0] += 1; A(f"s_cbranch_vccnz L_tp{ntp[0]}")
if TP: A("s_mov_b64 vcc, -1\ns_branch L_tp0"); A("L_tb:"); A("s_mov_b64 vcc, 0")
if ZE: A(ZB)
if oi("ps0", 0): A(f"s_sleep {oi('ps0', 0)}")
if FP:
    for i in range(8): A(f"s_mov_b32 s{80+i}, 0")
for p in range(7):
    if "dg3" in opts or "dg4" in opts: A(f"s_branch L_fd{p}")
    if p > 0: A((f"s_bitcmp1_b32 vcc_lo, {p}" if "vp" in opts else f"s_cmp_lg_u32 s{80+p}, 0") + f"\ns_cbranch_scc1 L_fd{p}")
    A(f"L_fw{p}:")
    if FP and p >= oi("fpfrom", 4):
        A(f"s_load_dwordx8 s[80:87], s[30:31], s13 glc\ns_add_u32 s76, s76, 1\ns_cmp_ge_u32 s76, {SPIN}\ns_sleep {FP}\ns_waitcnt lgkmcnt(12)\ns_cbranch_scc1 L_fd{p}")
    elif "vp" in opts:
        A(f"buffer_load_dword v21, v22, s[{SWS}:{SWS+3}], s13 offen sc1\ns_add_u32 s76, s76, 1\ns_waitcnt vmcnt(0)\nv_cmp_ne_u32 vcc, 0, v21\ns_cmp_ge_u32 s76, {SPIN}\ns_cbranch_scc1 L_fd{p}")
    else:
        if PS: A(f"s_sleep {PS}")
        A(f"s_load_dwordx8 s[80:87], s[30:31], s13 glc\ns_add_u32 s76, s76, 1\ns_cmp_ge_u32 s76, {SPIN}\ns_waitcnt lgkmcnt(0)\ns_cbranch_scc1 L_fd{p}")
    A((f"s_bitcmp0_b32 vcc_lo, {p}" if "vp" in opts else f"s_cmp_eq_u32 s{80+p}, 0") + f"\ns_cbranch_scc1 L_fw{p}")
    A(f"L_fd{p}:")
    if not ("dg1" in opts and p < 6) and "dg4" not in opts: A(f"buffer_load_dwordx4 {v(64+4*p,4)}, v13, s[{SWS}:{SWS+3}], {'s14' if p < 4 else 's15'} offen offset:{(p&3)*1024} sc1 {'nt' if 'fnt' in opts else ''}")
    stamp(f"f{p}")
    if p in (2, 6): tpad()
if not ZE: A(ZB)
for p in range(6):
    A(f"s_waitcnt vmcnt({6-p})"); acc(p)
    if p % TP == TP - 1 if TP else False: tpad()
A("s_waitcnt lgkmcnt(0)")
for d in range(4): A(f"v_pk_add_f32 v[{48+2*d}:{49+2*d}], v[{48+2*d}:{49+2*d}], v[{40+2*d}:{41+2*d}]")
A("s_waitcnt vmcnt(0)"); acc(6)
for d in range(4): A(f"v_cvt_pk_bf16_f32 v{56+d}, v{48+2*d}, v{49+2*d}")
A("s_nop 1\nv_permlane16_swap_b32 v56, v58\nv_permlane16_swap_b32 v57, v59")
A(f"buffer_store_dwordx4 v[56:59], v1, s[{SOUT}:{SOUT+3}], 0 offen {opts.get('outf', '').replace('+', ' ')}")
if "amp" in opts:
    if opts["amp"] == "end": A("s_waitcnt vmcnt(0)\ns_memrealtime s[98:99]")
    if opts["amp"] == "none": A("s_mov_b32 s98, s96")
    if opts["amp"] == "xcc": A("s_getreg_b32 s13, hwreg(HW_REG_XCC_ID)\ns_and_b32 s13, s13, 7\ns_mul_i32 s13, s13, 125\ns_add_u32 s98, s96, s13")
    if opts["amp"] == "skew":
        A(f"s_load_dword s98, s[30:31], {hex(0x40000 + 128*oi('ampref', 0))} glc\ns_waitcnt lgkmcnt(0)\ns_sub_u32 s98, s96, s98\ns_add_u32 s98, s98, 200\ns_add_u32 s98, s98, s96")
    A(f"s_cmp_lg_u32 s2, {oi('ampwg', 77)}\ns_cbranch_scc1 L_end\ns_waitcnt lgkmcnt(0)\ns_sub_u32 s13, s98, s96\ns_min_u32 s13, s13, 3000\ns_lshl_b32 s13, s13, 3\ns_add_u32 s13, s13, 4000\ns_add_u32 s13, s13, s96\ns_mov_b32 s15, 0")
    A("L_amp:")
    A("s_memrealtime s[98:99]\ns_waitcnt lgkmcnt(0)\ns_add_u32 s15, s15, 1\ns_cmp_gt_u32 s15, 30000\ns_cbranch_scc1 L_end\ns_sub_u32 s14, s98, s13\ns_cmp_lt_i32 s14, 0\ns_cbranch_scc1 L_amp")
if STAMP:
    A("s_waitcnt vmcnt(0)"); stamp("end")
    A("s_cmp_lg_u32 s3, 0\ns_cbranch_scc1 L_end")
    A(f"s_lshl_b32 s13, s2, 9\ns_add_u32 s13, s13, {hex(WS_STAMP)}\nv_lshlrev_b32 v253, 3, v0\nv_add_u32 v253, s13, v253")
    A(f"v_cmp_gt_u32 vcc, 48, v0\ns_nop 1\ns_mov_b64 exec, vcc")
    A(f"buffer_store_dwordx2 v[254:255], v253, s[{SWS}:{SWS+3}], 0 offen")
A("s_endpgm")
if TP: A(f"L_tp{ntp[0]}:"); A("s_branch L_tb")
if PADS and not NG: A("L_hole0:")
if PADS: A("L_hole1:"); A("s_branch L_pad0")

out = HEADER
out += "; @launch grid=(256,1,1) block=(512,1,1) lds=163840\n"
if STAMP:
    nm = {0: "t0"}
    for i, n_ in enumerate(lst): nm[i + 1 + (i + 1 >= 30)] = "L" + n_
    for i, n_ in enumerate(cst): nm[48 + i] = n_
    out += "; stampnames " + " ".join(f"{k}={x}" for k, x in nm.items()) + "\n"
out += """;
; One persistent launch, one workgroup per CU (generated by a script of mine; all code is hand-scheduled).
;   waves 4-7 stream tiles into LDS (LDS-DMA, XOR-swizzled images); waves 0-3 run 16x16x32 bf16 MFMAs.
;   3. out[:, jn] partial = sum over the 4 heads of P_h (V_h Wo_h[:, jn])   (same function, re-associated).
;   4. the 8 head groups reduce-scatter bf16 partials through d_ws; the owner adds them in fp32 and stores out.
; with the L1 bypassed, so they hold for any workgroup placement.  Flag words are cleared at the start of every
; launch and the clear is certified through counters in d_debug before anyone sets a flag.
"""
out += f'.amdgcn_target "amdgcn-amd-amdhsa--gfx950"\n.text\n.globl {KN}\n.type {KN},@function\n' + A.text() + C.text() + "L_codeend:\n"
out += '.section .rodata,"a"\n' + kd(KN, 256)
if "nopad" not in opts:
    import subprocess, re
    def addrs(text, lab='L_back'):
        open("_ap.s", "w").write(text)
        subprocess.run(["clang", "-x", "assembler", "-target", "amdgcn-amd-amdhsa", "-mcpu=gfx950", "-c", "_ap.s", "-o", "_ap.o"], check=True)
        d = subprocess.run(["llvm-objdump", "-d", "--mcpu=gfx950", "_ap.o"], capture_output=True, text=True).stdout
        d = d[d.index(f"<{lab}>:"):]
        return [int(m.group(1), 16) + oi("stub", 0x300) for m in re.finditer(r"// ([0-9A-F]{12}):", d)]
    if oi("lhole", 0):
        lines = out.split("\n"); i0 = lines.index("L_loader:"); i1 = lines.index("L_tb:") if TP else lines.index("L_fw0:")
        ins = [i for i in range(i0, i1) if lines[i].startswith("    ") and not lines[i].strip().startswith(";")]
        ad = addrs(out, "L_loader")
        cross = [j for j in range(1, len(ins)) if ad[j] // 4096 != ad[j-1] // 4096]
        assert len(cross) <= 1
        if cross:
            j = ins[cross[0]]
            ih = lines.index("L_hole1:"); lines[ih] = "L_hole2:"
            lines[j:j] = ["    s_branch L_hskip", "L_hole1:", "    s_branch L_hole2", "L_hskip:"]
            out = "\n".join(lines)
    k = 0
    while True:
        lines = out.split("\n"); i0 = lines.index("L_back:")
        ins = [i for i in range(i0, lines.index('L_end:')) if lines[i].startswith("    ") and not lines[i].strip().startswith(";")]
        ad = addrs(out)
        cross = [j for j in range(1, min(len(ad), len(ins))) if ad[j] // 4096 != ad[j-1] // 4096]
        if k >= len(cross): break
        j = ins[cross[k]]
        ie = lines.index(f"L_pad{k}:"); lines[ie] = f"L_pad{k+1}:"
        lines[j:j] = [f"L_pad{k}:", f"    s_cbranch_vccnz L_pad{k+1}"]
        out = "\n".join(lines); k += 1
open(sys.argv[1], "w").write(out)
```

```python
import sys, math, struct
from collections import defaultdict
from common import *
opts = dict(a.split("=") if "=" in a else (a, "1") for a in sys.argv[2:])
def oi(k, d): return int(opts.get(k, d))
STAMP = "stamp" in opts
NTK = "" if "nont" in opts else "nt"
MF = "v_mfma_f32_16x16x32_bf16"
KN = NAME + "_kernel"
WSB = int(opts.get('wsb', '0'), 0)
WS_P, WS_PART, WS_FLAG, WS_STAMP = WSB, WSB + 0x400000, WSB + 0xC00000, 0x9000000
SPIN = 1 << 18
K1 = 1024
SA = opts.get('sa', 'pf')
JN = {'1': 's_add_u32 s9, s8, s11', '2': 's_lshl1_add_u32 s9, s11, s8', '0': 's_mov_b32 s9, s8'}[opts.get('jn', '2')]
FSH = oi('fsh', 10); WSH = FSH - 2 if FSH > 8 else 5
SSET = set(opts["sset"].split(",")) if "sset" in opts else None

U = lambda u: (u * 16 * K1, 16 * K1)
LOC = {}
def place(prefix, i0, units):
    for i, u in enumerate(units): LOC[f"{prefix}{i0+i}"] = U(u)
place("X", 0, [int(c) for c in opts.get("xu", "01230123")])
place("W", 0, [int(c) for c in opts.get("wu", "45674567")])
place("V", 0, [int(c) for c in opts.get("vu", "01289012")])
place("U", 0, [int(c) for c in opts.get("uu", "45674567")])
LOC["K0"], LOC["K1"] = U(8), U(9)
LOC["P0"] = LOC["X7"]
place("P", 1, [int(c) for c in opts.get("pu", "894")])
FIN = LOC["P0"][0]

C = Asm()
bars = []; first, free = {}, {}
q = []; pend = set(); dsn = [0]
def _ret(n):
    while len(q) > n:
        it = q.pop(0)[1]
        if it: pend.add(it)
def ds(ins, item=None):
    lim = 13 if STAMP else 15
    if len(q) >= lim: C(f"s_waitcnt lgkmcnt({lim-1})"); _ret(lim - 1)
    C(ins); dsn[0] += 1; q.append((dsn[0], item))
    if item:
        if item not in first: first[item] = len(bars) - 1
        free.pop(item, None)
    return dsn[0]
def need(*ids):
    pos = [k for k, (i, _) in enumerate(q) if i in ids]
    if pos:
        n = len(q) - 1 - max(pos); C(f"s_waitcnt lgkmcnt({n})"); _ret(n)
def drain():
    if q: C("s_waitcnt lgkmcnt(0)"); _ret(0)
def bar(name):
    if opts.get("diagslp") == name: C("s_sleep 5")
    bars.append(name); C(f"s_barrier                ; {name}"); cstamp(name)
    live = {it for _, it in q}
    for it in list(pend):
        if it not in live: free[it] = len(bars) - 1; pend.discard(it)
cst = []; CREG = list(range(32, 56, 2)) + [60, 62, 92, 94]
def cstamp(name):
    if STAMP and SSET is not None and name in SSET:
        i = len(cst); cst.append(name); assert i < 16
        if len(q) > 12: C("s_waitcnt lgkmcnt(12)"); _ret(12)
        C(f"s_mem{'real' if 'rt' in opts else ''}time s[{CREG[i]}:{CREG[i]+1}]")
I = lambda x: (lambda: C(x))
npad = [0]
PADS = [int(x) for x in opts.get("pads", "").split(",") if x] or ([-1] if "nopad" not in opts else [])
def pad():
    C(f"L_pad{npad[0]}:"); npad[0] += 1; C(f"s_cbranch_vccnz L_pad{npad[0]}")

VX, VW, LIN0, VOWN = 4, 8, 16, 17
TM = 18
ACC, BR0, PR, VWS = 24, 88, 112, 128
BR = [BR0 + 4*i for i in range(6)]
QB, SC, PB, VK = VWS + 96, VWS + 64, VWS + 48, VWS + 32
C("L_compute:")
C(f"s_setprio {oi('prio', 0)}")
srd_consts(C, [SWS])
C(f"""v_and_b32 v1, 15, v0
v_lshrrev_b32 v2, 4, v0
v_bfe_u32 v3, v0, 1, 3
v_xor_b32 v3, v3, v2
v_lshlrev_b32 v3, 4, v3
v_lshl_add_u32 v3, v1, 7, v3
s_lshl_b32 s70, s3, 12
v_add_u32 v{VX}, s70, v3
v_xor_b32 v{VX+1}, 64, v{VX}
v_add_u32 v{VX+2}, 0x20000, v3
v_xor_b32 v{VX+3}, 64, v{VX+2}
v_lshrrev_b32 v3, 1, v2
v_xor_b32 v3, v3, v1
v_lshlrev_b32 v3, 4, v3
v_lshl_add_u32 v3, v1, 8, v3
v_and_b32 v18, 1, v2
v_lshl_add_u32 v3, v18, 3, v3
s_lshr_b32 s13, s3, 1
s_lshl_b32 s13, s13, 14
s_add_u32 s13, s13, 0x20000
v_add_u32 v{VK}, s13, v3
v_lshlrev_b32 v{LIN0}, 4, v0
v_add_u32 v{VOWN}, s70, v{LIN0}
v_bfe_u32 v1, v0, 2, 2
v_and_b32 v3, 3, v0
v_lshlrev_b32 v3, 3, v3
v_lshl_add_u32 v19, v18, 2, v1
v_lshl_add_u32 v20, v2, 3, v1
v_lshlrev_b32 v20, 8, v20
v_lshl_add_u32 v20, v19, 5, v20
v_add_u32 v20, v20, v3
v_add_u32 v{VW}, 0x10000, v20""")
for i in range(1, 8): C(f"v_xor_b32 v{VW+i}, {i*32}, v{VW}\nv_xor_b32 v{VK+i}, {i*32}, v{VK}")
C(f"""s_lshl_b32 s13, s11, 2
s_add_u32 s13, s13, s9
s_lshl_b32 s13, s13, 3
s_add_u32 s13, s13, s4
s_lshl_b32 s65, s13, 15
s_lshl_b32 s14, s3, 13
s_add_u32 s65, s65, s14
s_lshl_b32 s66, s13, {FSH}
s_lshl_b32 s14, s3, {WSH}
s_add_u32 s66, s66, s14""")
for p in range(7):
    C(f"s_xor_b32 s13, s65, {(7-p) << 15}\ns_add_u32 s{80+p}, s13, {WS_PART + p*1024}")
    C(f"s_xor_b32 s13, s66, {(7-p) << FSH}\ns_add_u32 s{72+p}, s13, {WS_FLAG + p*4}")
C(f"""s_lshl_b32 s13, s11, 3
s_add_u32 s13, s13, s4
s_lshl_b32 s64, s13, 16
s_lshl_b32 s14, s8, 14
s_add_u32 s64, s64, s14
s_add_u32 s64, s64, {WS_P}
s_lshl_b32 s67, s11, {FSH+5}
s_lshl_b32 s14, s4, {FSH}
s_add_u32 s67, s67, s14
s_lshl_b32 s14, s8, 4
s_add_u32 s67, s67, s14
s_lshl_b32 s14, s3, 2
s_add_u32 s67, s67, s14
s_add_u32 s67, s67, {WS_FLAG + 128}""")
cs = struct.unpack("<I", struct.pack("<f", math.log2(math.e) / math.sqrt(128)))[0]
C(f"s_mov_b32 s68, {hex(cs)}\ns_mov_b32 s69, {hex(cs)}\ns_lshl_b32 s71, s3, 6\ns_mov_b32 s87, 1")
C("s_waitcnt lgkmcnt(0)")
srd_ptrs(C, [SWS])
if PADS:
    C("s_waitcnt vmcnt(0)\ns_mov_b64 vcc, -1\ns_branch L_hole0"); C("L_back:"); C("s_mov_b64 vcc, 0")

WP = oi('wp', 1)
class Stream:
    def __init__(s_): s_.e = []; s_.fill = defaultdict(list); s_.before = defaultdict(list); s_.id = defaultdict(list); s_.hold = {}
    def rd(s_, m, k): s_.id[m].append(s_.e[m][0][k](BR[m % 6]))
    def prologue(s_, lo):
        for m in range(lo, lo + 6):
            for k in range(len(s_.e[m][0])): s_.rd(m, k)
    def run(s_, lo, hi, stop):
        for m in range(lo, hi):
            for f in s_.before.pop(m, []): f()
            cstamp(f'e{m}')
            if m in PADS: s_.fill[2*m].append(pad)
            assert len(s_.id[m]) == len(s_.e[m][0]), m
            for hh in range(2):
                a_, b_, d, fst, deps = s_.e[m][1][hh ^ (m & 1)]
                extra = s_.id[m+1] if (WP and m % 2 == 0 and m + 1 < hi and m > lo) else []
                need(*s_.id[m], *extra, *deps())
                R = v(BR[m % 6], 4)
                C(f"{MF} {v(d,4)}, {R if a_ is None else v(a_,4)}, {R if b_ is None else v(b_,4)}, {'0' if fst else v(d,4)}")
                if hh == 0 and m > lo and m + 5 < stop and len(s_.e[m+5][0]) == 2: s_.rd(m + 5, 1)
                if hh == 1 and m + 6 < stop: s_.rd(m + 6, 0)
                for f in s_.fill.pop(2*m + hh, []): f()
S = Stream(); pid = {}
def xaddr(a, ss): return (VX + ss + (2 if a >= 128*K1 else 0), a % 65536)
def x_rd(n, qt):
    it = f"X{n//2}"; r, o = xaddr(LOC[it][0], n & 1); assert LOC[it][0] < 65536
    return lambda: pid.__setitem__(("x", n, qt), ds(f"ds_read_b128 {v(PR+8*(n&1)+4*qt,4)}, v{r} offset:{o + qt*2048}", it))
for n in range(16):
    for mt in range(8):
        it = f"W{n//2}"
        rds = [lambda r, it=it, n=n, mt=mt, e=e: ds(f"ds_read_b64_tr_b16 {v(r+2*e,2)}, v{VW + (mt ^ (4*e))} offset:{LOC[it][0]-65536 + (n&1)*8192 + e*1024}", it) for e in range(2)]
        S.e.append((rds, [(None, PR + 8*(n&1) + 4*qt, ACC + 8*mt + 4*qt, n == 0, lambda n=n, qt=qt: [pid[("x", n, qt)]]) for qt in range(2)]))
    if n < 15:
        for qt in range(2): S.fill[2*(8*n + 2 + 2*qt)].append(x_rd(n + 1, qt))
    if n & 1 and n < 15: S.before[8*n + 2].append(lambda n=n: bar(f"B{(n+1)//2}"))
if oi("bk", 1): S.before[122].append(lambda: bar("BK"))
QKO = oi("qko", 0)
qk = [(kt, s_) for s_ in range(4) for kt in range(4)]
if QKO: qk = qk[:8] + [(0, 2), (1, 2), (0, 3), (1, 3), (2, 2), (2, 3), (3, 2), (3, 3)]
for kt, s_ in qk:
    rds = [lambda r, kt=kt, s_=s_, e=e: ds(f"ds_read_b64{'_tr_b16' if 'ktr' in opts else ''} {v(r+2*e,2)}, v{VK + 2*s_ + e} offset:{kt*4096}", "K") for e in range(2)]
    S.e.append((rds, [(None, QB + 16*qt + 4*s_, SC + 16*qt + 4*kt, s_ == 0, lambda: []) for qt in range(2)]))
for mt in range(8):
    for k, (qt, i) in enumerate([(0, 0), (0, 1), (1, 0), (1, 1)]):
        if "nocvt" not in opts: S.fill[2*123 + (4*mt + k if not QKO else (4*mt + k) * 7 // 8)].append(I(f"v_cvt_pk_bf16_f32 v{QB+16*qt+2*mt+i}, v{ACC+8*mt+4*qt+2*i}, v{ACC+8*mt+4*qt+2*i+1}"))
adr = [f"v_subrev_u32 v{VX+k}, s70, v{VX+k}" for k in range(2)] + [f"v_xor_b32 v{VW+k}, s71, v{VW+k}" for k in (0, 1, 4, 5)]
for k, x in enumerate(adr): S.fill[2*(117 + k) if k < 2 else 2*(130 + k)].append(I(x))
M = lambda qt: TM + 2*qt
if QKO:
    for qt in range(2):
        S.fill[2*142 + 0].append(I(f"v_max3_f32 v{M(qt)}, v{SC+16*qt}, v{SC+16*qt+1}, v{SC+16*qt+2}"))
        S.fill[2*143 + 0].append(I(f"v_max3_f32 v{M(qt)}, v{M(qt)}, v{SC+16*qt+3}, v{SC+16*qt+4}"))
        S.fill[2*143 + 1].append(I(f"v_max3_f32 v{M(qt)}, v{M(qt)}, v{SC+16*qt+5}, v{SC+16*qt+6}"))
E2 = 144
OA = VWS + 64
LW = {0: LIN0, 1: VW + 2, 2: VW + 3}
VZ, V1 = VW + 6, VW + 7
def u_rd(n, k):
    it = f"U{n//2}"; nt, e = k >> 1, k & 1
    return lambda: pid.__setitem__(("u", n, k), ds(f"ds_read_b64_tr_b16 {v(PR+8*(n&1)+4*nt+2*e,2)}, v{VW + (nt ^ (4*e))} offset:{LOC[it][0]-65536 + (n&1)*8192 + e*1024}", it))
def vwreg(s_, b, u, nt):
    return ACC + 8*(4*b + 2*u) + 4*nt if s_ in (0, 3) else VWS + 32*(s_ - 1) + 16*b + 8*u + 4*nt
def add_vw(n):
    m0 = len(S.e)
    for rt in range(8):
        it = f"V{n//2}"; r0, o = xaddr(LOC[it][0], n & 1)
        rds = [lambda r, it=it, r0=r0, o=o, rt=rt: ds(f"ds_read_b128 {v(r,4)}, v{r0} offset:{o + rt*2048}", it)]
        S.e.append((rds, [(None, PR + 8*(n&1) + 4*nt, ACC + 8*rt + 4*nt, n % 4 == 0, lambda n=n, nt=nt: [pid[("u", n, 2*nt)], pid[("u", n, 2*nt+1)]]) for nt in range(2)]))
    if n:
        for k in range(4): S.fill[2*(m0 - 6 + k)].append(u_rd(n, k))
        if n % 2 == 0: S.before[m0 - 6].append(lambda n=n: bar(f"B{8 + n//2}"))
    if n % 4 == 3:
        slots = []
        for gq in range(6, 30):
            slots += [gq] * (2 if (gq % 2 == 0 and (gq // 2) % 8 in (6, 7, 0, 1)) or gq in (6, 8, 10) else 1)
        for rt in range(8):
            for k, (nt, i) in enumerate([(0, 0), (0, 1), (1, 0), (1, 1)]):
                S.fill[(2*(m0 + 3) + 4*rt + k) if (n in (3, 15) and oi("cvs", 1)) else (2*m0 + slots[4*rt + k]) if oi("cv2", 1) else 2*(m0 + rt + 4) + (k >> 1)].append(I(f"v_cvt_pk_bf16_f32 v{vwreg(n//4, rt>>2, (rt>>1)&1, nt)+2*(rt&1)+i}, v{ACC+8*rt+4*nt+2*i}, v{ACC+8*rt+4*nt+2*i+1}"))
NPQ = oi("npq", 2)
def add_pv(p, s_, u):
    it = "P0" if s_ == 0 else f"P{s_}" + "abcd"[p * NPQ // 8]; a = LOC[f"P{s_}"][0] + p*2048 + u*1024
    rds = [lambda r: ds(f"ds_read_b128 {v(r,4)}, v{LW[a // 65536]} offset:{a % 65536}", it)]
    S.e.append((rds, [(vwreg(s_, p >> 2, u, nt), None, OA + 8*p + 4*nt, s_ == 0 and u == 0, lambda: []) for nt in range(2)]))
for n in range(4): add_vw(n)
EP = len(S.e)
for b_ in range(2):
    for u in range(2):
        for p in range(4*b_, 4*b_ + 4): add_pv(p, 0, u)
for n in range(4, 16): add_vw(n)
E3 = len(S.e)
for p in range(8):
    for s_ in range(1, 4):
        for u in range(2): add_pv(p, s_, u)
for s_ in range(1, 4):
    for hf in range(NPQ): LOC[f"P{s_}{'abcd'[hf]}"] = (LOC[f"P{s_}"][0] + hf*16384//NPQ, 16384//NPQ)
for hf in range(NPQ): S.before[E3 + 48*hf//NPQ - 6].append(lambda hf=hf: bar("P" + "abcd"[hf]))
for k, x in enumerate([f"v_add_u32 v{LW[1]}, 0x10000, v{LIN0}", f"v_add_u32 v{LW[2]}, 0x20000, v{LIN0}", f"v_mov_b32 v{VZ}, 0", f"v_mov_b32 v{V1}, -1", f"v_lshlrev_b32 v1, {FSH+3}, v0"]):
    S.fill[2*((EP if oi('sovl', 0) else E2) + 6 + k) + 1].append(I(x))
vmq = []; sent = set()
def flag(p):
    if "f" in SA:
        C(f"s_waitcnt vmcnt({len(vmq) - 1 - vmq.index(f'D{p}')})\ns_atomic_add s87, s[30:31], s{72+p}"); sent.add(p); return
    sent.add(p)
    C(f"s_waitcnt vmcnt({len(vmq) - 1 - vmq.index(f'D{p}')})\ns_mov_b64 exec, 1")
    C(f"buffer_store_dword v{V1}, v{VZ}, s[{SWS}:{SWS+3}], s{72+p} offen sc1\ns_mov_b64 exec, -1"); vmq.append(f"F{p}")
FLAG_LAG = oi("flag", 7)
for p in range(7):
    g0 = 2*(E3 + 6*(p+1) + 2); r = PR + 4*(p & 3)
    if p >= oi("fastsend", 7):
        ge = 2*(E3 + 6*(p+1) + 1) + 1
        S.fill[ge].append(I("s_nop 1"))
        for i in range(4): S.fill[ge].append(I(f"v_cvt_pk_bf16_f32 v{r+i}, v{OA+8*p+2*i}, v{OA+8*p+2*i+1}"))
        S.fill[ge].append(lambda p=p, r=r: (C(f"buffer_store_dwordx4 {v(r,4)}, v{LIN0}, s[{SWS}:{SWS+3}], s{80+p} offen sc1"), vmq.append(f"D{p}")))
        if p >= FLAG_LAG: S.fill[g0 + 6].append(lambda p=p: flag(p - FLAG_LAG))
        continue
    for i in range(4): S.fill[g0 + (2*((i >> 1) ^ 1) if oi("cv3", 1) else 1 + (i >> 1))].append(I(f"v_cvt_pk_bf16_f32 v{r+i}, v{OA+8*p+2*i}, v{OA+8*p+2*i+1}"))
    S.fill[g0 + 4].append(lambda p=p, r=r: (C(f"buffer_store_dwordx4 {v(r,4)}, v{VZ if 'dg2' in opts and p < 6 else LIN0}, s[{SWS}:{SWS+3}], s{80+p} offen sc1"), vmq.append(f"D{p}")))
    if p >= FLAG_LAG: S.fill[g0 + 6].append(lambda p=p: flag(p - FLAG_LAG))
EF = [tuple(int(y) for y in x.split(":")) for x in opts.get("ef", "").split(",") if x]
def efbar(k, cnt):
    C(f"s_waitcnt vmcnt({len(vmq) - cnt})"); assert len(vmq) >= cnt
    sent.update(range(cnt)); bar(f"F{k}")
for k, (at, cnt) in enumerate(EF): S.before[E3 + at].append(lambda k=k, cnt=cnt: efbar(k, cnt))
if oi("sovl", 0):
    sm = []
    def op(x, c=4): sm.append((c, I(x)))
    for qt in range(2): op(f"v_max3_f32 v{M(qt)}, v{SC+16*qt}, v{SC+16*qt+1}, v{SC+16*qt+2}", 5)
    for i in range(3, 15, 2):
        for qt in range(2): op(f"v_max3_f32 v{M(qt)}, v{M(qt)}, v{SC+16*qt+i}, v{SC+16*qt+i+1}", 5)
    for qt in range(2): op(f"v_max_f32 v{M(qt)}, v{M(qt)}, v{SC+16*qt+15}")
    def xred(o_, fin, fc):
        a_, b_ = M(0), M(1)
        op("s_nop 1", 8); op(f"v_permlane32_swap_b32 v{a_}, v{b_}", 8); op(f"{o_} v{a_}, v{a_}, v{b_}"); op(f"v_mov_b32 v{b_}, v{a_}")
        op("s_nop 1", 8); op(f"v_permlane16_swap_b32 v{a_}, v{b_}", 8); op(f"{o_} v{a_}, v{a_}, v{b_}"); op(fin[0], fc); op(fin[1], fc)
        op("s_nop 1", 8); op(f"v_permlane32_swap_b32 v{a_}, v{b_}", 8)
    xred("v_max_f32", [f"v_mul_f32 v{M(1)}, s68, v{M(0)}", f"v_mul_f32 v{M(0)}, s68, v{M(0)}"], 4)
    SM = [M(0) + 1, M(1) + 1]
    op(f"v_fma_f32 v{SC}, v{SC}, s68, -v{M(0)}", 5)
    for i in range(32):
        op(f"v_exp_f32 v{SC+i}, v{SC+i}", 8)
        if i < 31: op(f"v_fma_f32 v{SC+i+1}, v{SC+i+1}, s68, -v{M((i+1)>>4)}", 5)
        j = i - 1
        if j >= 0 and j % 16: op(f"v_add_f32 v{SM[j>>4]}, v{SM[j>>4] if j % 16 > 1 else SC+j-1}, v{SC+j}")
    op(f"v_mov_b32 v{M(0)}, v{SM[0]}"); op(f"v_add_f32 v{M(1)}, v{SM[1]}, v{SC+31}")
    xred("v_add_f32", [f"v_rcp_f32 v{M(1)}, v{M(0)}", f"v_rcp_f32 v{M(0)}, v{M(0)}"], 8)
    wr = {}
    for t in range(4):
        for i in range(8): op(f"v_mul_f32 v{SC+8*t+i}, v{M(t>>1)}, v{SC+8*t+i}")
        for i in range(4): op(f"v_cvt_pk_bf16_f32 v{PB+4*t+i}, v{SC+8*t+2*i}, v{SC+8*t+2*i+1}", 5)
        sm.append((8, lambda t=t: wr.__setitem__("l", ds(f"ds_write_b128 v{VOWN}, {v(PB+4*t,4)} offset:{LOC['P0'][0] + t*1024}"))))
    sm.append((0, lambda: cstamp("sm")))
    g_lo, g_hi = 2*E2 - 1, 2*(E2 + oi("smend", 23))
    tot = sum(c for c, _ in sm); acc_ = 0
    for c, f in sm:
        S.fill[g_lo + int(acc_ * (g_hi - g_lo) / tot)].append(f); acc_ += c
    assert E2 + oi("smend", 23) < EP - 6
    S.before[EP - 6].append(lambda: (need(wr["l"]), bar("BP")))
    PUBC = oi("pubc", oi("smend", 23) + 1); EARLY8 = 1
    for t in range(4):
        S.fill[2*(E2 + PUBC + oi("pubd", 0)*t)].append(I(f"buffer_store_dwordx4 {v(PB+4*t,4)}, v{VOWN}, s[{SWS}:{SWS+3}], s64 offen offset:{t*1024} sc1"))
    S.fill[2*(E2 + oi("flgc", 66))].append(I(f"s_waitcnt vmcnt(0)\ns_mov_b64 exec, 15\nbuffer_store_dword v{V1}, v1, s[{SWS}:{SWS+3}], s67 offen sc1\ns_mov_b64 exec, -1"))

    for k in range(4): S.fill[2*(E2 - 5 + k)].append(u_rd(0, k))
    S.before[E2 - 6].append(lambda: bar("B8"))
    if oi("bq", 0): S.before[E2 + 1].append(lambda: bar("BQ"))
    bar("B0"); C("s_waitcnt vmcnt(0)")
    x_rd(0, 0)(); x_rd(0, 1)(); S.prologue(0)
    S.run(0, len(S.e), len(S.e))
    assert not S.fill and not S.before, (dict(S.fill), dict(S.before))
else:
    bar("B0"); C("s_waitcnt vmcnt(0)")
    x_rd(0, 0)(); x_rd(0, 1)(); S.prologue(0)
    S.run(0, E2, E2)
    cstamp("qk")
    if oi("bq", 0): bar("BQ")
    C.c("softmax over the 64 keys (16 per lane x 4 lane groups), two 16-query tiles")
    if not QKO:
        C("s_nop 2")
        for qt in range(2): C(f"v_max3_f32 v{M(qt)}, v{SC+16*qt}, v{SC+16*qt+1}, v{SC+16*qt+2}")
    for i in range(7 if QKO else 3, 15, 2):
        if QKO and i == 11: C("s_nop 1")
        for qt in range(2): C(f"v_max3_f32 v{M(qt)}, v{M(qt)}, v{SC+16*qt+i}, v{SC+16*qt+i+1}")
    for qt in range(2): C(f"v_max_f32 v{M(qt)}, v{M(qt)}, v{SC+16*qt+15}")
    def xred(op, fin, fill):
        a_, b_ = M(0), M(1)
        def gap(n):
            for _ in range(n): fill.pop(0)() if fill else C("s_nop 0")
        gap(2); C(f"v_permlane32_swap_b32 v{a_}, v{b_}\n{op} v{a_}, v{a_}, v{b_}\nv_mov_b32 v{b_}, v{a_}")
        gap(2); C(f"v_permlane16_swap_b32 v{a_}, v{b_}\n{op} v{a_}, v{a_}, v{b_}\n{fin[0]}\n{fin[1]}")
        gap(2); C(f"v_permlane32_swap_b32 v{a_}, v{b_}")
    xred("v_max_f32", [f"v_mul_f32 v{M(1)}, s68, v{M(0)}", f"v_mul_f32 v{M(0)}, s68, v{M(0)}"], [])
    pkf = lambda i: f"v_pk_fma_f32 {v(SC+2*i,2)}, {v(SC+2*i,2)}, s[68:69], {v(M(i>>3),2)} op_sel_hi:[1,1,0] neg_lo:[0,0,1] neg_hi:[0,0,1]"
    SM = [TM + 4, 2]
    C(pkf(0))
    for i in range(16):
        C(f"v_exp_f32 v{SC+2*i}, v{SC+2*i}")
        if i < 15: C(pkf(i + 1))
        C(f"v_exp_f32 v{SC+2*i+1}, v{SC+2*i+1}")
        j = i - 1
        if j >= 0 and j % 8: C(f"v_pk_add_f32 {v(SM[j>>3],2)}, {v(SM[j>>3],2) if j % 8 > 1 else v(SC+2*j-2,2)}, {v(SC+2*j,2)}")
    C(f"v_add_f32 v{M(0)}, v{SM[0]}, v{SM[0]+1}\nv_pk_add_f32 {v(SM[1],2)}, {v(SM[1],2)}, {v(SC+30,2)}\nv_add_f32 v{M(1)}, v{SM[1]}, v{SM[1]+1}")
    EARLY8 = oi("early8", 0); pro = []
    if EARLY8:
        if EARLY8 == 1: bar("B8")
        pro = [u_rd(0, k) for k in range(4)] + [lambda m=m: S.rd(m, 0) for m in range(E2, E2 + 6)]
    xred("v_add_f32", [f"v_rcp_f32 v{M(1)}, v{M(0)}", f"v_rcp_f32 v{M(0)}, v{M(0)}"], pro)
    for f in pro: f()
    PUBC = oi("pubc", -3)
    pst = lambda t: f"buffer_store_dwordx4 {v(PB+4*t,4)}, v{VOWN}, s[{SWS}:{SWS+3}], s64 offen offset:{t*1024} sc1"
    E8T = oi("e8t", -1)
    for t in range(4):
        if t == E8T:
            bar("B8"); EARLY8 = 3
            for k in range(4): u_rd(0, k)()
            S.prologue(E2)
        for i in range(8*t, 8*t + 8, 2): C(f"v_pk_mul_f32 {v(SC+i,2)}, {v(SC+i,2)}, {v(M(t>>1),2)} op_sel_hi:[1,0]")
        for i in range(4): C(f"v_cvt_pk_bf16_f32 v{PB+4*t+i}, v{SC+8*t+2*i}, v{SC+8*t+2*i+1}")
        lastw = ds(f"ds_write_b128 v{VOWN}, {v(PB+4*t,4)} offset:{LOC['P0'][0] + t*1024}")
        if PUBC == -3: C(pst(t))
    S.before[E2 + 10].insert(0, lambda: need(lastw))
    cstamp("sm")
    if PUBC == -2:
        for t in range(4): C(pst(t))
    if not EARLY8:
        if not PUBC: drain()
        bar("B8")
        for k in range(4): u_rd(0, k)()
        S.prologue(E2)
    if PUBC == -1:
        for t in range(4): C(pst(t))
    if PUBC > 0:
        for t in range(4): S.fill[2*(E2 + PUBC + oi("pubd", 0)*t)].append(I(pst(t)))
    if "p" in SA: S.before[E2 + oi("pbar", 42)].insert(0, I("s_waitcnt vmcnt(0)"))
    elif PUBC: S.fill[2*(E2 + oi("flgc", 34))].append(I(f"s_waitcnt vmcnt(0)\ns_mov_b64 exec, 15\nbuffer_store_dword v{V1}, v1, s[{SWS}:{SWS+3}], s67 offen sc1\ns_mov_b64 exec, -1"))
    S.run(E2, len(S.e), len(S.e))
    assert not S.fill and not S.before, (dict(S.fill), dict(S.before))
cstamp("T")
C("s_nop 6")
OWNP = LOC["U7"][0]
C(f"v_add_u32 v1, s70, v{LW[OWNP // 65536]}")
for nt in range(2): ds(f"ds_write_b128 v1, {v(OA+56+4*nt,4)} offset:{OWNP % 65536 + nt*1024}")
ZE = oi("ze", 0)
if ZE == 1: drain(); bar("Z")
for p in range(7):
    if p not in sent: flag(p)
cstamp("fl")
if ZE != 1: drain(); bar("Z")
assert free["U7"] <= len(bars) - 2
if STAMP:
    C("s_cmp_lg_u32 s3, 0\ns_cbranch_scc1 L_end")
    C(f"s_lshl_b32 s13, s2, 9\ns_add_u32 s13, s13, {hex(WS_STAMP + 48*8)}")
    for i in range(len(cst)):
        C(f"s_waitcnt lgkmcnt(0)\nv_mov_b32 v2, s{CREG[i]}\nv_mov_b32 v3, s{CREG[i]}\nbuffer_store_dwordx2 v[2:3], v{VZ}, s[{SWS}:{SWS+3}], s13 offen offset:{8*i}")
C("L_end:"); C("s_endpgm")
if PADS: C(f"L_pad{npad[0]}:"); C("s_branch L_back")
for k in ("K0", "K1"): first[k], free[k] = first["K"], free["K"]
del first["K"], free["K"], first["P0"]
free["X7"] = 999

A = Asm()
lst = []
def stamp(name):
    if opts.get("amp") == name: A("s_memrealtime s[98:99]")
    if STAMP and (SSET is None or ("L" + name) in SSET):
        if name not in lst: lst.append(name)
        i = lst.index(name) + 1; i += (i >= 30); assert i < 48
        A(f"s_memtime s[98:99]\ns_memrealtime s[96:97]\ns_waitcnt lgkmcnt(0)\nv_writelane_b32 v254, s98, {i}\nv_writelane_b32 v255, s96, {i}")
if "noal" not in opts: A(".p2align 12")
A(".p2align 8"); A(f"{KN}:")
if "amp" in opts: A("s_memrealtime s[96:97]")
A(f"s_load_dwordx2 s[{SX}:{SX+1}], s[0:1], 0\ns_load_dwordx2 s[{SWQ}:{SWQ+1}], s[0:1], 24\ns_load_dwordx16 s[16:31], s[0:1], 0")
A("s_cmp_ge_u32 s2, 256\ns_cbranch_scc1 L_end")
if STAMP: A("s_memtime s[94:95]\ns_memrealtime s[92:93]")
A(f"""v_readfirstlane_b32 s3, v0
s_and_b32 s4, s2, 7
s_bfe_u32 s8, s2, 0x20003
s_lshr_b32 s11, s2, 5
""")
if "late0" in opts: A(f"s_cmp_lg_u32 s4, 0\ns_cbranch_scc1 L_nl\ns_waitcnt lgkmcnt(0)\ns_sleep {opts['late0']}"); A("L_nl:")
A("""s_bitcmp1_b32 s3, 8
s_cbranch_scc1 L_loader""")
NPF = oi("npf", 22)
A("s_lshr_b32 s3, s3, 6\nv_and_b32 v0, 63, v0\ns_getpc_b64 s[6:7]")
A("L_pc:")
A(f"s_lshl_b32 s13, s8, 2\ns_add_u32 s13, s13, s3\ns_mul_i32 s13, s13, {NPF}*64")
A(f"v_min_u32 v1, {NPF-1}, v0\nv_lshlrev_b32 v1, 6, v1\nv_add_u32 v1, s13, v1")
A(f"v_min_u32 v1, L_codeend-L_pc-4, v1")
A("global_load_dword v130, v1, s[6:7]")
A(f"{JN}\ns_and_b32 s9, s9, 3\ns_branch L_compute")
A("L_loader:")
if "lprio" in opts: A(f"s_setprio {opts['lprio']}")
srd_consts(A, [SX, SWQ])
ROT = {"8": "s_lshl_b32 s12, s8, 1\ns_add_u32 s12, s12, s11", "8h": "s_lshl_b32 s12, s8, 1\ns_add_u32 s12, s12, s11\ns_add_u32 s12, s12, s4",
       "4": "s_add_u32 s12, s8, s11\ns_lshl_b32 s12, s12, 1", "4h": "s_add_u32 s12, s8, s11\ns_lshl_b32 s12, s12, 1\ns_add_u32 s12, s12, s4",
       "w8": "s_add_u32 s12, s4, s11", "w8x2": "s_lshl_b32 s12, s8, 2\ns_add_u32 s12, s12, s11\ns_add_u32 s12, s12, s4",
       "w4": "s_lshl1_add_u32 s12, s11, s4", "w2": "s_lshl2_add_u32 s12, s11, s4", "w1": "s_mov_b32 s12, s4", "w4x2": "s_lshl1_add_u32 s12, s8, s11\ns_lshl1_add_u32 s12, s12, s4",
       "2": "s_add_u32 s12, s8, s11\ns_lshl_b32 s12, s12, 2", "2h": "s_add_u32 s12, s8, s11\ns_lshl2_add_u32 s12, s12, s4"}[opts.get("rot", "2h")]
ROT0 = {"": "", "w4x2": "s_lshl1_add_u32 s13, s8, s11\ns_lshl_b32 s13, s13, 1\ns_cmp_eq_u32 s4, 0\ns_cselect_b32 s12, s13, s12",
        "w4": "s_lshl_b32 s13, s11, 1\ns_cmp_eq_u32 s4, 0\ns_cselect_b32 s12, s13, s12",
        "w8x2": "s_lshl2_add_u32 s13, s8, s11\ns_cmp_eq_u32 s4, 0\ns_cselect_b32 s12, s13, s12",
        "8": "s_lshl1_add_u32 s13, s8, s11\ns_cmp_eq_u32 s4, 0\ns_cselect_b32 s12, s13, s12"}[opts.get("rot0", "w4")]
A(f"""v_bfe_u32 v6, v0, 4, 4
v_bfe_u32 v1, v0, 3, 5
v_xor_b32 v2, v6, v0
v_and_b32 v2, 7, v2
v_lshlrev_b32 v2, 4, v2
v_lshl_add_u32 v8, v1, 10, v2
v_bfe_u32 v5, v0, 7, 1
v_lshlrev_b32 v5, 2, v5
v_xor_b32 v5, v5, v6
v_lshlrev_b32 v5, 1, v5
v_xor_b32 v5, v5, v0
v_and_b32 v5, 15, v5
v_lshlrev_b32 v5, 4, v5
v_lshl_add_u32 v9, v6, 13, v5
s_xor_b32 s74, s4, 7
s_lshl_b32 s13, s74, 14
s_and_b32 s14, s13, 0x4000
v_xor_b32 v8, s14, v8
s_xor_b32 s13, s13, s14
s_lshl_b32 s64, s11, 17
s_add_u32 s64, s64, s13
s_lshl2_add_u32 s10, s4, s8
s_lshl_b32 s65, s10, 8
{ROT}
{ROT0}
s_bfe_u32 s3, s3, 0x20006
s_lshl_b32 s67, s3, 10""")
KWAIT = [True]
if STAMP: A("s_waitcnt lgkmcnt(0)\nv_mov_b32 v254, -1\nv_mov_b32 v255, -1\nv_writelane_b32 v254, s94, 0\nv_writelane_b32 v255, s92, 0\ns_getreg_b32 s92, hwreg(HW_REG_XCC_ID)\ns_and_b32 s92, s92, 7\nv_writelane_b32 v254, s92, 30")
stamp("go")
def late_setup():
    srd_consts(A, [SK, SV, SWO, SOUT, SDBG, SWS]); srd_ptrs(A, [SK, SV, SWO, SOUT, SDBG, SWS])
    A(f"""v_lshl_add_u32 v11, v1, 8, v2
v_and_b32 v0, 63, v0
v_and_b32 v3, 7, v0
v_and_b32 v4, 15, v0
s_lshr_b32 s5, s2, 3
{JN}
s_and_b32 s9, s9, 3
s_lshl_b32 s13, s11, {FSH+5}
s_lshl_b32 s14, s4, {FSH}
s_add_u32 s13, s13, s14
s_add_u32 s79, s13, {WS_FLAG}
s_lshl_b32 s14, s9, {FSH+3}
s_add_u32 s77, s79, s14
v_mov_b32 v17, 0
v_lshl_add_u32 v12, v6, 10, v5
v_xor_b32 v5, v6, v4
v_lshlrev_b32 v5, 4, v5
v_lshl_add_u32 v10, v6, 8, v5
v_lshlrev_b32 v13, 4, v0
s_lshl_b32 s69, s11, 20
s_lshr_b32 s13, s74, 2
s_lshl_b32 s13, s13, 19
s_add_u32 s69, s69, s13
s_lshl_b32 s13, s10, 14
s_add_u32 s66, s69, s13
s_lshl_b32 s13, s4, 16
s_add_u32 s69, s69, s13
s_lshl_b32 s70, s4, 19
s_lshl_b32 s13, s9, 8
s_add_u32 s70, s70, s13
s_bfe_u32 s71, s11, {hex(0x10000 | oi('flipbit', 2))}
s_lshl_b32 s72, s11, 3
s_add_u32 s72, s72, s4
s_lshl_b32 s73, s72, 16
s_add_u32 s73, s73, {WS_P}
s_lshl_b32 s13, s3, 12
v_add_u32 v14, s13, v13
s_lshl_b32 s14, s8, 4
s_add_u32 s79, s79, s14
s_lshl_b32 s14, s3, 2
s_add_u32 s79, s79, s14
v_lshlrev_b32 v7, {FSH+3}, v0
v_mov_b32 v15, -1
v_lshlrev_b32 v19, 2, v3
s_lshl_b32 s13, s11, 5
v_add_u32 v19, s13, v19
s_mov_b32 s76, 0""")
def load_ops(it):
    k, a = it[0], LOC[it][0]; i = int(it[1])
    def dma(vo, srd, soff, lds, fl=""):
        if it in opts.get("nt", "").split(",") or it[0] in opts.get("nt", "").split(","): fl += " nt"
        return f"s_add_u32 m0, s67, {lds}\n{soff}\nbuffer_load_dwordx4 v{vo}, s[{srd}:{srd+3}], s68 offen {fl} lds"
    if "dry" in opts and not (k in "XW" and i < 4) and k != "K": return "", []
    if k == "X":
        return (f"s_add_u32 s13, s12, {i}\ns_and_b32 s13, s13, 7\ns_lshl_b32 s14, s13, 7\ns_add_u32 s14, s14, s64",
                [dma(8, SX, f"s_xor_b32 s68, s14, {hex(qq*0x8000)}", a + qq*4096) for qq in range(4)])
    if k == "W":
        return (f"s_add_u32 s13, s12, {i}\ns_and_b32 s13, s13, 7\ns_lshl_b32 s15, s13, 19\ns_add_u32 s15, s15, s65",
                [dma(9, SWQ, f"s_add_u32 s68, s15, {qq*16*8192}", a + qq*4096, "nt" if "wnt" in opts and i == 0 else "") for qq in range(4)])
    if k == "K":
        return ("", [dma(10, SK, f"s_xor_b32 s68, s66, {hex(qq*4096 + i*0x80000)}", a + qq*4096, NTK) for qq in range(4)])
    hd = f"s_add_u32 s13, s8, {i>>1}\ns_and_b32 s13, s13, 3\ns_xor_b32 s75, s71, {i&1}\n"
    if k == "V":
        return (hd + "s_lshl_b32 s13, s13, 14\ns_lshl_b32 s75, s75, 7\ns_add_u32 s14, s13, s75\ns_add_u32 s14, s14, s69",
                [dma(11, SV, f"s_xor_b32 s68, s14, {hex((qq&1)*8192 + (qq>>1)*0x80000)}", a + qq*4096) for qq in range(4)])
    if k == "U":
        return (hd + "s_lshl_b32 s13, s13, 17\ns_lshl_b32 s75, s75, 16\ns_add_u32 s15, s13, s75\ns_add_u32 s15, s15, s70",
                [dma(12, SWO, f"s_add_u32 s68, s15, {qq*16*1024}", a + qq*4096) for qq in range(4)])
    return (f"s_add_u32 s13, s8, {i}\ns_and_b32 s13, s13, 3\ns_lshl_b32 s13, s13, 14\ns_add_u32 s15, s13, s73\ns_add_u32 s15, s15, s67",
            [dma(13, SWS, f"s_add_u32 s68, s15, {'abcd'.index(it[2])*16384//NPQ + qq*4096}", a + qq*4096, "sc1") for qq in range(4//NPQ)])
lbl = [0]
class Loader:
    def __init__(s_): s_.n = 0; s_.last = {}; s_.cur = -1; s_.occ = []; s_.done = set(); s_.landed = -2
    def copy(s_):
        o = Loader(); o.__dict__.update({k: (x.copy() if hasattr(x, "copy") else x) for k, x in s_.__dict__.items()}); return o
    def wait(s_, names, note=True):
        hi = max(s_.last[i] for i in names)
        if note and hi <= s_.landed: return
        A(f"s_waitcnt vmcnt({min(s_.n - 1 - hi, 63)})")
        if note: s_.landed = hi
    def claim(s_, x):
        lo, hi = LOC[x][0], LOC[x][0] + LOC[x][1]
        for (a_, b_, it) in s_.occ:
            if a_ < hi and lo < b_: assert free[it] <= s_.cur, f"WAR: {x} after {bars[s_.cur]} but {it} free at {free[it]}"
        s_.occ = [o for o in s_.occ if not (o[0] >= lo and o[1] <= hi)] + [(lo, hi, x)]
        if x[0] == "P": assert "pw" in s_.done
    def step(s_, x):
        s_.done.add(x)
        if x not in bars: A.c(x)
        if x == "setup": late_setup()
        elif x in bars:
            s_.cur += 1; assert bars[s_.cur] == x, (x, bars[s_.cur])
            nd = [i for i, f in first.items() if f == s_.cur]
            if nd: s_.wait(nd)
            A(f"s_barrier                ; {x}"); stamp(x)
        elif x == "clr":
            assert "setup" in s_.done
            lbl[0] += 1; s_.last["clr"] = s_.n - 1
            A(f"s_cmp_lg_u32 s3, 0\ns_cbranch_scc1 L_k{lbl[0]}")
            if FSH == 8: A(f"v_lshlrev_b32 v1, 2, v0\nbuffer_store_dword v17, v1, s[{SWS}:{SWS+3}], s77 offen sc1")
            else:
                assert FSH == 10
                A(f"v_lshlrev_b32 v1, 4, v0\nv_mov_b32 v28, 0\nv_mov_b32 v29, 0\nv_mov_b32 v30, 0\nv_mov_b32 v31, 0\nbuffer_store_dwordx4 v[28:31], v1, s[{SWS}:{SWS+3}], s77 offen sc1")
            A(f"L_k{lbl[0]}:")
        elif x.startswith("pf"):
            lo = int(x[2:] or 0)
            A(f"s_sub_u32 s13, s77, {WS_FLAG}\ns_lshl_b32 s13, s13, 7\ns_lshl_b32 s14, s3, 13\ns_add_u32 s13, s13, s14\ns_add_u32 s14, s13, {WS_PART}\ns_add_u32 s15, s14, 4096")
            A("v_mov_b32 v24, -1\nv_mov_b32 v25, -1\nv_mov_b32 v26, -1\nv_mov_b32 v27, -1\nv_lshlrev_b32 v13, 4, v0")
            for p in range(lo, 7):
                A(f"buffer_store_dwordx4 v[24:27], v13, s[{SWS}:{SWS+3}], {'s14' if p < 4 else 's15'} offen offset:{(p&3)*1024} sc1"); s_.n += 1
            s_.last["pf"] = s_.n - 1
        elif x == "atm":
            lbl[0] += 1
            A(f"s_cmp_lg_u32 s3, 0\ns_cbranch_scc1 L_k{lbl[0]}"); s_.wait(["clr"], False)
            if "d" in SA: A("s_lshl_b32 s13, s72, 2\ns_mov_b32 s97, 1\ns_atomic_add s97, s[28:29], s13")
            else: A(f"s_lshl_b32 s13, s72, 2\nv_mov_b32 v2, 1\ns_mov_b64 exec, 1\nbuffer_atomic_add v2, v17, s[{SDBG}:{SDBG+3}], s13 offen\ns_mov_b64 exec, -1")
            A(f"L_k{lbl[0]}:")
        elif x[0] == "k" and x[1:].isdigit():
            for c in x[1:]:
                it = f"K{int(c) >> 2}"
                if not any(o[2] == it for o in s_.occ): s_.claim(it)
                A(load_ops(it)[1][int(c) & 3]); s_.last[it] = s_.n; s_.n += 1
        elif x == "ci" and opts.get("amp") == "skew" and "sk" not in s_.done:
            s_.done.add("sk")
            A(f"s_lshl_b32 s13, s2, 7\ns_add_u32 s13, s13, 0x40000\nv_mov_b32 v23, s96\nbuffer_store_dword v23, v17, s[{SWS}:{SWS+3}], s13 offen sc1"); s_.n += 1
            s_.step("ci")
        elif x == "ci":
            A(f"buffer_load_dword v20, v19, s[{SDBG}:{SDBG+3}], 0 offen sc1"); s_.last["ci"] = s_.n; s_.n += 1
        elif x == "cw":
            assert s_.cur < bars.index("B10" if oi("flgc", 34) >= 42 else "B9")
            lbl[0] += 1; k = lbl[0]; s_.wait(["ci"])
            A(f"v_cmp_gt_u32 vcc, 4, v20\ns_cbranch_vccz L_lr{k}"); A(f"L_ll{k}:")
            A(f"s_sleep 8\nbuffer_load_dword v20, v19, s[{SDBG}:{SDBG+3}], 0 offen sc1\ns_add_u32 s76, s76, 1\ns_waitcnt vmcnt(0)\ns_cmp_ge_u32 s76, {SPIN}\ns_cbranch_scc1 L_lr{k}\nv_cmp_gt_u32 vcc, 4, v20\ns_cbranch_vccnz L_ll{k}")
            A(f"L_lr{k}:")
        elif x == "pr":
            assert s_.cur >= bars.index("B9" if EARLY8 else "B8")
            for t in range(4): A(f"ds_read_b128 {v(32+4*t,4)}, v14 offset:{LOC['P0'][0] + t*1024}")
        elif x == "pub":
            assert "pr" in s_.done
            A(f"s_lshl_b32 s13, s8, 14\ns_add_u32 s68, s13, s73\ns_waitcnt lgkmcnt(0)")
            for t in range(4): A(f"buffer_store_dwordx4 {v(32+4*t,4)}, v14, s[{SWS}:{SWS+3}], s68 offen offset:{t*1024} sc1")
            s_.n += 4; s_.last["pub"] = s_.n - 1
        elif x == "flg":
            assert "cw" in s_.done; s_.wait(["pub"])
            A(f"s_mov_b64 exec, 15\nbuffer_store_dword v15, v7, s[{SWS}:{SWS+3}], s79 offen offset:128 sc1\ns_mov_b64 exec, -1"); s_.n += 1; stamp(x)
        elif x == "ps":
            assert "cw" in s_.done and bars[s_.cur] == {42: "B10", 58: "B11"}[oi("pbar", 42)]
            A(f"s_andn2_b32 s13, s79, 0x7f\ns_lshl_b32 s14, s3, {FSH+3}\ns_add_u32 s13, s13, s14\ns_add_u32 s13, s13, 128\ns_mov_b32 s97, 1\ns_atomic_add s97, s[30:31], s13")
        elif x == "pi" and "p" in SA: A("s_add_u32 s78, s77, 128\ns_load_dword s80, s[30:31], s78 glc")
        elif x == "pw" and "p" in SA:
            assert "ps" in s_.done; lbl[0] += 1; k = lbl[0]
            A(f"s_waitcnt lgkmcnt(0)\ns_cmp_ge_u32 s80, 4\ns_cbranch_scc1 L_lr{k}"); A(f"L_ll{k}:")
            A(f"s_load_dword s80, s[30:31], s78 glc\ns_add_u32 s76, s76, 1\ns_waitcnt lgkmcnt(0)\ns_cmp_ge_u32 s76, {SPIN}\ns_cbranch_scc1 L_lr{k}\ns_cmp_lt_u32 s80, 4\ns_cbranch_scc1 L_ll{k}")
            A(f"L_lr{k}:"); stamp(x)
        elif x == "pi": A(f"s_add_u32 s78, s77, 128\ns_load_dwordx16 s[80:95], s[30:31], s78 glc")
        elif x == "pw":
            assert PUBC or "flg" in s_.done; lbl[0] += 1; k = lbl[0]
            red = "".join(f"s_and_b64 s[80:81], s[80:81], s[{i}:{i+1}]\n" for i in range(82, 96, 2)) + "s_and_b32 s80, s80, s81\n"
            A(f"s_waitcnt lgkmcnt(0)\n{red}s_cbranch_scc1 L_lr{k}"); A(f"L_ll{k}:")
            A(f"s_load_dwordx16 s[80:95], s[30:31], s78 glc\ns_add_u32 s76, s76, 1\ns_waitcnt lgkmcnt(0)\ns_cmp_ge_u32 s76, {SPIN}\ns_cbranch_scc1 L_lr{k}\n{red}s_cbranch_scc0 L_ll{k}")
            A(f"L_lr{k}:"); stamp(x)
        else:
            its = [f"X{x[1:]}", f"W{x[1:]}"] if x[0] == "S" and int(x[1:]) < 8 else [f"V{int(x[1:])-8}", f"U{int(x[1:])-8}"] if x[0] == "S" else [x]
            ops = []
            for it in its: s_.claim(it); st, o = load_ops(it); A(st); ops.append(o)
            if KWAIT[0]: ops[0][0] = ops[0][0].replace("buffer_load", "s_waitcnt lgkmcnt(0)\nbuffer_load"); KWAIT[0] = False
            if "seq" in opts and its[0][0] == "X":
                for o in ops:
                    for z in o: A(z); s_.n += 1
            else:
                for k in range(4):
                    for it, o in zip(its, ops):
                        if k < len(o): A(o[k]); s_.n += 1
            for it in its: s_.last[it] = s_.n - 1
    def sigof(s_): return (s_.cur, tuple(sorted((i, min(s_.n - k, 64)) for i, k in s_.last.items() if (first.get(i, -1) > s_.cur and k > s_.landed) or (i == "ci" and "cw" not in s_.done) or (i == "pub" and "flg" not in s_.done) or (i == "clr" and "atm" not in s_.done))), tuple(sorted(s_.occ)), tuple(sorted(x for x in s_.done if x[0].islower() and x[0] != 'k')))

DEF = ("S0 setup S1 clr B0 S2 B1 0:atm 0:K0 S3 B2 1:atm 1:K0 S4 B3 0:K1 S5 B4 1:K1 S6 B5 S7 B6 S8 B7 S9 BK ci U2 B8 cw B9 V2 S11 B10 S12 B11 S13 B12 S14 B13 pi S15 B14 pw "
       "P1a P2a P3a B15 P1b P2b P3b Pa Pb")
sched = opts.get("sched", DEF).replace("_", " ").split()
if PUBC: sched = [x for x in sched if x not in ("pr", "pub", "flg")]
if "p" in SA and "ps" not in sched: sched.insert(sched.index({42: "B10", 58: "B11"}[oi("pbar", 42)]) + 1, "ps")
NG = len({x.split(":")[0] for x in sched if ":" in x})
L0 = Loader()
k0 = min([i for i, x in enumerate(sched) if ":" in x] + [len(sched)])
for i in range(k0): L0.step(sched[i])
k1 = max([i for i, x in enumerate(sched) if ":" in x] + [k0 - 1]) + 1
def rung(gi, hi):
    Lg = L0.copy()
    for x in sched[k0:hi]:
        if ":" not in x or int(x.split(":")[0]) == gi: Lg.step(x.split(":")[-1])
    return Lg
Lg = L0
if NG:
    pb = oi("parbit", 4)
    A({2: f"s_bfe_u32 s78, s5, {hex(0x10000 | pb)}", 4: f"s_bfe_u32 s78, s5, {hex(0x20000 | pb)}", 3: "s_mul_i32 s78, s5, 3\ns_lshr_b32 s78, s78, 5"}[NG])
    if "x0" in opts:
        assert NG == 4
        A(f"s_bfe_u32 s78, s5, {hex(0x10000 | pb)}\ns_cmp_eq_u32 s4, 0\ns_cselect_b32 s13, 2, 0\ns_add_u32 s78, s78, s13")
    while True:
        sa, sl = len(A.lines), lbl[0]
        sg = {rung(gi, k1).sigof() for gi in range(NG)}
        del A.lines[sa:]; lbl[0] = sl
        if len(sg) == 1: break
        k1 += 1; assert k1 <= len(sched)
    for gi in range(NG):
        if gi: A(f"L_g{gi}:")
        if gi < NG - 1: A(f"s_cmp_lg_u32 s78, {gi}\ns_cbranch_scc1 L_g{gi+1}")
        Lg = rung(gi, k1)
        if gi < NG - 1: A("s_branch L_merge")
        if gi == 0 and PADS: A("L_hole0:"); A("s_branch L_holem")
        if gi == NG - 1 and PADS: A("s_branch L_merge"); A("L_holem:"); A("s_branch L_hole1")
    A("L_merge:")
    for x in sched[k1:]: Lg.step(x)
assert Lg.cur == len(bars) - 2 - len(EF)
if PADS and not NG: HOLE0 = True
for gi in range(max(NG, 1)):
    kp = ''.join(x.split(':')[-1][1:] for x in sched if x.split(':')[-1][0] == 'k' and (':' not in x or int(x.split(':')[0]) == gi))
    assert not kp or sorted(kp) == sorted('01234567'), kp
if "show" in opts:
    for it in first: print(it, "first", bars[first[it]], "free", bars[free[it]] if free.get(it, 999) < 999 else None)
A(f"""s_lshl_b32 s13, s11, 2
s_add_u32 s13, s13, s9
s_lshl_b32 s13, s13, 3
s_add_u32 s13, s13, s4
s_lshl_b32 s14, s13, 2
s_add_u32 s14, s14, s3
s_lshl_b32 s14, s14, 13
s_add_u32 s14, s14, {WS_PART}
s_add_u32 s15, s14, 4096
s_lshl_b32 s75, s3, {WSH}
s_add_u32 s13, s77, s75
s_lshl_b32 s75, s3, 6
s_lshl_b32 s77, s9, 8
s_add_u32 s75, s75, s77
s_lshl_b32 s76, s72, 4
v_add_u32 v1, s76, v4
v_lshlrev_b32 v1, 10, v1
v_bfe_u32 v2, v0, 4, 1
v_lshl_add_u32 v1, v2, 5, v1
v_lshrrev_b32 v2, 5, v0
v_lshl_add_u32 v1, v2, 4, v1
v_add_u32 v1, s75, v1
v_add_u32 v14, {OWNP}, v14
v_and_b32 v22, 7, v0
v_lshlrev_b32 v22, 2, v22
s_mov_b32 s77, 0xffff0000
s_mov_b32 s76, 0""")
def acc(p):
    for d in range(4):
        r = 64 + 4*p + d
        if p == 0: A(f"v_lshlrev_b32 v{48+2*d}, 16, v{r}\nv_and_b32 v{49+2*d}, s77, v{r}")
        else: A(f"v_lshlrev_b32 v2, 16, v{r}\nv_and_b32 v3, s77, v{r}\nv_pk_add_f32 v[{48+2*d}:{49+2*d}], v[{48+2*d}:{49+2*d}], v[2:3]")
FP = oi("fp", 0); PS = oi("ps", 0)
ZB = "s_barrier\nds_read_b128 v[40:43], v14\nds_read_b128 v[44:47], v14 offset:1024"
TP = oi("tp", 3); ntp = [0]
def tpad():
    if TP: A(f"L_tp{ntp[0]}:"); ntp[0] += 1; A(f"s_cbranch_vccnz L_tp{ntp[0]}")
if TP: A("s_mov_b64 vcc, -1\ns_branch L_tp0"); A("L_tb:"); A("s_mov_b64 vcc, 0")
done_ = 0
for k, (at, cnt) in enumerate(EF):
    A(f"s_barrier                ; F{k}")
    for p in range(done_, cnt): A(f"s_xor_b32 s75, s13, {(7-p) << FSH}\ns_add_u32 s75, s75, {4*p}\ns_atomic_add s97, s[30:31], s75")
    done_ = cnt
ZAT = oi("zat", 0)
if ZE and not ZAT: A(ZB)
if oi("ps0", 0): A(f"s_sleep {oi('ps0', 0)}")
if FP:
    for i in range(8): A(f"s_mov_b32 s{80+i}, 0")
for p in range(7):
    if "dg3" in opts or "dg4" in opts: A(f"s_branch L_fd{p}")
    if p > 0: A((f"s_bitcmp1_b32 vcc_lo, {p}" if "vp" in opts else f"s_cmp_lg_u32 s{80+p}, 0") + f"\ns_cbranch_scc1 L_fd{p}")
    A(f"L_fw{p}:")
    if FP and p >= oi("fpfrom", 4):
        A(f"s_load_dwordx8 s[80:87], s[30:31], s13 glc\ns_add_u32 s76, s76, 1\ns_cmp_ge_u32 s76, {SPIN}\ns_sleep {FP}\ns_waitcnt lgkmcnt(12)\ns_cbranch_scc1 L_fd{p}")
    elif "vp" in opts:
        A(f"buffer_load_dword v21, v22, s[{SWS}:{SWS+3}], s13 offen sc1\ns_add_u32 s76, s76, 1\ns_waitcnt vmcnt(0)\nv_cmp_ne_u32 vcc, 0, v21\ns_cmp_ge_u32 s76, {SPIN}\ns_cbranch_scc1 L_fd{p}")
    else:
        if PS: A(f"s_sleep {PS}")
        A(f"s_load_dwordx8 s[80:87], s[30:31], s13 glc\ns_add_u32 s76, s76, 1\ns_cmp_ge_u32 s76, {SPIN}\ns_waitcnt lgkmcnt(0)\ns_cbranch_scc1 L_fd{p}")
    A((f"s_bitcmp0_b32 vcc_lo, {p}" if "vp" in opts else f"s_cmp_eq_u32 s{80+p}, 0") + f"\ns_cbranch_scc1 L_fw{p}")
    A(f"L_fd{p}:")
    if not ("dg1" in opts and p < 6) and "dg4" not in opts: A(f"buffer_load_dwordx4 {v(64+4*p,4)}, v13, s[{SWS}:{SWS+3}], {'s14' if p < 4 else 's15'} offen offset:{(p&3)*1024} sc1 {'nt' if 'fnt' in opts else ''}")
    stamp(f"f{p}")
    if ZE and ZAT and p == ZAT - 1: A(ZB)
    if p in (2, 6): tpad()
if not ZE: A(ZB)
for p in range(6):
    A(f"s_waitcnt vmcnt({6-p})"); acc(p)
    if p % TP == TP - 1 if TP else False: tpad()
A("s_waitcnt lgkmcnt(0)")
for d in range(4): A(f"v_pk_add_f32 v[{48+2*d}:{49+2*d}], v[{48+2*d}:{49+2*d}], v[{40+2*d}:{41+2*d}]")
A("s_waitcnt vmcnt(0)"); acc(6)
for d in range(4): A(f"v_cvt_pk_bf16_f32 v{56+d}, v{48+2*d}, v{49+2*d}")
A("s_nop 1\nv_permlane16_swap_b32 v56, v58\nv_permlane16_swap_b32 v57, v59")
A(f"buffer_store_dwordx4 v[56:59], v1, s[{SOUT}:{SOUT+3}], 0 offen {opts.get('outf', 'sc1').replace('+', ' ')}")
if "amp" in opts:
    if opts["amp"] == "end": A("s_waitcnt vmcnt(0)\ns_memrealtime s[98:99]")
    if opts["amp"] == "none": A("s_mov_b32 s98, s96")
    if opts["amp"] == "xcc": A("s_getreg_b32 s13, hwreg(HW_REG_XCC_ID)\ns_and_b32 s13, s13, 7\ns_mul_i32 s13, s13, 125\ns_add_u32 s98, s96, s13")
    if opts["amp"] == "skew":
        A(f"s_load_dword s98, s[30:31], {hex(0x40000 + 128*oi('ampref', 0))} glc\ns_waitcnt lgkmcnt(0)\ns_sub_u32 s98, s96, s98\ns_add_u32 s98, s98, 200\ns_add_u32 s98, s98, s96")
    A(f"s_cmp_lg_u32 s2, {oi('ampwg', 77)}\ns_cbranch_scc1 L_end\ns_waitcnt lgkmcnt(0)\ns_sub_u32 s13, s98, s96\ns_min_u32 s13, s13, 3000\ns_lshl_b32 s13, s13, 3\ns_add_u32 s13, s13, 4000\ns_add_u32 s13, s13, s96\ns_mov_b32 s15, 0")
    A("L_amp:")
    A("s_memrealtime s[98:99]\ns_waitcnt lgkmcnt(0)\ns_add_u32 s15, s15, 1\ns_cmp_gt_u32 s15, 30000\ns_cbranch_scc1 L_end\ns_sub_u32 s14, s98, s13\ns_cmp_lt_i32 s14, 0\ns_cbranch_scc1 L_amp")
if STAMP:
    A("s_waitcnt vmcnt(0)"); stamp("end")
    A("s_cmp_lg_u32 s3, 0\ns_cbranch_scc1 L_end")
    A(f"s_lshl_b32 s13, s2, 9\ns_add_u32 s13, s13, {hex(WS_STAMP)}\nv_lshlrev_b32 v253, 3, v0\nv_add_u32 v253, s13, v253")
    A(f"v_cmp_gt_u32 vcc, 48, v0\ns_nop 1\ns_mov_b64 exec, vcc")
    A(f"buffer_store_dwordx2 v[254:255], v253, s[{SWS}:{SWS+3}], 0 offen")
A("s_endpgm")
if TP: A(f"L_tp{ntp[0]}:"); A("s_branch L_tb")
if PADS and not NG: A("L_hole0:")
if PADS: A("L_hole1:"); A("s_branch L_pad0")

out = HEADER
out += "; @launch grid=(256,1,1) block=(512,1,1) lds=163840\n"
if STAMP:
    nm = {0: "t0"}
    for i, n_ in enumerate(lst): nm[i + 1 + (i + 1 >= 30)] = "L" + n_
    for i, n_ in enumerate(cst): nm[48 + i] = n_
    out += "; stampnames " + " ".join(f"{k}={x}" for k, x in nm.items()) + "\n"
out += """;
; One persistent launch, one workgroup per CU (generated by a script of mine; all code is hand-scheduled).
;   waves 4-7 stream tiles into LDS (LDS-DMA, XOR-swizzled images); waves 0-3 run 16x16x32 bf16 MFMAs.
;   2. P is handed to the 3 other heads' workgroups of the same (hg, bp) through d_ws.
;   3. out[:, jn] partial = sum over the 4 heads of P_h (V_h Wo_h[:, jn])   (same function, re-associated).
;   4. the 8 head groups reduce-scatter bf16 partials through d_ws; the owner adds them in fp32 and stores out.
; with the L1 bypassed, so they hold for any workgroup placement.  Flag words are cleared at the start of every
; launch and the clear is certified through counters in d_debug before anyone sets a flag.
"""
out += f'.amdgcn_target "amdgcn-amd-amdhsa--gfx950"\n.text\n.globl {KN}\n.type {KN},@function\n' + A.text() + C.text() + "L_codeend:\n"
out += '.section .rodata,"a"\n' + kd(KN, 256)
if "nopad" not in opts:
    import subprocess, re
    def addrs(text, lab='L_back'):
        open("_ap.s", "w").write(text)
        subprocess.run(["clang", "-x", "assembler", "-target", "amdgcn-amd-amdhsa", "-mcpu=gfx950", "-c", "_ap.s", "-o", "_ap.o"], check=True)
        d = subprocess.run(["llvm-objdump", "-d", "--mcpu=gfx950", "_ap.o"], capture_output=True, text=True).stdout
        d = d[d.index(f"<{lab}>:"):]
        return [int(m.group(1), 16) + oi("stub", 0x300) for m in re.finditer(r"// ([0-9A-F]{12}):", d)]
    if oi("lhole", 0):
        lines = out.split("\n"); i0 = lines.index("L_loader:"); i1 = lines.index("L_tb:") if TP else lines.index("L_fw0:")
        ins = [i for i in range(i0, i1) if lines[i].startswith("    ") and not lines[i].strip().startswith(";")]
        ad = addrs(out, "L_loader")
        cross = [j for j in range(1, len(ins)) if ad[j] // 4096 != ad[j-1] // 4096]
        assert len(cross) <= 1
        if cross:
            j = ins[cross[0]]
            ih = lines.index("L_hole1:"); lines[ih] = "L_hole2:"
            lines[j:j] = ["    s_branch L_hskip", "L_hole1:", "    s_branch L_hole2", "L_hskip:"]
            out = "\n".join(lines)
    k = 0
    while True:
        lines = out.split("\n"); i0 = lines.index("L_back:")
        ins = [i for i in range(i0, lines.index('L_end:')) if lines[i].startswith("    ") and not lines[i].strip().startswith(";")]
        ad = addrs(out)
        cross = [j for j in range(1, min(len(ad), len(ins))) if ad[j] // 4096 != ad[j-1] // 4096]
        if k >= len(cross): break
        j = ins[cross[k]]
        ie = lines.index(f"L_pad{k}:"); lines[ie] = f"L_pad{k+1}:"
        lines[j:j] = [f"L_pad{k}:", f"    s_cbranch_vccnz L_pad{k+1}"]
        out = "\n".join(lines); k += 1
open(sys.argv[1], "w").write(out)
```

```python
import sys, math, struct
from collections import defaultdict
from common import *
opts = dict(a.split("=") if "=" in a else (a, "1") for a in sys.argv[2:])
def oi(k, d): return int(opts.get(k, d))
STAMP = "stamp" in opts
NTK = "" if "nont" in opts else "nt"
MF = "v_mfma_f32_16x16x32_bf16"
KN = NAME + "_kernel"
WSB = int(opts.get('wsb', '0'), 0)
WS_P, WS_PART, WS_FLAG, WS_STAMP = WSB, WSB + 0x400000, WSB + 0xC00000, 0x9000000
SPIN = 1 << 18
K1 = 1024
SA = opts.get('sa', 'pf')
JN = {'1': 's_add_u32 s9, s8, s11', '2': 's_lshl1_add_u32 s9, s11, s8', '0': 's_mov_b32 s9, s8'}[opts.get('jn', '2')]
FSH = oi('fsh', 10); WSH = FSH - 2 if FSH > 8 else 5
SSET = set(opts["sset"].split(",")) if "sset" in opts else None

DEF = ("S0 setup S1 clr B0 S2 B1 0:atm 0:K0 S3 B2 1:atm 1:K0 S4 B3 0:K1 S5 B4 1:K1 S6 B5 S7 B6 V0 U0 B7 V1 U1 BK ci U2 B8 cw B9 V2 S11 B10 S12 B11 S13 B12 S14 B13 pi S15 B14 pw "
       "P1a P2a P3a B15 P1b P2b P3b Pa Pb")
U = lambda u: (u * 16 * K1, 16 * K1)
LOC = {}
def place(prefix, i0, units):
    for i, u in enumerate(units): LOC[f"{prefix}{i0+i}"] = U(u)
place("X", 0, [int(c) for c in opts.get("xu", "01230123")])
place("W", 0, [int(c) for c in opts.get("wu", "45674567")])
place("V", 0, [int(c) for c in opts.get("vu", "01289012")])
place("U", 0, [int(c) for c in opts.get("uu", "45674567")])
LOC["K0"], LOC["K1"] = U(8), U(9)
LOC["P0"] = LOC["X7"]
place("P", 1, [int(c) for c in opts.get("pu", "894")])
FIN = LOC["P0"][0]

C = Asm()
bars = []; first, free = {}, {}
q = []; pend = set(); dsn = [0]
def _ret(n):
    while len(q) > n:
        it = q.pop(0)[1]
        if it: pend.add(it)
def ds(ins, item=None):
    lim = 13 if STAMP else 15
    if len(q) >= lim: C(f"s_waitcnt lgkmcnt({lim-1})"); _ret(lim - 1)
    C(ins); dsn[0] += 1; q.append((dsn[0], item))
    if item:
        if item not in first: first[item] = len(bars) - 1
        free.pop(item, None)
    return dsn[0]
def need(*ids):
    pos = [k for k, (i, _) in enumerate(q) if i in ids]
    if pos:
        n = len(q) - 1 - max(pos); C(f"s_waitcnt lgkmcnt({n})"); _ret(n)
def drain():
    if q: C("s_waitcnt lgkmcnt(0)"); _ret(0)
def bar(name):
    if opts.get("diagslp") == name: C("s_sleep 5")
    bars.append(name); C(f"s_barrier                ; {name}"); cstamp(name)
    live = {it for _, it in q}
    for it in list(pend):
        if it not in live: free[it] = len(bars) - 1; pend.discard(it)
cst = []; CREG = list(range(32, 56, 2)) + [60, 62, 92, 94]
def cstamp(name):
    if STAMP and SSET is not None and name in SSET:
        i = len(cst); cst.append(name); assert i < 16
        if len(q) > 12: C("s_waitcnt lgkmcnt(12)"); _ret(12)
        C(f"s_mem{'real' if 'rt' in opts else ''}time s[{CREG[i]}:{CREG[i]+1}]")
I = lambda x: (lambda: C(x))
npad = [0]
PADS = [int(x) for x in opts.get("pads", "").split(",") if x] or ([-1] if "nopad" not in opts else [])
def pad():
    C(f"L_pad{npad[0]}:"); npad[0] += 1; C(f"s_cbranch_vccnz L_pad{npad[0]}")

VX, VW, LIN0, VOWN = 4, 8, 16, 17
TM = 18
ACC, BR0, PR, VWS = 24, 88, 112, 128
BR = [BR0 + 4*i for i in range(6)]
QB, SC, PB, VK = VWS + 96, VWS + 64, VWS + 48, VWS + 32
C("L_compute:")
C(f"s_setprio {oi('prio', 0)}")
srd_consts(C, [SWS])
C(f"""v_and_b32 v1, 15, v0
v_lshrrev_b32 v2, 4, v0
v_bfe_u32 v3, v0, 1, 3
v_xor_b32 v3, v3, v2
v_lshlrev_b32 v3, 4, v3
v_lshl_add_u32 v3, v1, 7, v3
s_lshl_b32 s70, s3, 12
v_add_u32 v{VX}, s70, v3
v_xor_b32 v{VX+1}, 64, v{VX}
v_add_u32 v{VX+2}, 0x20000, v3
v_xor_b32 v{VX+3}, 64, v{VX+2}
v_lshrrev_b32 v3, 1, v2
v_xor_b32 v3, v3, v1
v_lshlrev_b32 v3, 4, v3
v_lshl_add_u32 v3, v1, 8, v3
v_and_b32 v18, 1, v2
v_lshl_add_u32 v3, v18, 3, v3
s_lshr_b32 s13, s3, 1
s_lshl_b32 s13, s13, 14
s_add_u32 s13, s13, 0x20000
v_add_u32 v{VK}, s13, v3
v_lshlrev_b32 v{LIN0}, 4, v0
v_add_u32 v{VOWN}, s70, v{LIN0}
v_bfe_u32 v1, v0, 2, 2
v_and_b32 v3, 3, v0
v_lshlrev_b32 v3, 3, v3
v_lshl_add_u32 v19, v18, 2, v1
v_lshl_add_u32 v20, v2, 3, v1
v_lshlrev_b32 v20, 8, v20
v_lshl_add_u32 v20, v19, 5, v20
v_add_u32 v20, v20, v3
v_add_u32 v{VW}, 0x10000, v20""")
for i in range(1, 8): C(f"v_xor_b32 v{VW+i}, {i*32}, v{VW}\nv_xor_b32 v{VK+i}, {i*32}, v{VK}")
C(f"""s_lshl_b32 s13, s11, 2
s_add_u32 s13, s13, s9
s_lshl_b32 s13, s13, 3
s_add_u32 s13, s13, s4
s_lshl_b32 s65, s13, 15
s_lshl_b32 s14, s3, 13
s_add_u32 s65, s65, s14
s_lshl_b32 s66, s13, {FSH}
s_lshl_b32 s14, s3, {WSH}
s_add_u32 s66, s66, s14""")
for p in range(7):
    C(f"s_xor_b32 s13, s65, {(7-p) << 15}\ns_add_u32 s{80+p}, s13, {WS_PART + p*1024}")
    C(f"s_xor_b32 s13, s66, {(7-p) << FSH}\ns_add_u32 s{72+p}, s13, {WS_FLAG + p*4}")
C(f"""s_lshl_b32 s13, s11, 3
s_add_u32 s13, s13, s4
s_lshl_b32 s64, s13, 16
s_lshl_b32 s14, s8, 14
s_add_u32 s64, s64, s14
s_add_u32 s64, s64, {WS_P}
s_lshl_b32 s67, s11, {FSH+5}
s_lshl_b32 s14, s4, {FSH}
s_add_u32 s67, s67, s14
s_lshl_b32 s14, s8, 4
s_add_u32 s67, s67, s14
s_lshl_b32 s14, s3, 2
s_add_u32 s67, s67, s14
s_add_u32 s67, s67, {WS_FLAG + 128}""")
cs = struct.unpack("<I", struct.pack("<f", math.log2(math.e) / math.sqrt(128)))[0]
C(f"s_mov_b32 s68, {hex(cs)}\ns_mov_b32 s69, {hex(cs)}\ns_lshl_b32 s71, s3, 6\ns_mov_b32 s87, 1")
C("s_waitcnt lgkmcnt(0)")
srd_ptrs(C, [SWS])
if oi("pfm", 0) == 2: C("global_load_dword v130, v131, s[6:7]")
if PADS:
    C("s_waitcnt vmcnt(0)\ns_mov_b64 vcc, -1\ns_branch L_hole" + ("0" if ":" in opts.get("sched", DEF) else "1")); C("L_back:"); C("s_mov_b64 vcc, 0")

WP = oi('wp', 1)
BG = oi('bg', 1)
import os
BURN = int(os.environ.get('BURN', 0))
class Stream:
    def __init__(s_): s_.e = []; s_.fill = defaultdict(list); s_.before = defaultdict(list); s_.id = defaultdict(list); s_.hold = {}
    def rd(s_, m, k): s_.id[m].append(s_.e[m][0][k](BR[m % 6]))
    def prologue(s_, lo):
        for m in range(lo, lo + 6):
            for k in range(len(s_.e[m][0])): s_.rd(m, k)
    def run(s_, lo, hi, stop):
        for m in range(lo, hi):
            for f in s_.before.pop(m, []): f()
            cstamp(f'e{m}')
            if m in PADS: s_.fill[2*m].append(pad)
            assert len(s_.id[m]) == len(s_.e[m][0]), m
            for hh in range(2):
                a_, b_, d, fst, deps = s_.e[m][1][hh ^ (m & 1)]
                extra = s_.id[m+1] if (WP and m % 2 == 0 and m + 1 < hi and m > lo) else []
                need(*s_.id[m], *extra, *deps())
                R = v(BR[m % 6], 4)
                C(f"{MF} {v(d,4)}, {R if a_ is None else v(a_,4)}, {R if b_ is None else v(b_,4)}, {'0' if fst else v(d,4)}")
                if hh == 0 and m > lo and m + 5 < stop and len(s_.e[m+5][0]) == 2: s_.rd(m + 5, 1)
                if hh == 1 and m + 6 < stop: s_.rd(m + 6, 0)
                if BURN and m < 144 and (hh == 0 or m % 2 == 0) and not s_.fill.get(2*m + hh): C(f"v_mul_lo_u32 v2, v{BR[m % 6] + hh}, v{BR[m % 6] + 2 + hh}" if BURN > 1 else f"v_mul_f32 v2, v{BR[m % 6] + hh}, v{BR[m % 6] + 2 + hh}")
                for f in s_.fill.pop(2*m + hh, []): f()
S = Stream(); pid = {}
class Place:
    def __init__(s_): s_.req = []
    def slot(s_, lo, hi):
        l = []; s_.req.append((lo, hi, l)); return l
    def load(s_, g_):
        m, hh = divmod(g_, 2); n = len(S.fill.get(g_, []))
        if hh: n += (m + 6 < len(S.e) and not (m < 144 <= m + 6)) + (m % 2 == 1 or not WP) + len(S.before.get(m + 1, []))
        else: n += (m + 5 < len(S.e) and len(S.e[m+5][0]) == 2)
        return n
    def run(s_):
        groups = []
        for r in s_.req:
            if groups and r[0] <= groups[-1][-1][1] and r[0] >= groups[-1][-1][0]: groups[-1].append(r)
            else: groups.append([r])
        for grp in groups:
            extra = {}
            while True:
                used = {}; cur = 0; asg = []; bad = None
                for lo, hi, l in grp:
                    cur = max(cur, lo)
                    while s_.load(cur) + used.get(cur, 0) >= 2 + extra.get(cur, 0): cur += 1
                    if cur > hi: bad = (lo, hi); break
                    used[cur] = used.get(cur, 0) + 1; asg.append(cur)
                if not bad: break
                cand = min(range(bad[0], bad[1] + 1), key=lambda x: (extra.get(x, 0), -(s_.load(x) >= 2), sum(extra.get(y, 0) for y in range(x - 2, x + 3)), x))
                extra[cand] = extra.get(cand, 0) + 1
            for gq, (lo, hi, l) in zip(asg, grp): S.fill[gq] += l
            if "show" in opts: print("placed", len(grp), "extra", sum(extra.values()), asg)
PLACE = Place()
def xaddr(a, ss): return (VX + ss + (2 if a >= 128*K1 else 0), a % 65536)
def x_rd(n, qt):
    it = f"X{n//2}"; r, o = xaddr(LOC[it][0], n & 1); assert LOC[it][0] < 65536
    return lambda: pid.__setitem__(("x", n, qt), ds(f"ds_read_b128 {v(PR+8*(n&1)+4*qt,4)}, v{r} offset:{o + qt*2048}", it))
for n in range(16):
    for mt in range(8):
        it = f"W{n//2}"
        rds = [lambda r, it=it, n=n, mt=mt, e=e: ds(f"ds_read_b64_tr_b16 {v(r+2*e,2)}, v{VW + (mt ^ (4*e))} offset:{LOC[it][0]-65536 + (n&1)*8192 + e*1024}", it) for e in range(2)]
        S.e.append((rds, [(None, PR + 8*(n&1) + 4*qt, ACC + 8*mt + 4*qt, n == 0, lambda n=n, qt=qt: [pid[("x", n, qt)]]) for qt in range(2)]))
    if n < 15:
        for qt in range(2): S.fill[2*(8*n + 2 + 2*qt)].append(x_rd(n + 1, qt))
    if n & 1 and n < 15: S.before[8*n + 2].append(lambda n=n: bar(f"B{(n+1)//2}"))
if oi("bk", 1): S.before[122].append(lambda: bar("BK"))
QKO = oi("qko", 0)
qk = [(kt, s_) for s_ in range(4) for kt in range(4)]
if QKO: qk = qk[:8] + [(0, 2), (1, 2), (0, 3), (1, 3), (2, 2), (2, 3), (3, 2), (3, 3)]
for kt, s_ in qk:
    rds = [lambda r, kt=kt, s_=s_, e=e: ds(f"ds_read_b64{'_tr_b16' if 'ktr' in opts else ''} {v(r+2*e,2)}, v{VK + 2*s_ + e} offset:{kt*4096}", "K") for e in range(2)]
    S.e.append((rds, [(None, QB + 16*qt + 4*s_, SC + 16*qt + 4*kt, s_ == 0, lambda: []) for qt in range(2)]))
for mt in range(8):
    for k, (qt, i) in enumerate([(0, 0), (0, 1), (1, 0), (1, 1)]):
        (PLACE.slot(2*(120 + mt) + 6, 2*(128 + 4*(mt >> 1)) - 2) if oi("cap", 2) > 1 else S.fill[2*123 + (4*mt + k if not QKO else (4*mt + k) * 7 // 8)]).append(I(f"v_cvt_pk_bf16_f32 v{QB+16*qt+2*mt+i}, v{ACC+8*mt+4*qt+2*i}, v{ACC+8*mt+4*qt+2*i+1}"))
adr = [f"v_subrev_u32 v{VX+k}, s70, v{VX+k}" for k in range(2)] + [f"v_xor_b32 v{VW+k}, s71, v{VW+k}" for k in (0, 1, 4, 5)]
for k, x in enumerate(adr): S.fill[2*(117 + k) if k < 2 else 2*(130 + k)].append(I(x))
M = lambda qt: TM + 2*qt
if QKO:
    for qt in range(2):
        S.fill[2*142 + 0].append(I(f"v_max3_f32 v{M(qt)}, v{SC+16*qt}, v{SC+16*qt+1}, v{SC+16*qt+2}"))
        S.fill[2*143 + 0].append(I(f"v_max3_f32 v{M(qt)}, v{M(qt)}, v{SC+16*qt+3}, v{SC+16*qt+4}"))
        S.fill[2*143 + 1].append(I(f"v_max3_f32 v{M(qt)}, v{M(qt)}, v{SC+16*qt+5}, v{SC+16*qt+6}"))
E2 = 144
OA = VWS + 64
LW = {0: LIN0, 1: VW + 2, 2: VW + 3}
VZ, V1 = VW + 6, VW + 7
def u_rd(n, k):
    it = f"U{n//2}"; nt, e = k >> 1, k & 1
    return lambda: pid.__setitem__(("u", n, k), ds(f"ds_read_b64_tr_b16 {v(PR+8*(n&1)+4*nt+2*e,2)}, v{VW + (nt ^ (4*e))} offset:{LOC[it][0]-65536 + (n&1)*8192 + e*1024}", it))
def vwreg(s_, b, u, nt):
    return ACC + 8*(4*b + 2*u) + 4*nt if s_ in (0, 3) else VWS + 32*(s_ - 1) + 16*b + 8*u + 4*nt
def add_vw(n):
    m0 = len(S.e)
    for rt in range(8):
        it = f"V{n//2}"; r0, o = xaddr(LOC[it][0], n & 1)
        rds = [lambda r, it=it, r0=r0, o=o, rt=rt: ds(f"ds_read_b128 {v(r,4)}, v{r0} offset:{o + rt*2048}", it)]
        S.e.append((rds, [(None, PR + 8*(n&1) + 4*nt, ACC + 8*rt + 4*nt, n % 4 == 0, lambda n=n, nt=nt: [pid[("u", n, 2*nt)], pid[("u", n, 2*nt+1)]]) for nt in range(2)]))
    if n:
        for k in range(4): S.fill[2*(m0 - 6 + k)].append(u_rd(n, k))
        if n % 2 == 0: (S.fill[2*(m0 - 7)] if BG and n > 4 else S.before[m0 - 6]).append(lambda n=n: bar(f"B{8 + n//2}"))
    if n % 4 == 3:
        slots = []
        for gq in range(6, 30):
            slots += [gq] * (2 if (gq % 2 == 0 and (gq // 2) % 8 in (6, 7, 0, 1)) or gq in (6, 8, 10) else 1)
        for rt in range(8):
            for k, (nt, i) in enumerate([(0, 0), (0, 1), (1, 0), (1, 1)]):
                if n == 3: dl = 2*(m0 + 8 + 4*(rt >> 1)) - 2
                elif n == 15: dl = 2*(m0 + 8 + 4 + ((rt >> 1) & 1) + 24*(rt >> 2)) - 2
                else: dl = 2*(m0 + 8 + rt) - 1
                (PLACE.slot(2*(m0 + rt) + 6, dl) if oi("cap", 2) else S.fill[(2*(m0 + 3) + 4*rt + k) if (n in (3, 15) and oi("cvs", 1)) else (2*m0 + slots[4*rt + k]) if oi("cv2", 1) else 2*(m0 + rt + 4) + (k >> 1)]).append(I(f"v_cvt_pk_bf16_f32 v{vwreg(n//4, rt>>2, (rt>>1)&1, nt)+2*(rt&1)+i}, v{ACC+8*rt+4*nt+2*i}, v{ACC+8*rt+4*nt+2*i+1}"))
NPQ = oi("npq", 2)
def add_pv(p, s_, u):
    it = "P0" if s_ == 0 else f"P{s_}" + "abcd"[p * NPQ // 8]; a = LOC[f"P{s_}"][0] + p*2048 + u*1024
    rds = [lambda r: ds(f"ds_read_b128 {v(r,4)}, v{LW[a // 65536]} offset:{a % 65536}", it)]
    S.e.append((rds, [(vwreg(s_, p >> 2, u, nt), None, OA + 8*p + 4*nt, s_ == 0 and u == 0, lambda: []) for nt in range(2)]))
for n in range(4): add_vw(n)
EP = len(S.e)
for b_ in range(2):
    for u in range(2):
        for p in range(4*b_, 4*b_ + 4): add_pv(p, 0, u)
for n in range(4, 16): add_vw(n)
E3 = len(S.e)
for p in range(8):
    for s_ in range(1, 4):
        for u in range(2): add_pv(p, s_, u)
for s_ in range(1, 4):
    for hf in range(NPQ): LOC[f"P{s_}{'abcd'[hf]}"] = (LOC[f"P{s_}"][0] + hf*16384//NPQ, 16384//NPQ)
for hf in range(NPQ): (S.fill[2*(E3 + 48*hf//NPQ - 6)] if BG else S.before[E3 + 48*hf//NPQ - 6]).append(lambda hf=hf: bar("P" + "abcd"[hf]))
for k, x in enumerate([f"v_add_u32 v{LW[1]}, 0x10000, v{LIN0}", f"v_add_u32 v{LW[2]}, 0x20000, v{LIN0}", f"v_mov_b32 v{VZ}, 0", f"v_mov_b32 v{V1}, -1", f"v_lshlrev_b32 v1, {FSH+3}, v0"]):
    S.fill[2*((EP if oi('sovl', 0) else E2) + 6 + k) + 1].append(I(x))
vmq = []; sent = set()
def flag(p):
    if "f" in SA:
        C(f"s_waitcnt vmcnt({len(vmq) - 1 - vmq.index(f'D{p}')})\ns_atomic_add s87, s[30:31], s{72+p}"); sent.add(p); return
    sent.add(p)
    C(f"s_waitcnt vmcnt({len(vmq) - 1 - vmq.index(f'D{p}')})\ns_mov_b64 exec, 1")
    C(f"buffer_store_dword v{V1}, v{VZ}, s[{SWS}:{SWS+3}], s{72+p} offen sc1\ns_mov_b64 exec, -1"); vmq.append(f"F{p}")
FLAG_LAG = oi("flag", 7)
for p in range(7):
    g0 = 2*(E3 + 6*(p+1) + 2); r = PR + 4*(p & 3)
    if p >= oi("fastsend", 7):
        ge = 2*(E3 + 6*(p+1) + 1) + 1
        S.fill[ge].append(I("s_nop 1"))
        for i in range(4): S.fill[ge].append(I(f"v_cvt_pk_bf16_f32 v{r+i}, v{OA+8*p+2*i}, v{OA+8*p+2*i+1}"))
        S.fill[ge].append(lambda p=p, r=r: (C(f"buffer_store_dwordx4 {v(r,4)}, v{LIN0}, s[{SWS}:{SWS+3}], s{80+p} offen sc1"), vmq.append(f"D{p}")))
        if p >= FLAG_LAG: S.fill[g0 + 6].append(lambda p=p: flag(p - FLAG_LAG))
        continue
    for i in range(4): S.fill[g0 + (2*((i >> 1) ^ 1) if oi("cv3", 1) else 1 + (i >> 1))].append(I(f"v_cvt_pk_bf16_f32 v{r+i}, v{OA+8*p+2*i}, v{OA+8*p+2*i+1}"))
    S.fill[g0 + oi('stg', 4)].append(lambda p=p, r=r: (C(f"buffer_store_dwordx4 {v(r,4)}, v{VZ if 'dg2' in opts and p < 6 else LIN0}, s[{SWS}:{SWS+3}], s{80+p} offen sc1"), vmq.append(f"D{p}")))
    if p >= FLAG_LAG: S.fill[g0 + 6].append(lambda p=p: flag(p - FLAG_LAG))
PLACE.run()
EF = [tuple(int(y) for y in x.split(":")) for x in opts.get("ef", "").split(",") if x]
def efbar(k, cnt):
    C(f"s_waitcnt vmcnt({len(vmq) - cnt})"); assert len(vmq) >= cnt
    sent.update(range(cnt)); bar(f"F{k}")
for k, (at, cnt) in enumerate(EF): S.before[E3 + at].append(lambda k=k, cnt=cnt: efbar(k, cnt))
if oi("sovl", 0):
    sm = []
    def op(x, c=4): sm.append((c, I(x)))
    for qt in range(2): op(f"v_max3_f32 v{M(qt)}, v{SC+16*qt}, v{SC+16*qt+1}, v{SC+16*qt+2}", 5)
    for i in range(3, 15, 2):
        for qt in range(2): op(f"v_max3_f32 v{M(qt)}, v{M(qt)}, v{SC+16*qt+i}, v{SC+16*qt+i+1}", 5)
    for qt in range(2): op(f"v_max_f32 v{M(qt)}, v{M(qt)}, v{SC+16*qt+15}")
    def xred(o_, fin, fc):
        a_, b_ = M(0), M(1)
        op("s_nop 1", 8); op(f"v_permlane32_swap_b32 v{a_}, v{b_}", 8); op(f"{o_} v{a_}, v{a_}, v{b_}"); op(f"v_mov_b32 v{b_}, v{a_}")
        op("s_nop 1", 8); op(f"v_permlane16_swap_b32 v{a_}, v{b_}", 8); op(f"{o_} v{a_}, v{a_}, v{b_}"); op(fin[0], fc); op(fin[1], fc)
        op("s_nop 1", 8); op(f"v_permlane32_swap_b32 v{a_}, v{b_}", 8)
    xred("v_max_f32", [f"v_mul_f32 v{M(1)}, s68, v{M(0)}", f"v_mul_f32 v{M(0)}, s68, v{M(0)}"], 4)
    SM = [M(0) + 1, M(1) + 1]
    op(f"v_fma_f32 v{SC}, v{SC}, s68, -v{M(0)}", 5)
    for i in range(32):
        op(f"v_exp_f32 v{SC+i}, v{SC+i}", 8)
        if i < 31: op(f"v_fma_f32 v{SC+i+1}, v{SC+i+1}, s68, -v{M((i+1)>>4)}", 5)
        j = i - 1
        if j >= 0 and j % 16: op(f"v_add_f32 v{SM[j>>4]}, v{SM[j>>4] if j % 16 > 1 else SC+j-1}, v{SC+j}")
    op(f"v_mov_b32 v{M(0)}, v{SM[0]}"); op(f"v_add_f32 v{M(1)}, v{SM[1]}, v{SC+31}")
    xred("v_add_f32", [f"v_rcp_f32 v{M(1)}, v{M(0)}", f"v_rcp_f32 v{M(0)}, v{M(0)}"], 8)
    wr = {}
    for t in range(4):
        for i in range(8): op(f"v_mul_f32 v{SC+8*t+i}, v{M(t>>1)}, v{SC+8*t+i}")
        for i in range(4): op(f"v_cvt_pk_bf16_f32 v{PB+4*t+i}, v{SC+8*t+2*i}, v{SC+8*t+2*i+1}", 5)
        sm.append((8, lambda t=t: wr.__setitem__("l", ds(f"ds_write_b128 v{VOWN}, {v(PB+4*t,4)} offset:{LOC['P0'][0] + t*1024}"))))
    sm.append((0, lambda: cstamp("sm")))
    g_lo, g_hi = 2*E2 - 1, 2*(E2 + oi("smend", 23))
    tot = sum(c for c, _ in sm); acc_ = 0
    for c, f in sm:
        S.fill[g_lo + int(acc_ * (g_hi - g_lo) / tot)].append(f); acc_ += c
    assert E2 + oi("smend", 23) < EP - 6
    S.before[EP - 6].append(lambda: (need(wr["l"]), bar("BP")))
    PUBC = oi("pubc", oi("smend", 23) + 1); EARLY8 = 1
    for t in range(4):
        S.fill[2*(E2 + PUBC + oi("pubd", 0)*t)].append(I(f"buffer_store_dwordx4 {v(PB+4*t,4)}, v{VOWN}, s[{SWS}:{SWS+3}], s64 offen offset:{t*1024} sc1"))
    S.fill[2*(E2 + oi("flgc", 66))].append(I(f"s_waitcnt vmcnt(0)\ns_mov_b64 exec, 15\nbuffer_store_dword v{V1}, v1, s[{SWS}:{SWS+3}], s67 offen sc1\ns_mov_b64 exec, -1"))

    for k in range(4): S.fill[2*(E2 - 5 + k)].append(u_rd(0, k))
    S.before[E2 - 6].append(lambda: bar("B8"))
    if oi("bq", 0): S.before[E2 + 1].append(lambda: bar("BQ"))
    bar("B0"); C("s_waitcnt vmcnt(0)")
    x_rd(0, 0)(); x_rd(0, 1)(); S.prologue(0)
    S.run(0, len(S.e), len(S.e))
    assert not S.fill and not S.before, (dict(S.fill), dict(S.before))
else:
    bar("B0"); C("s_waitcnt vmcnt(0)")
    x_rd(0, 0)(); x_rd(0, 1)(); S.prologue(0)
    S.run(0, E2, E2)
    cstamp("qk")
    if oi("bq", 0): bar("BQ")
    C.c("softmax over the 64 keys (16 per lane x 4 lane groups), two 16-query tiles")
    if not QKO:
        C("s_nop 2")
        for qt in range(2): C(f"v_max3_f32 v{M(qt)}, v{SC+16*qt}, v{SC+16*qt+1}, v{SC+16*qt+2}")
    for i in range(7 if QKO else 3, 15, 2):
        if QKO and i == 11: C("s_nop 1")
        for qt in range(2): C(f"v_max3_f32 v{M(qt)}, v{M(qt)}, v{SC+16*qt+i}, v{SC+16*qt+i+1}")
    for qt in range(2): C(f"v_max_f32 v{M(qt)}, v{M(qt)}, v{SC+16*qt+15}")
    def xred(op, fin, fill):
        a_, b_ = M(0), M(1)
        def gap(n):
            for _ in range(n): fill.pop(0)() if fill else C("s_nop 0")
        gap(2); C(f"v_permlane32_swap_b32 v{a_}, v{b_}\n{op} v{a_}, v{a_}, v{b_}\nv_mov_b32 v{b_}, v{a_}")
        gap(2); C(f"v_permlane16_swap_b32 v{a_}, v{b_}\n{op} v{a_}, v{a_}, v{b_}\n{fin[0]}\n{fin[1]}")
        gap(2); C(f"v_permlane32_swap_b32 v{a_}, v{b_}")
    xred("v_max_f32", [f"v_mul_f32 v{M(1)}, s68, v{M(0)}", f"v_mul_f32 v{M(0)}, s68, v{M(0)}"], [])
    pkf = lambda i: f"v_pk_fma_f32 {v(SC+2*i,2)}, {v(SC+2*i,2)}, s[68:69], {v(M(i>>3),2)} op_sel_hi:[1,1,0] neg_lo:[0,0,1] neg_hi:[0,0,1]"
    SM = [TM + 4, 2]
    C(pkf(0))
    for i in range(16):
        C(f"v_exp_f32 v{SC+2*i}, v{SC+2*i}")
        if i < 15: C(pkf(i + 1))
        C(f"v_exp_f32 v{SC+2*i+1}, v{SC+2*i+1}")
        j = i - 1
        if j >= 0 and j % 8: C(f"v_pk_add_f32 {v(SM[j>>3],2)}, {v(SM[j>>3],2) if j % 8 > 1 else v(SC+2*j-2,2)}, {v(SC+2*j,2)}")
    C(f"v_add_f32 v{M(0)}, v{SM[0]}, v{SM[0]+1}\nv_pk_add_f32 {v(SM[1],2)}, {v(SM[1],2)}, {v(SC+30,2)}\nv_add_f32 v{M(1)}, v{SM[1]}, v{SM[1]+1}")
    EARLY8 = oi("early8", 0); pro = []
    if EARLY8:
        if EARLY8 == 1: bar("B8")
        pro = [u_rd(0, k) for k in range(4)] + [lambda m=m: S.rd(m, 0) for m in range(E2, E2 + 6)]
    xred("v_add_f32", [f"v_rcp_f32 v{M(1)}, v{M(0)}", f"v_rcp_f32 v{M(0)}, v{M(0)}"], pro)
    for f in pro: f()
    PUBC = oi("pubc", -3)
    pst = lambda t: f"buffer_store_dwordx4 {v(PB+4*t,4)}, v{VOWN}, s[{SWS}:{SWS+3}], s64 offen offset:{t*1024} sc1"
    E8T = oi("e8t", -1)
    for t in range(4):
        if t == E8T:
            bar("B8"); EARLY8 = 3
            for k in range(4): u_rd(0, k)()
            S.prologue(E2)
        for i in range(8*t, 8*t + 8, 2): C(f"v_pk_mul_f32 {v(SC+i,2)}, {v(SC+i,2)}, {v(M(t>>1),2)} op_sel_hi:[1,0]")
        for i in range(4): C(f"v_cvt_pk_bf16_f32 v{PB+4*t+i}, v{SC+8*t+2*i}, v{SC+8*t+2*i+1}")
        lastw = ds(f"ds_write_b128 v{VOWN}, {v(PB+4*t,4)} offset:{LOC['P0'][0] + t*1024}")
        if PUBC == -3: C(pst(t))
    S.before[E2 + 10].insert(0, lambda: need(lastw))
    cstamp("sm")
    if PUBC == -2:
        for t in range(4): C(pst(t))
    if not EARLY8:
        if not PUBC: drain()
        bar("B8")
        for k in range(4): u_rd(0, k)()
        S.prologue(E2)
    if PUBC == -1:
        for t in range(4): C(pst(t))
    if PUBC > 0:
        for t in range(4): S.fill[2*(E2 + PUBC + oi("pubd", 0)*t)].append(I(pst(t)))
    if "p" in SA: S.before[E2 + oi("pbar", 42)].insert(0, I("s_waitcnt vmcnt(0)"))
    elif PUBC: S.fill[2*(E2 + oi("flgc", 34))].append(I(f"s_waitcnt vmcnt(0)\ns_mov_b64 exec, 15\nbuffer_store_dword v{V1}, v1, s[{SWS}:{SWS+3}], s67 offen sc1\ns_mov_b64 exec, -1"))
    S.run(E2, len(S.e), len(S.e))
    assert not S.fill and not S.before, (dict(S.fill), dict(S.before))
cstamp("T")
C("s_nop 6")
OWNP = LOC["U7"][0]
C(f"v_add_u32 v1, s70, v{LW[OWNP // 65536]}")
for nt in range(2): ds(f"ds_write_b128 v1, {v(OA+56+4*nt,4)} offset:{OWNP % 65536 + nt*1024}")
ZE = oi("ze", 0)
if ZE == 1: drain(); bar("Z")
for p in range(7):
    if p not in sent: flag(p)
cstamp("fl")
if ZE != 1: drain(); bar("Z")
assert free["U7"] <= len(bars) - 2
if STAMP:
    C("s_cmp_lg_u32 s3, 0\ns_cbranch_scc1 L_end")
    C(f"s_lshl_b32 s13, s2, 9\ns_add_u32 s13, s13, {hex(WS_STAMP + 48*8)}")
    for i in range(len(cst)):
        C(f"s_waitcnt lgkmcnt(0)\nv_mov_b32 v2, s{CREG[i]}\nv_mov_b32 v3, s{CREG[i]}\nbuffer_store_dwordx2 v[2:3], v{VZ}, s[{SWS}:{SWS+3}], s13 offen offset:{8*i}")
C("L_end:"); C("s_endpgm")
if PADS: C(f"L_pad{npad[0]}:"); C("s_branch L_back")
for k in ("K0", "K1"): first[k], free[k] = first["K"], free["K"]
del first["K"], free["K"], first["P0"]
free["X7"] = 999

A = Asm()
lst = []
def stamp(name):
    if opts.get("amp") == name: A("s_memrealtime s[98:99]")
    if STAMP and (SSET is None or ("L" + name) in SSET):
        if name not in lst: lst.append(name)
        i = lst.index(name) + 1; i += (i >= 30); assert i < 48
        A(f"s_memtime s[98:99]\ns_memrealtime s[96:97]\ns_waitcnt lgkmcnt(0)\nv_writelane_b32 v254, s98, {i}\nv_writelane_b32 v255, s96, {i}")
if "noal" not in opts: A(".p2align 12")
A(".p2align 8"); A(f"{KN}:")
if "amp" in opts: A("s_memrealtime s[100:101]")
A(f"s_load_dwordx2 s[{SX}:{SX+1}], s[0:1], 0\ns_load_dwordx2 s[{SWQ}:{SWQ+1}], s[0:1], 24\ns_load_dwordx16 s[16:31], s[0:1], 0")
A("s_cmp_ge_u32 s2, 256\ns_cbranch_scc1 L_end")
if STAMP: A("s_memtime s[94:95]\ns_memrealtime s[92:93]")
A(f"""v_readfirstlane_b32 s3, v0
s_and_b32 s4, s2, 7
s_bfe_u32 s8, s2, 0x20003
s_lshr_b32 s11, s2, 5
""")
if "late0" in opts: A(f"s_cmp_lg_u32 s4, 0\ns_cbranch_scc1 L_nl\ns_waitcnt lgkmcnt(0)\ns_sleep {opts['late0']}"); A("L_nl:")
A("""s_bitcmp1_b32 s3, 8
s_cbranch_scc1 L_loader""")
NPF = oi("npf", 22)
A("s_lshr_b32 s3, s3, 6\nv_and_b32 v0, 63, v0\ns_getpc_b64 s[6:7]")
A("L_pc:")
if oi("pfs", 0) == 0: A(f"s_lshl_b32 s13, s8, 2\ns_add_u32 s13, s13, s3\ns_mul_i32 s13, s13, {NPF}*64")
else:
    NPF = -(-NPF * 16 // (oi("pfs", 0) * 4)); A(f"s_lshr_b32 s13, s2, 3\ns_and_b32 s13, s13, {oi('pfs', 0) - 1}\ns_lshl_b32 s13, s13, 2\ns_add_u32 s13, s13, s3\ns_mul_i32 s13, s13, {NPF}*64")
A(f"v_min_u32 v1, {NPF-1}, v0\nv_lshlrev_b32 v1, 6, v1\nv_add_u32 v1, s13, v1")
A(f"v_min_u32 v1, L_codeend-L_pc-4, v1")
PFM = oi("pfm", 0)
if PFM == 1: A("s_waitcnt lgkmcnt(0)")
if PFM == 2: A("v_mov_b32 v131, v1")
elif PFM != 3: A("global_load_dword v130, v1, s[6:7]")
A(f"{JN}\ns_and_b32 s9, s9, 3\ns_branch L_compute")
A("L_loader:")
if "lprio" in opts: A(f"s_setprio {opts['lprio']}")
srd_consts(A, [SX, SWQ])
ROT = {"8": "s_lshl_b32 s12, s8, 1\ns_add_u32 s12, s12, s11", "8h": "s_lshl_b32 s12, s8, 1\ns_add_u32 s12, s12, s11\ns_add_u32 s12, s12, s4",
       "4": "s_add_u32 s12, s8, s11\ns_lshl_b32 s12, s12, 1", "4h": "s_add_u32 s12, s8, s11\ns_lshl_b32 s12, s12, 1\ns_add_u32 s12, s12, s4",
       "w8": "s_add_u32 s12, s4, s11", "w8x2": "s_lshl_b32 s12, s8, 2\ns_add_u32 s12, s12, s11\ns_add_u32 s12, s12, s4",
       "w4": "s_lshl1_add_u32 s12, s11, s4", "w2": "s_lshl2_add_u32 s12, s11, s4", "w1": "s_mov_b32 s12, s4", "w4x2": "s_lshl1_add_u32 s12, s8, s11\ns_lshl1_add_u32 s12, s12, s4",
       "2": "s_add_u32 s12, s8, s11\ns_lshl_b32 s12, s12, 2", "2h": "s_add_u32 s12, s8, s11\ns_lshl2_add_u32 s12, s12, s4"}[opts.get("rot", "2h")]
ROT0 = {"": "", "w4x2": "s_lshl1_add_u32 s13, s8, s11\ns_lshl_b32 s13, s13, 1\ns_cmp_eq_u32 s4, 0\ns_cselect_b32 s12, s13, s12",
        "w4": "s_lshl_b32 s13, s11, 1\ns_cmp_eq_u32 s4, 0\ns_cselect_b32 s12, s13, s12",
        "w8x2": "s_lshl2_add_u32 s13, s8, s11\ns_cmp_eq_u32 s4, 0\ns_cselect_b32 s12, s13, s12",
        "8": "s_lshl1_add_u32 s13, s8, s11\ns_cmp_eq_u32 s4, 0\ns_cselect_b32 s12, s13, s12"}[opts.get("rot0", "w4")]
A(f"""v_bfe_u32 v6, v0, 4, 4
v_bfe_u32 v1, v0, 3, 5
v_xor_b32 v2, v6, v0
v_and_b32 v2, 7, v2
v_lshlrev_b32 v2, 4, v2
v_lshl_add_u32 v8, v1, 10, v2
v_bfe_u32 v5, v0, 7, 1
v_lshlrev_b32 v5, 2, v5
v_xor_b32 v5, v5, v6
v_lshlrev_b32 v5, 1, v5
v_xor_b32 v5, v5, v0
v_and_b32 v5, 15, v5
v_lshlrev_b32 v5, 4, v5
v_lshl_add_u32 v9, v6, 13, v5
s_xor_b32 s74, s4, 7
s_lshl_b32 s13, s74, 14
s_and_b32 s14, s13, 0x4000
v_xor_b32 v8, s14, v8
s_xor_b32 s13, s13, s14
s_lshl_b32 s64, s11, 17
s_add_u32 s64, s64, s13
s_lshl2_add_u32 s10, s4, s8
s_lshl_b32 s65, s10, 8
{ROT}
{ROT0}
s_bfe_u32 s3, s3, 0x20006
s_lshl_b32 s67, s3, 10""")
KWAIT = [True]
if STAMP: A("s_waitcnt lgkmcnt(0)\nv_mov_b32 v254, -1\nv_mov_b32 v255, -1\nv_writelane_b32 v254, s94, 0\nv_writelane_b32 v255, s92, 0\ns_getreg_b32 s92, hwreg(HW_REG_XCC_ID)\ns_and_b32 s92, s92, 7\nv_writelane_b32 v254, s92, 30")
stamp("go")
def late_setup():
    srd_consts(A, [SK, SV, SWO, SOUT, SDBG, SWS]); srd_ptrs(A, [SK, SV, SWO, SOUT, SDBG, SWS])
    A(f"""v_lshl_add_u32 v11, v1, 8, v2
v_and_b32 v0, 63, v0
v_and_b32 v3, 7, v0
v_and_b32 v4, 15, v0
s_lshr_b32 s5, s2, 3
{JN}
s_and_b32 s9, s9, 3
s_lshl_b32 s13, s11, {FSH+5}
s_lshl_b32 s14, s4, {FSH}
s_add_u32 s13, s13, s14
s_add_u32 s79, s13, {WS_FLAG}
s_lshl_b32 s14, s9, {FSH+3}
s_add_u32 s77, s79, s14
v_mov_b32 v17, 0
v_lshl_add_u32 v12, v6, 10, v5
v_xor_b32 v5, v6, v4
v_lshlrev_b32 v5, 4, v5
v_lshl_add_u32 v10, v6, 8, v5
v_lshlrev_b32 v13, 4, v0
s_lshl_b32 s69, s11, 20
s_lshr_b32 s13, s74, 2
s_lshl_b32 s13, s13, 19
s_add_u32 s69, s69, s13
s_lshl_b32 s13, s10, 14
s_add_u32 s66, s69, s13
s_lshl_b32 s13, s4, 16
s_add_u32 s69, s69, s13
s_lshl_b32 s70, s4, 19
s_lshl_b32 s13, s9, 8
s_add_u32 s70, s70, s13
s_bfe_u32 s71, s11, {hex(0x10000 | oi('flipbit', 2))}
s_lshl_b32 s72, s11, 3
s_add_u32 s72, s72, s4
s_lshl_b32 s73, s72, 16
s_add_u32 s73, s73, {WS_P}
s_lshl_b32 s13, s3, 12
v_add_u32 v14, s13, v13
s_lshl_b32 s14, s8, 4
s_add_u32 s79, s79, s14
s_lshl_b32 s14, s3, 2
s_add_u32 s79, s79, s14
v_lshlrev_b32 v7, {FSH+3}, v0
v_mov_b32 v15, -1
v_lshlrev_b32 v19, 2, v3
s_lshl_b32 s13, s11, 5
v_add_u32 v19, s13, v19
s_mov_b32 s76, 0""")
def load_ops(it):
    k, a = it[0], LOC[it][0]; i = int(it[1])
    def dma(vo, srd, soff, lds, fl=""):
        if it in opts.get("nt", "").split(",") or it[0] in opts.get("nt", "").split(","): fl += " nt"
        return f"s_add_u32 m0, s67, {lds}\n{soff}\nbuffer_load_dwordx4 v{vo}, s[{srd}:{srd+3}], s68 offen {fl} lds"
    if "dry" in opts and not (k in "XW" and i < 4) and k != "K": return "", []
    if k == "X":
        return (f"s_add_u32 s13, s12, {i}\ns_and_b32 s13, s13, 7\ns_lshl_b32 s14, s13, 7\ns_add_u32 s14, s14, s64",
                [dma(8, SX, f"s_xor_b32 s68, s14, {hex(qq*0x8000)}", a + qq*4096) for qq in range(4)])
    if k == "W":
        return (f"s_add_u32 s13, s12, {i}\ns_and_b32 s13, s13, 7\ns_lshl_b32 s15, s13, 19\ns_add_u32 s15, s15, s65",
                [dma(9, SWQ, f"s_add_u32 s68, s15, {qq*16*8192}", a + qq*4096, "nt" if "wnt" in opts and i == 0 else "") for qq in range(4)])
    if k == "K":
        return ("", [dma(10, SK, f"s_xor_b32 s68, s66, {hex(qq*4096 + i*0x80000)}", a + qq*4096, NTK) for qq in range(4)])
    hd = f"s_add_u32 s13, s8, {i>>1}\ns_and_b32 s13, s13, 3\ns_xor_b32 s75, s71, {i&1}\n"
    if k == "V":
        return (hd + "s_lshl_b32 s13, s13, 14\ns_lshl_b32 s75, s75, 7\ns_add_u32 s14, s13, s75\ns_add_u32 s14, s14, s69",
                [dma(11, SV, f"s_xor_b32 s68, s14, {hex((qq&1)*8192 + (qq>>1)*0x80000)}", a + qq*4096) for qq in range(4)])
    if k == "U":
        return (hd + "s_lshl_b32 s13, s13, 17\ns_lshl_b32 s75, s75, 16\ns_add_u32 s15, s13, s75\ns_add_u32 s15, s15, s70",
                [dma(12, SWO, f"s_add_u32 s68, s15, {qq*16*1024}", a + qq*4096) for qq in range(4)])
    return (f"s_add_u32 s13, s8, {i}\ns_and_b32 s13, s13, 3\ns_lshl_b32 s13, s13, 14\ns_add_u32 s15, s13, s73\ns_add_u32 s15, s15, s67",
            [dma(13, SWS, f"s_add_u32 s68, s15, {'abcd'.index(it[2])*16384//NPQ + qq*4096}", a + qq*4096, "sc1") for qq in range(4//NPQ)])
lbl = [0]
class Loader:
    def __init__(s_): s_.n = 0; s_.last = {}; s_.cur = -1; s_.occ = []; s_.done = set(); s_.landed = -2
    def copy(s_):
        o = Loader(); o.__dict__.update({k: (x.copy() if hasattr(x, "copy") else x) for k, x in s_.__dict__.items()}); return o
    def wait(s_, names, note=True):
        hi = max(s_.last[i] for i in names)
        if note and hi <= s_.landed: return
        A(f"s_waitcnt vmcnt({min(s_.n - 1 - hi, 63)})")
        if note: s_.landed = hi
    def claim(s_, x):
        lo, hi = LOC[x][0], LOC[x][0] + LOC[x][1]
        for (a_, b_, it) in s_.occ:
            if a_ < hi and lo < b_: assert free[it] <= s_.cur, f"WAR: {x} after {bars[s_.cur]} but {it} free at {free[it]}"
        s_.occ = [o for o in s_.occ if not (o[0] >= lo and o[1] <= hi)] + [(lo, hi, x)]
        if x[0] == "P": assert "pw" in s_.done
    def step(s_, x):
        s_.done.add(x)
        if x not in bars: A.c(x)
        if x == "setup": late_setup()
        elif x in bars:
            s_.cur += 1; assert bars[s_.cur] == x, (x, bars[s_.cur])
            nd = [i for i, f in first.items() if f == s_.cur]
            if nd: s_.wait(nd)
            A(f"s_barrier                ; {x}"); stamp(x)
        elif x == "clr":
            assert "setup" in s_.done
            lbl[0] += 1; s_.last["clr"] = s_.n - 1
            A(f"s_cmp_lg_u32 s3, 0\ns_cbranch_scc1 L_k{lbl[0]}")
            if FSH == 8: A(f"v_lshlrev_b32 v1, 2, v0\nbuffer_store_dword v17, v1, s[{SWS}:{SWS+3}], s77 offen sc1")
            else:
                assert FSH == 10
                A(f"v_lshlrev_b32 v1, 4, v0\nv_mov_b32 v28, 0\nv_mov_b32 v29, 0\nv_mov_b32 v30, 0\nv_mov_b32 v31, 0\nbuffer_store_dwordx4 v[28:31], v1, s[{SWS}:{SWS+3}], s77 offen sc1")
            A(f"L_k{lbl[0]}:")
        elif x.startswith("pf"):
            lo = int(x[2:] or 0)
            A(f"s_sub_u32 s13, s77, {WS_FLAG}\ns_lshl_b32 s13, s13, 7\ns_lshl_b32 s14, s3, 13\ns_add_u32 s13, s13, s14\ns_add_u32 s14, s13, {WS_PART}\ns_add_u32 s15, s14, 4096")
            A("v_mov_b32 v24, -1\nv_mov_b32 v25, -1\nv_mov_b32 v26, -1\nv_mov_b32 v27, -1\nv_lshlrev_b32 v13, 4, v0")
            for p in range(lo, 7):
                A(f"buffer_store_dwordx4 v[24:27], v13, s[{SWS}:{SWS+3}], {'s14' if p < 4 else 's15'} offen offset:{(p&3)*1024} sc1"); s_.n += 1
            s_.last["pf"] = s_.n - 1
        elif x == "atm":
            lbl[0] += 1
            A(f"s_cmp_lg_u32 s3, 0\ns_cbranch_scc1 L_k{lbl[0]}"); s_.wait(["clr"], False)
            if "atm0" in opts:
                A(f"s_cmp_lg_u32 s4, 0\ns_cbranch_scc1 L_kv{lbl[0]}\ns_lshl_b32 s13, s72, 2\ns_mov_b32 s97, 1\ns_atomic_add s97, s[28:29], s13\ns_branch L_k{lbl[0]}"); A(f"L_kv{lbl[0]}:")
            if "d" in SA: A("s_lshl_b32 s13, s72, 2\ns_mov_b32 s97, 1\ns_atomic_add s97, s[28:29], s13")
            else: A(f"s_lshl_b32 s13, s72, 2\nv_mov_b32 v2, 1\ns_mov_b64 exec, 1\nbuffer_atomic_add v2, v17, s[{SDBG}:{SDBG+3}], s13 offen\ns_mov_b64 exec, -1")
            A(f"L_k{lbl[0]}:")
        elif x[0] == "k" and x[1:].isdigit():
            for c in x[1:]:
                it = f"K{int(c) >> 2}"
                if not any(o[2] == it for o in s_.occ): s_.claim(it)
                A(load_ops(it)[1][int(c) & 3]); s_.last[it] = s_.n; s_.n += 1
        elif x == "ci" and opts.get("amp") == "skew" and "sk" not in s_.done:
            s_.done.add("sk")
            A(f"s_lshl_b32 s13, s2, 7\ns_add_u32 s13, s13, 0x40000\nv_mov_b32 v23, s96\nbuffer_store_dword v23, v17, s[{SWS}:{SWS+3}], s13 offen sc1"); s_.n += 1
            s_.step("ci")
        elif x == "ci":
            A(f"buffer_load_dword v20, v19, s[{SDBG}:{SDBG+3}], 0 offen sc1"); s_.last["ci"] = s_.n; s_.n += 1
        elif x == "cw":
            assert s_.cur < bars.index("B10" if oi("flgc", 34) >= 42 else "B9")
            lbl[0] += 1; k = lbl[0]; s_.wait(["ci"])
            A(f"v_cmp_gt_u32 vcc, 4, v20\ns_cbranch_vccz L_lr{k}"); A(f"L_ll{k}:")
            A(f"s_sleep 8\nbuffer_load_dword v20, v19, s[{SDBG}:{SDBG+3}], 0 offen sc1\ns_add_u32 s76, s76, 1\ns_waitcnt vmcnt(0)\ns_cmp_ge_u32 s76, {SPIN}\ns_cbranch_scc1 L_lr{k}\nv_cmp_gt_u32 vcc, 4, v20\ns_cbranch_vccnz L_ll{k}")
            A(f"L_lr{k}:")
        elif x == "pr":
            assert s_.cur >= bars.index("B9" if EARLY8 else "B8")
            for t in range(4): A(f"ds_read_b128 {v(32+4*t,4)}, v14 offset:{LOC['P0'][0] + t*1024}")
        elif x == "pub":
            assert "pr" in s_.done
            A(f"s_lshl_b32 s13, s8, 14\ns_add_u32 s68, s13, s73\ns_waitcnt lgkmcnt(0)")
            for t in range(4): A(f"buffer_store_dwordx4 {v(32+4*t,4)}, v14, s[{SWS}:{SWS+3}], s68 offen offset:{t*1024} sc1")
            s_.n += 4; s_.last["pub"] = s_.n - 1
        elif x == "flg":
            assert "cw" in s_.done; s_.wait(["pub"])
            A(f"s_mov_b64 exec, 15\nbuffer_store_dword v15, v7, s[{SWS}:{SWS+3}], s79 offen offset:128 sc1\ns_mov_b64 exec, -1"); s_.n += 1; stamp(x)
        elif x == "ps":
            assert "cw" in s_.done and bars[s_.cur] == {42: "B10", 58: "B11"}[oi("pbar", 42)]
            A(f"s_andn2_b32 s13, s79, 0x7f\ns_lshl_b32 s14, s3, {FSH+3}\ns_add_u32 s13, s13, s14\ns_add_u32 s13, s13, 128\ns_mov_b32 s97, 1\ns_atomic_add s97, s[30:31], s13")
        elif x == "pi" and "p" in SA: A("s_add_u32 s78, s77, 128\ns_load_dword s80, s[30:31], s78 glc")
        elif x == "pw" and "p" in SA:
            assert "ps" in s_.done; lbl[0] += 1; k = lbl[0]
            A(f"s_waitcnt lgkmcnt(0)\ns_cmp_ge_u32 s80, 4\ns_cbranch_scc1 L_lr{k}"); A(f"L_ll{k}:")
            A(f"s_load_dword s80, s[30:31], s78 glc\ns_add_u32 s76, s76, 1\ns_waitcnt lgkmcnt(0)\ns_cmp_ge_u32 s76, {SPIN}\ns_cbranch_scc1 L_lr{k}\ns_cmp_lt_u32 s80, 4\ns_cbranch_scc1 L_ll{k}")
            A(f"L_lr{k}:"); stamp(x)
        elif x == "pi": A(f"s_add_u32 s78, s77, 128\ns_load_dwordx16 s[80:95], s[30:31], s78 glc")
        elif x == "pw":
            assert PUBC or "flg" in s_.done; lbl[0] += 1; k = lbl[0]
            red = "".join(f"s_and_b64 s[80:81], s[80:81], s[{i}:{i+1}]\n" for i in range(82, 96, 2)) + "s_and_b32 s80, s80, s81\n"
            A(f"s_waitcnt lgkmcnt(0)\n{red}s_cbranch_scc1 L_lr{k}"); A(f"L_ll{k}:")
            A(f"s_load_dwordx16 s[80:95], s[30:31], s78 glc\ns_add_u32 s76, s76, 1\ns_waitcnt lgkmcnt(0)\ns_cmp_ge_u32 s76, {SPIN}\ns_cbranch_scc1 L_lr{k}\n{red}s_cbranch_scc0 L_ll{k}")
            A(f"L_lr{k}:"); stamp(x)
        else:
            its = [f"X{x[1:]}", f"W{x[1:]}"] if x[0] == "S" and int(x[1:]) < 8 else [f"V{int(x[1:])-8}", f"U{int(x[1:])-8}"] if x[0] == "S" else [x]
            ops = []
            for it in its: s_.claim(it); st, o = load_ops(it); A(st); ops.append(o)
            if KWAIT[0]: ops[0][0] = ops[0][0].replace("buffer_load", "s_waitcnt lgkmcnt(0)\nbuffer_load"); KWAIT[0] = False
            if "noseq" not in opts and its[0][0] == "X":
                for o in ops:
                    for z in o: A(z); s_.n += 1
            else:
                for k in range(4):
                    for it, o in zip(its, ops):
                        if k < len(o): A(o[k]); s_.n += 1
            for it in its: s_.last[it] = s_.n - 1
    def sigof(s_): return (s_.cur, tuple(sorted((i, min(s_.n - k, 64)) for i, k in s_.last.items() if (first.get(i, -1) > s_.cur and k > s_.landed) or (i == "ci" and "cw" not in s_.done) or (i == "pub" and "flg" not in s_.done) or (i == "clr" and "atm" not in s_.done))), tuple(sorted(s_.occ)), tuple(sorted(x for x in s_.done if x[0].islower() and x[0] != 'k')))

sched = opts.get("sched", DEF).replace("_", " ").split()
if PUBC: sched = [x for x in sched if x not in ("pr", "pub", "flg")]
if "p" in SA and "ps" not in sched: sched.insert(sched.index({42: "B10", 58: "B11"}[oi("pbar", 42)]) + 1, "ps")
NG = len({x.split(":")[0] for x in sched if ":" in x})
L0 = Loader()
k0 = min([i for i, x in enumerate(sched) if ":" in x] + [len(sched)])
for i in range(k0): L0.step(sched[i])
k1 = max([i for i, x in enumerate(sched) if ":" in x] + [k0 - 1]) + 1
def rung(gi, hi):
    Lg = L0.copy()
    for x in sched[k0:hi]:
        if ":" not in x or int(x.split(":")[0]) == gi: Lg.step(x.split(":")[-1])
    return Lg
Lg = L0
if NG:
    pb = oi("parbit", 4)
    A({2: f"s_bfe_u32 s78, s5, {hex(0x10000 | pb)}", 4: f"s_bfe_u32 s78, s5, {hex(0x20000 | pb)}", 3: "s_mul_i32 s78, s5, 3\ns_lshr_b32 s78, s78, 5"}[NG])
    if "x0" in opts:
        del A.lines[-(2 if NG == 3 else 1):]
        if NG == 4: A(f"s_bfe_u32 s78, s5, {hex(0x10000 | pb)}\ns_cmp_eq_u32 s4, 0\ns_cselect_b32 s13, 2, 0\ns_add_u32 s78, s78, s13")
        else: A(f"s_bfe_u32 s78, s5, {hex(0x10000 | pb)}\ns_cmp_eq_u32 s4, 0\ns_cselect_b32 s78, 2, s78")
    while True:
        sa, sl = len(A.lines), lbl[0]
        sg = {rung(gi, k1).sigof() for gi in range(NG)}
        del A.lines[sa:]; lbl[0] = sl
        if len(sg) == 1: break
        k1 += 1; assert k1 <= len(sched)
    for gi in range(1, NG): A(f"s_cmp_eq_u32 s78, {gi}\ns_cbranch_scc1 L_g{gi}")
    for gi in range(NG):
        if gi: A(f"L_g{gi}:")
        Lg = rung(gi, k1)
        if gi < NG - 1 or PADS: A("s_branch L_merge")
        if PADS: A("L_hole0:" if gi == 0 else f"L_holeg{gi}:"); A(f"s_branch L_holeg{gi+1}" if gi < NG - 1 else "s_branch L_hole1")
    A("L_merge:")
    for x in sched[k1:]: Lg.step(x)
assert Lg.cur == len(bars) - 2 - len(EF)
if PADS and not NG: HOLE0 = True
for gi in range(max(NG, 1)):
    kp = ''.join(x.split(':')[-1][1:] for x in sched if x.split(':')[-1][0] == 'k' and (':' not in x or int(x.split(':')[0]) == gi))
    assert not kp or sorted(kp) == sorted('01234567'), kp
if "show" in opts:
    for it in first: print(it, "first", bars[first[it]], "free", bars[free[it]] if free.get(it, 999) < 999 else None)
A(f"""s_lshl_b32 s13, s11, 2
s_add_u32 s13, s13, s9
s_lshl_b32 s13, s13, 3
s_add_u32 s13, s13, s4
s_lshl_b32 s14, s13, 2
s_add_u32 s14, s14, s3
s_lshl_b32 s14, s14, 13
s_add_u32 s14, s14, {WS_PART}
s_add_u32 s15, s14, 4096
s_lshl_b32 s75, s3, {WSH}
s_add_u32 s13, s77, s75
s_lshl_b32 s75, s3, 6
s_lshl_b32 s77, s9, 8
s_add_u32 s75, s75, s77
s_lshl_b32 s76, s72, 4
v_add_u32 v1, s76, v4
v_lshlrev_b32 v1, 10, v1
v_bfe_u32 v2, v0, 4, 1
v_lshl_add_u32 v1, v2, 5, v1
v_lshrrev_b32 v2, 5, v0
v_lshl_add_u32 v1, v2, 4, v1
v_add_u32 v1, s75, v1
v_add_u32 v14, {OWNP}, v14
v_and_b32 v22, 7, v0
v_lshlrev_b32 v22, 2, v22
s_mov_b32 s77, 0xffff0000
s_mov_b32 s76, 0""")
def acc(p):
    for d in range(4):
        r = 64 + 4*p + d
        if p == 0: A(f"v_lshlrev_b32 v{48+2*d}, 16, v{r}\nv_and_b32 v{49+2*d}, s77, v{r}")
        else: A(f"v_lshlrev_b32 v2, 16, v{r}\nv_and_b32 v3, s77, v{r}\nv_pk_add_f32 v[{48+2*d}:{49+2*d}], v[{48+2*d}:{49+2*d}], v[2:3]")
FP = oi("fp", 0); PS = oi("ps", 0)
ZB = "s_barrier\nds_read_b128 v[40:43], v14\nds_read_b128 v[44:47], v14 offset:1024"
if oi("msum", 1):
    A("""v_bfe_u32 v2, v0, 2, 2
v_lshrrev_b32 v3, 4, v0
v_and_b32 v5, 1, v0
v_lshlrev_b32 v5, 4, v5
v_mov_b32 v6, 0x3f80
v_lshlrev_b32 v5, v5, v6
v_cmp_eq_u32 vcc, v2, v3
v_bfe_u32 v6, v0, 1, 1
v_mov_b32 v98, 0
v_cndmask_b32 v5, 0, v5, vcc
v_cmp_eq_u32 vcc, 0, v6
v_mov_b32 v99, 0
v_mov_b32 v100, 0
v_cndmask_b32 v96, 0, v5, vcc
v_mov_b32 v101, 0
v_sub_u32 v97, v5, v96
v_mov_b32 v102, v96
v_mov_b32 v103, v97""")
TP = oi("tp", 3); ntp = [0]
def tpad():
    if TP: A(f"L_tp{ntp[0]}:"); ntp[0] += 1; A(f"s_cbranch_vccnz L_tp{ntp[0]}")
if TP: A("s_mov_b64 vcc, -1\ns_branch L_tp0"); A("L_tb:"); A("s_mov_b64 vcc, 0")
done_ = 0
for k, (at, cnt) in enumerate(EF):
    A(f"s_barrier                ; F{k}")
    for p in range(done_, cnt): A(f"s_xor_b32 s75, s13, {(7-p) << FSH}\ns_add_u32 s75, s75, {4*p}\ns_atomic_add s97, s[30:31], s75")
    done_ = cnt
ZAT = oi("zat", 0)
if ZE and not ZAT: A(ZB)
if oi("ps0", 0): A(f"s_sleep {oi('ps0', 0)}")
if FP:
    for i in range(8): A(f"s_mov_b32 s{80+i}, 0")
for p in range(7):
    if "dg3" in opts or "dg4" in opts: A(f"s_branch L_fd{p}")
    if p > 0: A((f"s_bitcmp1_b32 vcc_lo, {p}" if "vp" in opts else f"s_cmp_lg_u32 s{80+p}, 0") + f"\ns_cbranch_scc1 L_fd{p}")
    A(f"L_fw{p}:")
    if FP and p >= oi("fpfrom", 4):
        A(f"s_load_dwordx8 s[80:87], s[30:31], s13 glc\ns_add_u32 s76, s76, 1\ns_cmp_ge_u32 s76, {SPIN}\ns_sleep {FP}\ns_waitcnt lgkmcnt(12)\ns_cbranch_scc1 L_fd{p}")
    elif "vp" in opts:
        A(f"buffer_load_dword v21, v22, s[{SWS}:{SWS+3}], s13 offen sc1\ns_add_u32 s76, s76, 1\ns_waitcnt vmcnt(0)\nv_cmp_ne_u32 vcc, 0, v21\ns_cmp_ge_u32 s76, {SPIN}\ns_cbranch_scc1 L_fd{p}")
    else:
        if PS: A(f"s_sleep {PS}")
        A(f"s_load_dwordx8 s[80:87], s[30:31], s13 glc\ns_add_u32 s76, s76, 1\ns_cmp_ge_u32 s76, {SPIN}\ns_waitcnt lgkmcnt(0)\ns_cbranch_scc1 L_fd{p}")
    A((f"s_bitcmp0_b32 vcc_lo, {p}" if "vp" in opts else f"s_cmp_eq_u32 s{80+p}, 0") + f"\ns_cbranch_scc1 L_fw{p}")
    A(f"L_fd{p}:")
    if not ("dg1" in opts and p < 6) and "dg4" not in opts: A(f"buffer_load_dwordx4 {v(64+4*p,4)}, v13, s[{SWS}:{SWS+3}], {'s14' if p < 4 else 's15'} offen offset:{(p&3)*1024} sc1 {'nt' if 'fnt' in opts else ''}")
    stamp(f"f{p}")
    if ZE and ZAT and p == ZAT - 1: A(ZB)
    if p in (2, 6): tpad()
if not ZE: A(ZB)
if oi("msum", 1):
    A("s_waitcnt lgkmcnt(0)")
    for p in range(7):
        A(f"s_waitcnt vmcnt({6-p})")
        for nt in range(2): A(f"{MF} {v(40+4*nt,4)}, {v(96+4*nt,4)}, {v(64+4*p,4)}, {v(40+4*nt,4)}")
    tpad()
    A("s_nop 5")
    for d in range(4): A(f"v_cvt_pk_bf16_f32 v{56+d}, v{40+2*d}, v{41+2*d}")
else:
    for p in range(6):
        A(f"s_waitcnt vmcnt({6-p})"); acc(p)
        if p % TP == TP - 1 if TP else False: tpad()
    A("s_waitcnt lgkmcnt(0)")
    for d in range(4): A(f"v_pk_add_f32 v[{48+2*d}:{49+2*d}], v[{48+2*d}:{49+2*d}], v[{40+2*d}:{41+2*d}]")
    A("s_waitcnt vmcnt(0)"); acc(6)
    for d in range(4): A(f"v_cvt_pk_bf16_f32 v{56+d}, v{48+2*d}, v{49+2*d}")
A("s_nop 1\nv_permlane16_swap_b32 v56, v58\nv_permlane16_swap_b32 v57, v59")
A(f"buffer_store_dwordx4 v[56:59], v1, s[{SOUT}:{SOUT+3}], 0 offen {opts.get('outf', 'sc1').replace('+', ' ')}")
if "amp" in opts:
    if opts["amp"] == "end": A("s_waitcnt vmcnt(0)\ns_memrealtime s[98:99]")
    if opts["amp"] == "none": A("s_mov_b32 s98, s100")
    if opts["amp"] == "xcc": A("s_getreg_b32 s13, hwreg(HW_REG_XCC_ID)\ns_and_b32 s13, s13, 7\ns_mul_i32 s13, s13, 125\ns_add_u32 s98, s96, s13")
    if opts["amp"] == "skew":
        A(f"s_load_dword s98, s[30:31], {hex(0x40000 + 128*oi('ampref', 0))} glc\ns_waitcnt lgkmcnt(0)\ns_sub_u32 s98, s96, s98\ns_add_u32 s98, s98, 200\ns_add_u32 s98, s98, s96")
    A(f"s_cmp_lg_u32 s2, {oi('ampwg', 77)}\ns_cbranch_scc1 L_end\ns_waitcnt lgkmcnt(0)\ns_sub_u32 s13, s98, s100\ns_min_u32 s13, s13, 3000\ns_lshl_b32 s13, s13, 3\ns_add_u32 s13, s13, 4000\ns_add_u32 s13, s13, s100\ns_mov_b32 s15, 0")
    A("L_amp:")
    A("s_memrealtime s[98:99]\ns_waitcnt lgkmcnt(0)\ns_add_u32 s15, s15, 1\ns_cmp_gt_u32 s15, 30000\ns_cbranch_scc1 L_end\ns_sub_u32 s14, s98, s13\ns_cmp_lt_i32 s14, 0\ns_cbranch_scc1 L_amp")
if STAMP:
    A("s_waitcnt vmcnt(0)"); stamp("end")
    A("s_cmp_lg_u32 s3, 0\ns_cbranch_scc1 L_end")
    A(f"s_lshl_b32 s13, s2, 9\ns_add_u32 s13, s13, {hex(WS_STAMP)}\nv_lshlrev_b32 v253, 3, v0\nv_add_u32 v253, s13, v253")
    A(f"v_cmp_gt_u32 vcc, 48, v0\ns_nop 1\ns_mov_b64 exec, vcc")
    A(f"buffer_store_dwordx2 v[254:255], v253, s[{SWS}:{SWS+3}], 0 offen")
A("s_endpgm")
if TP: A(f"L_tp{ntp[0]}:"); A("s_branch L_tb")
if PADS: A("L_hole1:"); A("s_branch L_pad0")

out = HEADER
out += "; @launch grid=(256,1,1) block=(512,1,1) lds=163840\n"
if STAMP:
    nm = {0: "t0"}
    for i, n_ in enumerate(lst): nm[i + 1 + (i + 1 >= 30)] = "L" + n_
    for i, n_ in enumerate(cst): nm[48 + i] = n_
    out += "; stampnames " + " ".join(f"{k}={x}" for k, x in nm.items()) + "\n"
out += """;
; One persistent launch, one workgroup per CU (generated by a script of mine; all code is hand-scheduled).
;   waves 4-7 stream tiles into LDS (LDS-DMA, XOR-swizzled images); waves 0-3 run 16x16x32 bf16 MFMAs.
;   2. P is handed to the 3 other heads' workgroups of the same (hg, bp) through d_ws.
;   3. out[:, jn] partial = sum over the 4 heads of P_h (V_h Wo_h[:, jn])   (same function, re-associated).
;   4. the 8 head groups reduce-scatter bf16 partials through d_ws; the owner adds them in fp32 and stores out.
; with the L1 bypassed, so they hold for any workgroup placement.  Flag words are cleared at the start of every
; launch and the clear is certified through counters in d_debug before anyone sets a flag.
"""
out += f'.amdgcn_target "amdgcn-amd-amdhsa--gfx950"\n.text\n.globl {KN}\n.type {KN},@function\n' + A.text() + C.text() + "L_codeend:\n"
out += '.section .rodata,"a"\n' + kd(KN, 256)
if "nopad" not in opts:
    import subprocess, re
    def addrs(text, lab='L_back'):
        open("_ap.s", "w").write(text)
        subprocess.run(["clang", "-x", "assembler", "-target", "amdgcn-amd-amdhsa", "-mcpu=gfx950", "-c", "_ap.s", "-o", "_ap.o"], check=True)
        d = subprocess.run(["llvm-objdump", "-d", "--mcpu=gfx950", "_ap.o"], capture_output=True, text=True).stdout
        d = d[d.index(f"<{lab}>:"):]
        return [int(m.group(1), 16) + oi("stub", 0x300) for m in re.finditer(r"// ([0-9A-F]{12}):", d)]
    if oi("lhole", 0):
        lines = out.split("\n"); i0 = lines.index("L_loader:"); i1 = lines.index("L_tb:") if TP else lines.index("L_fw0:")
        ins = [i for i in range(i0, i1) if lines[i].startswith("    ") and not lines[i].strip().startswith(";")]
        ad = addrs(out, "L_loader")
        cross = [j for j in range(1, len(ins)) if ad[j] // 4096 != ad[j-1] // 4096]
        assert len(cross) <= 1
        if cross:
            j = ins[cross[0]]
            ih = lines.index("L_hole1:"); lines[ih] = "L_hole2:"
            lines[j:j] = ["    s_branch L_hskip", "L_hole1:", "    s_branch L_hole2", "L_hskip:"]
            out = "\n".join(lines)
    k = 0
    while True:
        lines = out.split("\n"); i0 = lines.index("L_back:")
        ins = [i for i in range(i0, lines.index('L_end:')) if lines[i].startswith("    ") and not lines[i].strip().startswith(";")]
        ad = addrs(out)
        cross = [j for j in range(1, min(len(ad), len(ins))) if ad[j] // 4096 != ad[j-1] // 4096]
        if k >= len(cross): break
        j = ins[cross[k]]
        ie = lines.index(f"L_pad{k}:"); lines[ie] = f"L_pad{k+1}:"
        lines[j:j] = [f"L_pad{k}:", f"    s_cbranch_vccnz L_pad{k+1}"]
        out = "\n".join(lines); k += 1
open(sys.argv[1], "w").write(out)
```

```python
import sys, math, struct
from collections import defaultdict
from common import *
opts = dict(a.split("=") if "=" in a else (a, "1") for a in sys.argv[2:])
def oi(k, d): return int(opts.get(k, d))
STAMP = "stamp" in opts
NTK = "" if "nont" in opts else "nt"
MF = "v_mfma_f32_16x16x32_bf16"
KN = NAME + "_kernel"
WSB = int(opts.get('wsb', '0'), 0)
WS_P, WS_PART, WS_FLAG, WS_STAMP = 0, 0x800000, 0x400000, 0x9000000
SPIN = 1 << 18
K1 = 1024
RX = {'0': 's_mov_b32 @, 0', '1': 's_lshl1_add_u32 @, s9, s11\ns_and_b32 @, @, 7\ns_lshl_b32 @, @, 10', '2': 's_and_b32 @, s9, 1\ns_lshl_b32 @, @, 12', '3': 's_lshl_b32 @, s11, 10'}[opts.get('rx', '1')]
SA = opts.get('sa', 'pf')
JN = {'1': 's_add_u32 s9, s8, s11', '2': 's_lshl1_add_u32 s9, s11, s8', '0': 's_mov_b32 s9, s8'}[opts.get('jn', '2')]
FSH = oi('fsh', 10); WSH = FSH - 2 if FSH > 8 else 5
SSET = set(opts["sset"].split(",")) if "sset" in opts else None

DEF = ("S0 setup S1 clr B0 S2 B1 0:atm 0:K0 S3 B2 1:atm 1:K0 S4 B3 0:K1 S5 B4 1:K1 S6 B5 S7 B6 V0 U0 B7 V1 U1 BK ci U2 B8 cw B9 V2 S11 B10 S12 B11 S13 B12 S14 B13 pi S15 B14 pw "
       "P1a P2a P3a B15 P1b P2b P3b Pa Pb")
U = lambda u: (u * 16 * K1, 16 * K1)
LOC = {}
def place(prefix, i0, units):
    for i, u in enumerate(units): LOC[f"{prefix}{i0+i}"] = U(u)
place("X", 0, [int(c) for c in opts.get("xu", "01230123")])
place("W", 0, [int(c) for c in opts.get("wu", "45674567")])
place("V", 0, [int(c) for c in opts.get("vu", "01289012")])
place("U", 0, [int(c) for c in opts.get("uu", "45674567")])
LOC["K0"], LOC["K1"] = U(8), U(9)
LOC["P0"] = LOC["X7"]
place("P", 1, [int(c) for c in opts.get("pu", "894")])
FIN = LOC["P0"][0]

C = Asm()
bars = []; first, free = {}, {}
q = []; pend = set(); dsn = [0]
def _ret(n):
    while len(q) > n:
        it = q.pop(0)[1]
        if it: pend.add(it)
def ds(ins, item=None):
    lim = 13 if STAMP else 15
    if len(q) >= lim: C(f"s_waitcnt lgkmcnt({lim-1})"); _ret(lim - 1)
    C(ins); dsn[0] += 1; q.append((dsn[0], item))
    if item:
        if item not in first: first[item] = len(bars) - 1
        free.pop(item, None)
    return dsn[0]
def need(*ids):
    pos = [k for k, (i, _) in enumerate(q) if i in ids]
    if pos:
        n = len(q) - 1 - max(pos); C(f"s_waitcnt lgkmcnt({n})"); _ret(n)
def drain():
    if q: C("s_waitcnt lgkmcnt(0)"); _ret(0)
def bar(name):
    if opts.get("diagslp") == name: C("s_sleep 5")
    bars.append(name); C(f"s_barrier                ; {name}"); cstamp(name)
    live = {it for _, it in q}
    for it in list(pend):
        if it not in live: free[it] = len(bars) - 1; pend.discard(it)
cst = []; CREG = list(range(32, 56, 2)) + [60, 62, 92, 94]
def cstamp(name):
    if STAMP and SSET is not None and name in SSET:
        i = len(cst); cst.append(name); assert i < 16
        if len(q) > 12: C("s_waitcnt lgkmcnt(12)"); _ret(12)
        C(f"s_mem{'real' if 'rt' in opts else ''}time s[{CREG[i]}:{CREG[i]+1}]")
I = lambda x: (lambda: C(x))
npad = [0]
PADS = [int(x) for x in opts.get("pads", "").split(",") if x] or ([-1] if "nopad" not in opts else [])
def pad():
    C(f"L_pad{npad[0]}:"); npad[0] += 1; C(f"s_cbranch_vccnz L_pad{npad[0]}")

VX, VW, LIN0, VOWN = 4, 8, 16, 17
TM = 18
ACC, BR0, PR, VWS = 24, 88, 112, 128
BR = [BR0 + 4*i for i in range(6)]
QB, SC, PB, VK = VWS + 96, VWS + 64, VWS + 48, VWS + 32
if "noal2" not in opts: C(".p2align 12")
C("L_compute:")
if "prio" in opts: C(f"s_setprio {opts['prio']}")
srd_consts(C, [SWS])
C(f"""v_and_b32 v1, 15, v0
v_lshrrev_b32 v2, 4, v0
v_bfe_u32 v3, v0, 1, 3
v_xor_b32 v3, v3, v2
v_lshlrev_b32 v3, 4, v3
v_lshl_add_u32 v3, v1, 7, v3
s_lshl_b32 s70, s3, 12
v_add_u32 v{VX}, s70, v3
v_xor_b32 v{VX+1}, 64, v{VX}
v_add_u32 v{VX+2}, 0x20000, v3
v_xor_b32 v{VX+3}, 64, v{VX+2}
v_lshrrev_b32 v3, 1, v2
v_xor_b32 v3, v3, v1
v_lshlrev_b32 v3, 4, v3
v_lshl_add_u32 v3, v1, 8, v3
v_and_b32 v18, 1, v2
v_lshl_add_u32 v3, v18, 3, v3
s_lshr_b32 s13, s3, 1
s_lshl_b32 s13, s13, 14
s_add_u32 s13, s13, 0x20000
v_add_u32 v{VK}, s13, v3
v_lshlrev_b32 v{LIN0}, 4, v0
v_add_u32 v{VOWN}, s70, v{LIN0}
v_bfe_u32 v1, v0, 2, 2
v_and_b32 v3, 3, v0
v_lshlrev_b32 v3, 3, v3
v_lshl_add_u32 v19, v18, 2, v1
v_lshl_add_u32 v20, v2, 3, v1
v_lshlrev_b32 v20, 8, v20
v_lshl_add_u32 v20, v19, 5, v20
v_add_u32 v20, v20, v3
v_add_u32 v{VW}, 0x10000, v20""")
for i in range(1, 8): C(f"v_xor_b32 v{VW+i}, {i*32}, v{VW}\nv_xor_b32 v{VK+i}, {i*32}, v{VK}")
assert SA == "pf" or SA == "dpf"
C.c("scalar offsets: s80..86 partial slots, s72..78 their flag words, s64 own P block")
C(f"""s_lshl2_add_u32 s13, s11, s9
s_lshl3_add_u32 s13, s13, s4
s_lshl2_add_u32 s13, s13, s3
s_lshl_b32 s65, s13, 13
s_lshl_b32 s66, s13, {WSH}
{RX.replace("@", "s14")}
s_add_u32 s65, s65, s14""")
for p in range(7):
    C(f"s_xor_b32 s{80+p}, s65, {hex(WS_PART | ((7-p) << 15) | (p << 10))}\ns_xor_b32 s{72+p}, s66, {hex(WS_FLAG | ((7-p) << FSH) | p*4)}")
C(f"""s_lshl3_add_u32 s13, s11, s4
s_lshl2_add_u32 s13, s13, s8
s_lshl_b32 s64, s13, 14""")
cs = struct.unpack("<I", struct.pack("<f", math.log2(math.e) / math.sqrt(128)))[0]
C(f"s_mov_b32 s68, {hex(cs)}\ns_mov_b32 s69, {hex(cs)}\ns_lshl_b32 s71, s3, 6\ns_mov_b32 s87, 1")
C("s_waitcnt lgkmcnt(0)")
srd_ptrs(C, [SWS])
if oi("pfm", 0) == 2: C("global_load_dword v130, v131, s[6:7]")
if PADS:
    C.c("instruction prefetch stops at 4 KB pages and jump targets: visit them once while the first tiles are in flight")
    C("s_waitcnt vmcnt(0)\ns_mov_b64 vcc, -1\ns_branch L_hole" + ("0" if ":" in opts.get("sched", DEF) else "1")); C("L_back:"); C("s_mov_b64 vcc, 0")

WP = oi('wp', 1)
BG = oi('bg', 1)
import os
BURN = int(os.environ.get('BURN', 0))
class Stream:
    def __init__(s_): s_.e = []; s_.fill = defaultdict(list); s_.before = defaultdict(list); s_.id = defaultdict(list); s_.hold = {}
    def rd(s_, m, k): s_.id[m].append(s_.e[m][0][k](BR[m % 6]))
    def prologue(s_, lo):
        for m in range(lo, lo + 6):
            for k in range(len(s_.e[m][0])): s_.rd(m, k)
    def run(s_, lo, hi, stop):
        for m in range(lo, hi):
            for f in s_.before.pop(m, []): f()
            cstamp(f'e{m}')
            if m in PADS: s_.fill[2*m].append(pad)
            assert len(s_.id[m]) == len(s_.e[m][0]), m
            for hh in range(2):
                a_, b_, d, fst, deps = s_.e[m][1][hh ^ (m & 1)]
                extra = s_.id[m+1] if (WP and m % 2 == 0 and m + 1 < hi and m > lo) else []
                need(*s_.id[m], *extra, *deps())
                R = v(BR[m % 6], 4)
                C(f"{MF} {v(d,4)}, {R if a_ is None else v(a_,4)}, {R if b_ is None else v(b_,4)}, {'0' if fst else v(d,4)}")
                if hh == 0 and m > lo and m + 5 < stop and len(s_.e[m+5][0]) == 2: s_.rd(m + 5, 1)
                if hh == 1 and m + 6 < stop: s_.rd(m + 6, 0)
                if BURN and m < 144 and (hh == 0 or m % 2 == 0) and not s_.fill.get(2*m + hh): C(f"v_mul_lo_u32 v2, v{BR[m % 6] + hh}, v{BR[m % 6] + 2 + hh}" if BURN > 1 else f"v_mul_f32 v2, v{BR[m % 6] + hh}, v{BR[m % 6] + 2 + hh}")
                for f in s_.fill.pop(2*m + hh, []): f()
S = Stream(); pid = {}
class Place:
    def __init__(s_): s_.req = []
    def slot(s_, lo, hi):
        l = []; s_.req.append((lo, hi, l)); return l
    def load(s_, g_):
        m, hh = divmod(g_, 2); n = len(S.fill.get(g_, []))
        if hh: n += (m + 6 < len(S.e) and not (m < 144 <= m + 6)) + (m % 2 == 1 or not WP) + len(S.before.get(m + 1, []))
        else: n += (m + 5 < len(S.e) and len(S.e[m+5][0]) == 2)
        return n
    def run(s_):
        groups = []
        for r in s_.req:
            if groups and r[0] <= groups[-1][-1][1] and r[0] >= groups[-1][-1][0]: groups[-1].append(r)
            else: groups.append([r])
        for grp in groups:
            extra = {}
            while True:
                used = {}; cur = 0; asg = []; bad = None
                for lo, hi, l in grp:
                    cur = max(cur, lo)
                    while s_.load(cur) + used.get(cur, 0) >= 2 + extra.get(cur, 0): cur += 1
                    if cur > hi: bad = (lo, hi); break
                    used[cur] = used.get(cur, 0) + 1; asg.append(cur)
                if not bad: break
                cand = min(range(bad[0], bad[1] + 1), key=lambda x: (extra.get(x, 0), -(s_.load(x) >= 2), sum(extra.get(y, 0) for y in range(x - 2, x + 3)), x))
                extra[cand] = extra.get(cand, 0) + 1
            for gq, (lo, hi, l) in zip(asg, grp): S.fill[gq] += l
            if "show" in opts: print("placed", len(grp), "extra", sum(extra.values()), asg)
PLACE = Place()
def xaddr(a, ss): return (VX + ss + (2 if a >= 128*K1 else 0), a % 65536)
def x_rd(n, qt):
    it = f"X{n//2}"; r, o = xaddr(LOC[it][0], n & 1); assert LOC[it][0] < 65536
    return lambda: pid.__setitem__(("x", n, qt), ds(f"ds_read_b128 {v(PR+8*(n&1)+4*qt,4)}, v{r} offset:{o + qt*2048}", it))
for n in range(16):
    for mt in range(8):
        it = f"W{n//2}"
        rds = [lambda r, it=it, n=n, mt=mt, e=e: ds(f"ds_read_b64_tr_b16 {v(r+2*e,2)}, v{VW + (mt ^ (4*e))} offset:{LOC[it][0]-65536 + (n&1)*8192 + e*1024}", it) for e in range(2)]
        S.e.append((rds, [(None, PR + 8*(n&1) + 4*qt, ACC + 8*mt + 4*qt, n == 0, lambda n=n, qt=qt: [pid[("x", n, qt)]]) for qt in range(2)]))
    if n < 15:
        for qt in range(2): S.fill[2*(8*n + 2 + 2*qt)].append(x_rd(n + 1, qt))
    if n & 1 and n < 15: S.before[8*n + 2].append(lambda n=n: bar(f"B{(n+1)//2}"))
if oi("bk", 1): S.before[122].append(lambda: bar("BK"))
QKO = oi("qko", 0)
qk = [(kt, s_) for s_ in range(4) for kt in range(4)]
if QKO: qk = qk[:8] + [(0, 2), (1, 2), (0, 3), (1, 3), (2, 2), (2, 3), (3, 2), (3, 3)]
for kt, s_ in qk:
    rds = [lambda r, kt=kt, s_=s_, e=e: ds(f"ds_read_b64{'_tr_b16' if 'ktr' in opts else ''} {v(r+2*e,2)}, v{VK + 2*s_ + e} offset:{kt*4096}", "K") for e in range(2)]
    S.e.append((rds, [(None, QB + 16*qt + 4*s_, SC + 16*qt + 4*kt, s_ == 0, lambda: []) for qt in range(2)]))
for mt in range(8):
    for k, (qt, i) in enumerate([(0, 0), (0, 1), (1, 0), (1, 1)]):
        (PLACE.slot(2*(120 + mt) + 6, 2*(128 + 4*(mt >> 1)) - 2) if oi("cap", 2) > 1 else S.fill[2*123 + (4*mt + k if not QKO else (4*mt + k) * 7 // 8)]).append(I(f"v_cvt_pk_bf16_f32 v{QB+16*qt+2*mt+i}, v{ACC+8*mt+4*qt+2*i}, v{ACC+8*mt+4*qt+2*i+1}"))
adr = [f"v_subrev_u32 v{VX+k}, s70, v{VX+k}" for k in range(2)] + [f"v_xor_b32 v{VW+k}, s71, v{VW+k}" for k in (0, 1, 4, 5)]
for k, x in enumerate(adr): S.fill[2*(117 + k) if k < 2 else 2*(130 + k)].append(I(x))
M = lambda qt: TM + 2*qt
if QKO:
    for qt in range(2):
        S.fill[2*142 + 0].append(I(f"v_max3_f32 v{M(qt)}, v{SC+16*qt}, v{SC+16*qt+1}, v{SC+16*qt+2}"))
        S.fill[2*143 + 0].append(I(f"v_max3_f32 v{M(qt)}, v{M(qt)}, v{SC+16*qt+3}, v{SC+16*qt+4}"))
        S.fill[2*143 + 1].append(I(f"v_max3_f32 v{M(qt)}, v{M(qt)}, v{SC+16*qt+5}, v{SC+16*qt+6}"))
E2 = 144
OA = VWS + 64
LW = {0: LIN0, 1: VW + 2, 2: VW + 3}
VZ, V1 = VW + 6, VW + 7
def u_rd(n, k):
    it = f"U{n//2}"; nt, e = k >> 1, k & 1
    return lambda: pid.__setitem__(("u", n, k), ds(f"ds_read_b64_tr_b16 {v(PR+8*(n&1)+4*nt+2*e,2)}, v{VW + (nt ^ (4*e))} offset:{LOC[it][0]-65536 + (n&1)*8192 + e*1024}", it))
def vwreg(s_, b, u, nt):
    return ACC + 8*(4*b + 2*u) + 4*nt if s_ in (0, 3) else VWS + 32*(s_ - 1) + 16*b + 8*u + 4*nt
def add_vw(n):
    m0 = len(S.e)
    for rt in range(8):
        it = f"V{n//2}"; r0, o = xaddr(LOC[it][0], n & 1)
        rds = [lambda r, it=it, r0=r0, o=o, rt=rt: ds(f"ds_read_b128 {v(r,4)}, v{r0} offset:{o + rt*2048}", it)]
        S.e.append((rds, [(None, PR + 8*(n&1) + 4*nt, ACC + 8*rt + 4*nt, n % 4 == 0, lambda n=n, nt=nt: [pid[("u", n, 2*nt)], pid[("u", n, 2*nt+1)]]) for nt in range(2)]))
    if n:
        for k in range(4): S.fill[2*(m0 - 6 + k)].append(u_rd(n, k))
        if n % 2 == 0: (S.fill[2*(m0 - 7)] if BG and n > 4 else S.before[m0 - 6]).append(lambda n=n: bar(f"B{8 + n//2}"))
    if n % 4 == 3:
        slots = []
        for gq in range(6, 30):
            slots += [gq] * (2 if (gq % 2 == 0 and (gq // 2) % 8 in (6, 7, 0, 1)) or gq in (6, 8, 10) else 1)
        for rt in range(8):
            for k, (nt, i) in enumerate([(0, 0), (0, 1), (1, 0), (1, 1)]):
                if n == 3: dl = 2*(m0 + 8 + 4*(rt >> 1)) - 2
                elif n == 15: dl = 2*(m0 + 8 + 4 + ((rt >> 1) & 1) + 24*(rt >> 2)) - 2
                else: dl = 2*(m0 + 8 + rt) - 1
                (PLACE.slot(2*(m0 + rt) + 6, dl) if oi("cap", 2) else S.fill[(2*(m0 + 3) + 4*rt + k) if (n in (3, 15) and oi("cvs", 1)) else (2*m0 + slots[4*rt + k]) if oi("cv2", 1) else 2*(m0 + rt + 4) + (k >> 1)]).append(I(f"v_cvt_pk_bf16_f32 v{vwreg(n//4, rt>>2, (rt>>1)&1, nt)+2*(rt&1)+i}, v{ACC+8*rt+4*nt+2*i}, v{ACC+8*rt+4*nt+2*i+1}"))
NPQ = oi("npq", 2)
def add_pv(p, s_, u):
    it = "P0" if s_ == 0 else f"P{s_}" + "abcd"[p * NPQ // 8]; a = LOC[f"P{s_}"][0] + p*2048 + u*1024
    rds = [lambda r: ds(f"ds_read_b128 {v(r,4)}, v{LW[a // 65536]} offset:{a % 65536}", it)]
    S.e.append((rds, [(vwreg(s_, p >> 2, u, nt), None, OA + 8*p + 4*nt, s_ == 0 and u == 0, lambda: []) for nt in range(2)]))
for n in range(4): add_vw(n)
EP = len(S.e)
for b_ in range(2):
    for u in range(2):
        for p in range(4*b_, 4*b_ + 4): add_pv(p, 0, u)
for n in range(4, 16): add_vw(n)
E3 = len(S.e)
for p in range(8):
    for s_ in range(1, 4):
        for u in range(2): add_pv(p, s_, u)
for s_ in range(1, 4):
    for hf in range(NPQ): LOC[f"P{s_}{'abcd'[hf]}"] = (LOC[f"P{s_}"][0] + hf*16384//NPQ, 16384//NPQ)
for hf in range(NPQ): (S.fill[2*(E3 + 48*hf//NPQ - 6)] if BG else S.before[E3 + 48*hf//NPQ - 6]).append(lambda hf=hf: bar("P" + "abcd"[hf]))
for k, x in enumerate([f"v_add_u32 v{LW[1]}, 0x10000, v{LIN0}", f"v_add_u32 v{LW[2]}, 0x20000, v{LIN0}"] + ([f"v_mov_b32 v{VZ}, 0"] if STAMP else [])):
    S.fill[2*((EP if oi('sovl', 0) else E2) + 6 + k) + 1].append(I(x))
vmq = []; sent = set()
def flag(p):
    if "f" in SA:
        C(f"s_waitcnt vmcnt({len(vmq) - 1 - vmq.index(f'D{p}')})\ns_atomic_add s87, s[30:31], s{72+p}"); sent.add(p); return
    sent.add(p)
    C(f"s_waitcnt vmcnt({len(vmq) - 1 - vmq.index(f'D{p}')})\ns_mov_b64 exec, 1")
    C(f"buffer_store_dword v{V1}, v{VZ}, s[{SWS}:{SWS+3}], s{72+p} offen sc1\ns_mov_b64 exec, -1"); vmq.append(f"F{p}")
FLAG_LAG = oi("flag", 7)
for p in range(7):
    g0 = 2*(E3 + 6*(p+1) + 2); r = PR + 4*(p & 3)
    if p >= oi("fastsend", 7):
        ge = 2*(E3 + 6*(p+1) + 1) + 1
        S.fill[ge].append(I("s_nop 1"))
        for i in range(4): S.fill[ge].append(I(f"v_cvt_pk_bf16_f32 v{r+i}, v{OA+8*p+2*i}, v{OA+8*p+2*i+1}"))
        S.fill[ge].append(lambda p=p, r=r: (C(f"buffer_store_dwordx4 {v(r,4)}, v{LIN0}, s[{SWS}:{SWS+3}], s{80+p} offen sc1"), vmq.append(f"D{p}")))
        if p >= FLAG_LAG: S.fill[g0 + 6].append(lambda p=p: flag(p - FLAG_LAG))
        continue
    for i in range(4): S.fill[g0 + (2*((i >> 1) ^ 1) if oi("cv3", 1) else 1 + (i >> 1))].append(I(f"v_cvt_pk_bf16_f32 v{r+i}, v{OA+8*p+2*i}, v{OA+8*p+2*i+1}"))
    S.fill[g0 + oi('stg', 4)].append(lambda p=p, r=r: (C(f"buffer_store_dwordx4 {v(r,4)}, v{VZ if 'dg2' in opts and p < 6 else LIN0}, s[{SWS}:{SWS+3}], s{80+p} offen sc1"), vmq.append(f"D{p}")))
    if p >= FLAG_LAG: S.fill[g0 + 6].append(lambda p=p: flag(p - FLAG_LAG))
PLACE.run()
EF = [tuple(int(y) for y in x.split(":")) for x in opts.get("ef", "").split(",") if x]
def efbar(k, cnt):
    C(f"s_waitcnt vmcnt({len(vmq) - cnt})"); assert len(vmq) >= cnt
    sent.update(range(cnt)); bar(f"F{k}")
for k, (at, cnt) in enumerate(EF): S.before[E3 + at].append(lambda k=k, cnt=cnt: efbar(k, cnt))
if oi("sovl", 0):
    sm = []
    def op(x, c=4): sm.append((c, I(x)))
    for qt in range(2): op(f"v_max3_f32 v{M(qt)}, v{SC+16*qt}, v{SC+16*qt+1}, v{SC+16*qt+2}", 5)
    for i in range(3, 15, 2):
        for qt in range(2): op(f"v_max3_f32 v{M(qt)}, v{M(qt)}, v{SC+16*qt+i}, v{SC+16*qt+i+1}", 5)
    for qt in range(2): op(f"v_max_f32 v{M(qt)}, v{M(qt)}, v{SC+16*qt+15}")
    def xred(o_, fin, fc):
        a_, b_ = M(0), M(1)
        op("s_nop 1", 8); op(f"v_permlane32_swap_b32 v{a_}, v{b_}", 8); op(f"{o_} v{a_}, v{a_}, v{b_}"); op(f"v_mov_b32 v{b_}, v{a_}")
        op("s_nop 1", 8); op(f"v_permlane16_swap_b32 v{a_}, v{b_}", 8); op(f"{o_} v{a_}, v{a_}, v{b_}"); op(fin[0], fc); op(fin[1], fc)
        op("s_nop 1", 8); op(f"v_permlane32_swap_b32 v{a_}, v{b_}", 8)
    xred("v_max_f32", [f"v_mul_f32 v{M(1)}, s68, v{M(0)}", f"v_mul_f32 v{M(0)}, s68, v{M(0)}"], 4)
    SM = [M(0) + 1, M(1) + 1]
    op(f"v_fma_f32 v{SC}, v{SC}, s68, -v{M(0)}", 5)
    for i in range(32):
        op(f"v_exp_f32 v{SC+i}, v{SC+i}", 8)
        if i < 31: op(f"v_fma_f32 v{SC+i+1}, v{SC+i+1}, s68, -v{M((i+1)>>4)}", 5)
        j = i - 1
        if j >= 0 and j % 16: op(f"v_add_f32 v{SM[j>>4]}, v{SM[j>>4] if j % 16 > 1 else SC+j-1}, v{SC+j}")
    op(f"v_mov_b32 v{M(0)}, v{SM[0]}"); op(f"v_add_f32 v{M(1)}, v{SM[1]}, v{SC+31}")
    xred("v_add_f32", [f"v_rcp_f32 v{M(1)}, v{M(0)}", f"v_rcp_f32 v{M(0)}, v{M(0)}"], 8)
    wr = {}
    for t in range(4):
        for i in range(8): op(f"v_mul_f32 v{SC+8*t+i}, v{M(t>>1)}, v{SC+8*t+i}")
        for i in range(4): op(f"v_cvt_pk_bf16_f32 v{PB+4*t+i}, v{SC+8*t+2*i}, v{SC+8*t+2*i+1}", 5)
        sm.append((8, lambda t=t: wr.__setitem__("l", ds(f"ds_write_b128 v{VOWN}, {v(PB+4*t,4)} offset:{LOC['P0'][0] + t*1024}"))))
    sm.append((0, lambda: cstamp("sm")))
    g_lo, g_hi = 2*E2 - 1, 2*(E2 + oi("smend", 23))
    tot = sum(c for c, _ in sm); acc_ = 0
    for c, f in sm:
        S.fill[g_lo + int(acc_ * (g_hi - g_lo) / tot)].append(f); acc_ += c
    assert E2 + oi("smend", 23) < EP - 6
    S.before[EP - 6].append(lambda: (need(wr["l"]), bar("BP")))
    PUBC = oi("pubc", oi("smend", 23) + 1); EARLY8 = 1
    for t in range(4):
        S.fill[2*(E2 + PUBC + oi("pubd", 0)*t)].append(I(f"buffer_store_dwordx4 {v(PB+4*t,4)}, v{VOWN}, s[{SWS}:{SWS+3}], s64 offen offset:{t*1024} sc1"))
    S.fill[2*(E2 + oi("flgc", 66))].append(I(f"s_waitcnt vmcnt(0)\ns_mov_b64 exec, 15\nbuffer_store_dword v{V1}, v1, s[{SWS}:{SWS+3}], s67 offen sc1\ns_mov_b64 exec, -1"))

    for k in range(4): S.fill[2*(E2 - 5 + k)].append(u_rd(0, k))
    S.before[E2 - 6].append(lambda: bar("B8"))
    if oi("bq", 0): S.before[E2 + 1].append(lambda: bar("BQ"))
    bar("B0"); C("s_waitcnt vmcnt(0)")
    x_rd(0, 0)(); x_rd(0, 1)(); S.prologue(0)
    S.run(0, len(S.e), len(S.e))
    assert not S.fill and not S.before, (dict(S.fill), dict(S.before))
else:
    bar("B0")
    if not PADS: C("s_waitcnt vmcnt(0)")
    x_rd(0, 0)(); x_rd(0, 1)(); S.prologue(0)
    S.run(0, E2, E2)
    cstamp("qk")
    if oi("bq", 0): bar("BQ")
    C.c("softmax over the 64 keys (16 per lane x 4 lane groups), two 16-query tiles")
    if not QKO:
        C("s_nop 2")
        for qt in range(2): C(f"v_max3_f32 v{M(qt)}, v{SC+16*qt}, v{SC+16*qt+1}, v{SC+16*qt+2}")
    for i in range(7 if QKO else 3, 15, 2):
        if QKO and i == 11: C("s_nop 1")
        for qt in range(2): C(f"v_max3_f32 v{M(qt)}, v{M(qt)}, v{SC+16*qt+i}, v{SC+16*qt+i+1}")
    for qt in range(2): C(f"v_max_f32 v{M(qt)}, v{M(qt)}, v{SC+16*qt+15}")
    def xred(op, fin, fill):
        a_, b_ = M(0), M(1)
        def gap(n):
            for _ in range(n): fill.pop(0)() if fill else C("s_nop 0")
        gap(2); C(f"v_permlane32_swap_b32 v{a_}, v{b_}\n{op} v{a_}, v{a_}, v{b_}\nv_mov_b32 v{b_}, v{a_}")
        gap(2); C(f"v_permlane16_swap_b32 v{a_}, v{b_}\n{op} v{a_}, v{a_}, v{b_}\n{fin[0]}\n{fin[1]}")
        gap(2); C(f"v_permlane32_swap_b32 v{a_}, v{b_}")
    xred("v_max_f32", [f"v_mul_f32 v{M(1)}, s68, v{M(0)}", f"v_mul_f32 v{M(0)}, s68, v{M(0)}"], [])
    pkf = lambda i: f"v_pk_fma_f32 {v(SC+2*i,2)}, {v(SC+2*i,2)}, s[68:69], {v(M(i>>3),2)} op_sel_hi:[1,1,0] neg_lo:[0,0,1] neg_hi:[0,0,1]"
    SM = [TM + 4, 2]
    C(pkf(0))
    for i in range(16):
        C(f"v_exp_f32 v{SC+2*i}, v{SC+2*i}")
        if i < 15: C(pkf(i + 1))
        C(f"v_exp_f32 v{SC+2*i+1}, v{SC+2*i+1}")
        j = i - 1
        if j >= 0 and j % 8: C(f"v_pk_add_f32 {v(SM[j>>3],2)}, {v(SM[j>>3],2) if j % 8 > 1 else v(SC+2*j-2,2)}, {v(SC+2*j,2)}")
    C(f"v_add_f32 v{M(0)}, v{SM[0]}, v{SM[0]+1}\nv_pk_add_f32 {v(SM[1],2)}, {v(SM[1],2)}, {v(SC+30,2)}\nv_add_f32 v{M(1)}, v{SM[1]}, v{SM[1]+1}")
    EARLY8 = oi("early8", 0); pro = []
    if EARLY8:
        if EARLY8 == 1: bar("B8")
        pro = [u_rd(0, k) for k in range(4)] + [lambda m=m: S.rd(m, 0) for m in range(E2, E2 + 6)]
    xred("v_add_f32", [f"v_rcp_f32 v{M(1)}, v{M(0)}", f"v_rcp_f32 v{M(0)}, v{M(0)}"], pro)
    for f in pro: f()
    PUBC = oi("pubc", -3)
    pst = lambda t: f"buffer_store_dwordx4 {v(PB+4*t,4)}, v{VOWN}, s[{SWS}:{SWS+3}], s64 offen offset:{t*1024} sc1"
    E8T = oi("e8t", -1)
    for t in range(4):
        if t == E8T:
            bar("B8"); EARLY8 = 3
            for k in range(4): u_rd(0, k)()
            S.prologue(E2)
        for i in range(8*t, 8*t + 8, 2): C(f"v_pk_mul_f32 {v(SC+i,2)}, {v(SC+i,2)}, {v(M(t>>1),2)} op_sel_hi:[1,0]")
        for i in range(4): C(f"v_cvt_pk_bf16_f32 v{PB+4*t+i}, v{SC+8*t+2*i}, v{SC+8*t+2*i+1}")
        lastw = ds(f"ds_write_b128 v{VOWN}, {v(PB+4*t,4)} offset:{LOC['P0'][0] + t*1024}")
        if PUBC == -3: C(pst(t))
    S.before[E2 + 10].insert(0, lambda: need(lastw))
    cstamp("sm")
    if PUBC == -2:
        for t in range(4): C(pst(t))
    if not EARLY8:
        if not PUBC: drain()
        bar("B8")
        for k in range(4): u_rd(0, k)()
        S.prologue(E2)
    if PUBC == -1:
        for t in range(4): C(pst(t))
    if PUBC > 0:
        for t in range(4): S.fill[2*(E2 + PUBC + oi("pubd", 0)*t)].append(I(pst(t)))
    if "p" in SA: S.before[E2 + oi("pbar", 42)].insert(0, I("s_waitcnt vmcnt(0)"))
    elif PUBC: S.fill[2*(E2 + oi("flgc", 34))].append(I(f"s_waitcnt vmcnt(0)\ns_mov_b64 exec, 15\nbuffer_store_dword v{V1}, v1, s[{SWS}:{SWS+3}], s67 offen sc1\ns_mov_b64 exec, -1"))
    S.run(E2, len(S.e), len(S.e))
    assert not S.fill and not S.before, (dict(S.fill), dict(S.before))
cstamp("T")
C("s_nop 6")
OWNP = LOC["U7"][0]
C(f"v_add_u32 v1, s70, v{LW[OWNP // 65536]}")
for nt in range(2): ds(f"ds_write_b128 v1, {v(OA+56+4*nt,4)} offset:{OWNP % 65536 + nt*1024}")
ZE = oi("ze", 0)
if ZE == 1: drain(); bar("Z")
for p in range(7):
    if p not in sent: flag(p)
cstamp("fl")
if ZE != 1: drain(); bar("Z")
assert free["U7"] <= len(bars) - 2
if STAMP:
    C("s_cmp_lg_u32 s3, 0\ns_cbranch_scc1 L_end")
    C(f"s_lshl_b32 s13, s2, 9\ns_add_u32 s13, s13, {hex(WS_STAMP + 48*8)}")
    for i in range(len(cst)):
        C(f"s_waitcnt lgkmcnt(0)\nv_mov_b32 v2, s{CREG[i]}\nv_mov_b32 v3, s{CREG[i]}\nbuffer_store_dwordx2 v[2:3], v{VZ}, s[{SWS}:{SWS+3}], s13 offen offset:{8*i}")
C("L_end:"); C("s_endpgm")
if PADS: C(f"L_pad{npad[0]}:"); C("s_branch L_back")
for k in ("K0", "K1"): first[k], free[k] = first["K"], free["K"]
del first["K"], free["K"], first["P0"]
free["X7"] = 999

A = Asm()
lst = []
def stamp(name):
    if opts.get("amp") == name: A("s_memrealtime s[98:99]")
    if STAMP and (SSET is None or ("L" + name) in SSET):
        if name not in lst: lst.append(name)
        i = lst.index(name) + 1; i += (i >= 30); assert i < 48
        A(f"s_memtime s[98:99]\ns_memrealtime s[96:97]\ns_waitcnt lgkmcnt(0)\nv_writelane_b32 v254, s98, {i}\nv_writelane_b32 v255, s96, {i}")
if "noal" not in opts: A(".p2align 12")
A(".p2align 8"); A(f"{KN}:")
if "amp" in opts: A("s_memrealtime s[100:101]")
A(f"s_load_dwordx2 s[{SX}:{SX+1}], s[0:1], 0\ns_load_dwordx2 s[{SWQ}:{SWQ+1}], s[0:1], 24\ns_load_dwordx16 s[16:31], s[0:1], 0")
A("s_cmp_ge_u32 s2, 256\ns_cbranch_scc1 L_end")
if STAMP: A("s_memtime s[94:95]\ns_memrealtime s[92:93]")
A(f"""v_readfirstlane_b32 s3, v0
s_and_b32 s4, s2, 7
s_bfe_u32 s8, s2, 0x20003
s_lshr_b32 s11, s2, 5
""")
if "late0" in opts: A(f"s_cmp_lg_u32 s4, 0\ns_cbranch_scc1 L_nl\ns_waitcnt lgkmcnt(0)\ns_sleep {opts['late0']}"); A("L_nl:")
A("""s_bitcmp1_b32 s3, 8
s_cbranch_scc1 L_loader""")
NPF = "((L_codeend-L_pc)/1024+1)"
A.c("compute waves: pull this kernel's code into L2 (each workgroup a quarter)")
A("s_lshr_b32 s3, s3, 6\nv_and_b32 v0, 63, v0\ns_getpc_b64 s[6:7]")
A("L_pc:")
if oi("pfs", 0) == 0: A(f"s_lshl_b32 s13, s8, 2\ns_add_u32 s13, s13, s3\ns_mul_i32 s13, s13, {NPF}*64")
else:
    NPF = -(-NPF * 16 // (oi("pfs", 0) * 4)); A(f"s_lshr_b32 s13, s2, 3\ns_and_b32 s13, s13, {oi('pfs', 0) - 1}\ns_lshl_b32 s13, s13, 2\ns_add_u32 s13, s13, s3\ns_mul_i32 s13, s13, {NPF}*64")
A(f"v_min_u32 v1, {NPF}-1, v0\nv_lshlrev_b32 v1, 6, v1\nv_add_u32 v1, s13, v1")
A(f"v_min_u32 v1, L_codeend-L_pc-4, v1")
PFM = oi("pfm", 0)
if PFM == 1: A("s_waitcnt lgkmcnt(0)")
if PFM == 2: A("v_mov_b32 v131, v1")
elif PFM != 3: A("global_load_dword v130, v1, s[6:7]")
A(f"{JN}\ns_and_b32 s9, s9, 3\ns_branch L_compute")
A("L_loader:")
if "lprio" in opts: A(f"s_setprio {opts['lprio']}")
srd_consts(A, [SX, SWQ])
ROT = {"8": "s_lshl_b32 s12, s8, 1\ns_add_u32 s12, s12, s11", "8h": "s_lshl_b32 s12, s8, 1\ns_add_u32 s12, s12, s11\ns_add_u32 s12, s12, s4",
       "4": "s_add_u32 s12, s8, s11\ns_lshl_b32 s12, s12, 1", "4h": "s_add_u32 s12, s8, s11\ns_lshl_b32 s12, s12, 1\ns_add_u32 s12, s12, s4",
       "w8": "s_add_u32 s12, s4, s11", "w8x2": "s_lshl_b32 s12, s8, 2\ns_add_u32 s12, s12, s11\ns_add_u32 s12, s12, s4",
       "w4": "s_lshl1_add_u32 s12, s11, s4", "w2": "s_lshl2_add_u32 s12, s11, s4", "w1": "s_mov_b32 s12, s4", "w4x2": "s_lshl1_add_u32 s12, s8, s11\ns_lshl1_add_u32 s12, s12, s4",
       "2": "s_add_u32 s12, s8, s11\ns_lshl_b32 s12, s12, 2", "2h": "s_add_u32 s12, s8, s11\ns_lshl2_add_u32 s12, s12, s4"}[opts.get("rot", "2h")]
ROT0 = {"": "", "w4x2": "s_lshl1_add_u32 s13, s8, s11\ns_lshl_b32 s13, s13, 1\ns_cmp_eq_u32 s4, 0\ns_cselect_b32 s12, s13, s12",
        "w4": "s_lshl_b32 s13, s11, 1\ns_cmp_eq_u32 s4, 0\ns_cselect_b32 s12, s13, s12",
        "w8x2": "s_lshl2_add_u32 s13, s8, s11\ns_cmp_eq_u32 s4, 0\ns_cselect_b32 s12, s13, s12",
        "8": "s_lshl1_add_u32 s13, s8, s11\ns_cmp_eq_u32 s4, 0\ns_cselect_b32 s12, s13, s12"}[opts.get("rot0", "w4")]
A(f"""v_bfe_u32 v6, v0, 4, 4
v_bfe_u32 v1, v0, 3, 5
v_xor_b32 v2, v6, v0
v_and_b32 v2, 7, v2
v_lshlrev_b32 v2, 4, v2
v_lshl_add_u32 v8, v1, 10, v2
v_bfe_u32 v5, v0, 7, 1
v_lshlrev_b32 v5, 2, v5
v_xor_b32 v5, v5, v6
v_lshlrev_b32 v5, 1, v5
v_xor_b32 v5, v5, v0
v_and_b32 v5, 15, v5
v_lshlrev_b32 v5, 4, v5
v_lshl_add_u32 v9, v6, 13, v5
s_xor_b32 s74, s4, 7
s_lshl_b32 s13, s74, 14
s_and_b32 s14, s13, 0x4000
v_xor_b32 v8, s14, v8
s_xor_b32 s13, s13, s14
s_lshl_b32 s64, s11, 17
s_add_u32 s64, s64, s13
s_lshl2_add_u32 s10, s4, s8
s_lshl_b32 s65, s10, 8
{ROT}
{ROT0}
s_bfe_u32 s3, s3, 0x20006
s_lshl_b32 s67, s3, 10""")
KWAIT = [True]
if STAMP: A("s_waitcnt lgkmcnt(0)\nv_mov_b32 v254, -1\nv_mov_b32 v255, -1\nv_writelane_b32 v254, s94, 0\nv_writelane_b32 v255, s92, 0\ns_getreg_b32 s92, hwreg(HW_REG_XCC_ID)\ns_and_b32 s92, s92, 7\nv_writelane_b32 v254, s92, 30")
stamp("go")
def late_setup():
    srd_consts(A, [SK, SV, SWO, SOUT, SDBG, SWS]); srd_ptrs(A, [SK, SV, SWO, SOUT, SDBG, SWS])
    A(f"""v_lshl_add_u32 v11, v1, 8, v2
v_and_b32 v0, 63, v0
v_and_b32 v3, 7, v0
v_and_b32 v4, 15, v0
s_lshr_b32 s5, s2, 3
{JN}
s_and_b32 s9, s9, 3
s_lshl_b32 s13, s11, {FSH+5}
s_lshl_b32 s14, s4, {FSH}
s_add_u32 s13, s13, s14
s_add_u32 s79, s13, {WS_FLAG}
s_lshl_b32 s14, s9, {FSH+3}
s_add_u32 s77, s79, s14
v_mov_b32 v17, 0
v_lshl_add_u32 v12, v6, 10, v5
v_xor_b32 v5, v6, v4
v_lshlrev_b32 v5, 4, v5
v_lshl_add_u32 v10, v6, 8, v5
v_lshlrev_b32 v13, 4, v0
s_lshl_b32 s69, s11, 20
s_lshr_b32 s13, s74, 2
s_lshl_b32 s13, s13, 19
s_add_u32 s69, s69, s13
s_lshl_b32 s13, s10, 14
s_add_u32 s66, s69, s13
s_lshl_b32 s13, s4, 16
s_add_u32 s69, s69, s13
s_lshl_b32 s70, s4, 19
s_lshl_b32 s13, s9, 8
s_add_u32 s70, s70, s13
s_bfe_u32 s71, s11, {hex(0x10000 | oi('flipbit', 2))}
s_lshl_b32 s72, s11, 3
s_add_u32 s72, s72, s4
s_lshl_b32 s73, s72, 16
s_lshl_b32 s13, s3, 12
v_add_u32 v14, s13, v13
v_lshlrev_b32 v19, 2, v3
s_lshl_b32 s13, s11, 5
v_add_u32 v19, s13, v19
s_mov_b32 s76, 0""")
def load_ops(it):
    k, a = it[0], LOC[it][0]; i = int(it[1])
    def dma(vo, srd, soff, lds, fl=""):
        if it in opts.get("nt", "").split(",") or it[0] in opts.get("nt", "").split(","): fl += " nt"
        return f"s_add_u32 m0, s67, {lds}\n{soff}\nbuffer_load_dwordx4 v{vo}, s[{srd}:{srd+3}], s68 offen {fl} lds"
    if "dry" in opts and not (k in "XW" and i < 4) and k != "K": return "", []
    if k == "X":
        return (f"s_add_u32 s13, s12, {i}\ns_and_b32 s13, s13, 7\ns_lshl_b32 s14, s13, 7\ns_add_u32 s14, s14, s64",
                [dma(8, SX, f"s_xor_b32 s68, s14, {hex(qq*0x8000)}", a + qq*4096) for qq in range(4)])
    if k == "W":
        return (f"s_add_u32 s13, s12, {i}\ns_and_b32 s13, s13, 7\ns_lshl_b32 s15, s13, 19\ns_add_u32 s15, s15, s65",
                [dma(9, SWQ, f"s_add_u32 s68, s15, {qq*16*8192}", a + qq*4096, "nt" if "wnt" in opts and i == 0 else "") for qq in range(4)])
    if k == "K":
        return ("", [dma(10, SK, f"s_xor_b32 s68, s66, {hex(qq*4096 + i*0x80000)}", a + qq*4096, NTK) for qq in range(4)])
    hd = f"s_add_u32 s13, s8, {i>>1}\ns_and_b32 s13, s13, 3\ns_xor_b32 s75, s71, {i&1}\n"
    if k == "V":
        return (hd + "s_lshl_b32 s13, s13, 14\ns_lshl_b32 s75, s75, 7\ns_add_u32 s14, s13, s75\ns_add_u32 s14, s14, s69",
                [dma(11, SV, f"s_xor_b32 s68, s14, {hex((qq&1)*8192 + (qq>>1)*0x80000)}", a + qq*4096) for qq in range(4)])
    if k == "U":
        return (hd + "s_lshl_b32 s13, s13, 17\ns_lshl_b32 s75, s75, 16\ns_add_u32 s15, s13, s75\ns_add_u32 s15, s15, s70",
                [dma(12, SWO, f"s_add_u32 s68, s15, {qq*16*1024}", a + qq*4096) for qq in range(4)])
    return (f"s_add_u32 s13, s8, {i}\ns_and_b32 s13, s13, 3\ns_lshl_b32 s13, s13, 14\ns_add_u32 s15, s13, s73\ns_add_u32 s15, s15, s67",
            [dma(13, SWS, f"s_add_u32 s68, s15, {'abcd'.index(it[2])*16384//NPQ + qq*4096}", a + qq*4096, "sc1") for qq in range(4//NPQ)])
lbl = [0]
class Loader:
    def __init__(s_): s_.n = 0; s_.last = {}; s_.cur = -1; s_.occ = []; s_.done = set(); s_.landed = -2
    def copy(s_):
        o = Loader(); o.__dict__.update({k: (x.copy() if hasattr(x, "copy") else x) for k, x in s_.__dict__.items()}); return o
    def wait(s_, names, note=True):
        hi = max(s_.last[i] for i in names)
        if note and hi <= s_.landed: return
        A(f"s_waitcnt vmcnt({min(s_.n - 1 - hi, 63)})")
        if note: s_.landed = hi
    def claim(s_, x):
        lo, hi = LOC[x][0], LOC[x][0] + LOC[x][1]
        for (a_, b_, it) in s_.occ:
            if a_ < hi and lo < b_: assert free[it] <= s_.cur, f"WAR: {x} after {bars[s_.cur]} but {it} free at {free[it]}"
        s_.occ = [o for o in s_.occ if not (o[0] >= lo and o[1] <= hi)] + [(lo, hi, x)]
        if x[0] == "P": assert "pw" in s_.done
    def step(s_, x):
        s_.done.add(x)
        if x not in bars: A.c(x)
        if x == "setup": late_setup()
        elif x in bars:
            s_.cur += 1; assert bars[s_.cur] == x, (x, bars[s_.cur])
            nd = [i for i, f in first.items() if f == s_.cur]
            if nd: s_.wait(nd)
            A(f"s_barrier                ; {x}"); stamp(x)
        elif x == "clr":
            assert "setup" in s_.done
            lbl[0] += 1; s_.last["clr"] = s_.n - 1
            A(f"s_cmp_lg_u32 s3, 0\ns_cbranch_scc1 L_k{lbl[0]}")
            if FSH == 8: A(f"v_lshlrev_b32 v1, 2, v0\nbuffer_store_dword v17, v1, s[{SWS}:{SWS+3}], s77 offen sc1")
            else:
                assert FSH == 10
                A(f"v_lshlrev_b32 v1, 4, v0\nv_mov_b32 v28, 0\nv_mov_b32 v29, 0\nv_mov_b32 v30, 0\nv_mov_b32 v31, 0\nbuffer_store_dwordx4 v[28:31], v1, s[{SWS}:{SWS+3}], s77 offen sc1")
            A(f"L_k{lbl[0]}:")
        elif x.startswith("pf"):
            lo = int(x[2:] or 0)
            A(f"s_sub_u32 s13, s77, {WS_FLAG}\ns_lshl_b32 s13, s13, 7\ns_lshl_b32 s14, s3, 13\ns_add_u32 s13, s13, s14\ns_add_u32 s14, s13, {WS_PART}\ns_add_u32 s15, s14, 4096")
            A("v_mov_b32 v24, -1\nv_mov_b32 v25, -1\nv_mov_b32 v26, -1\nv_mov_b32 v27, -1\nv_lshlrev_b32 v13, 4, v0")
            for p in range(lo, 7):
                A(f"buffer_store_dwordx4 v[24:27], v13, s[{SWS}:{SWS+3}], {'s14' if p < 4 else 's15'} offen offset:{(p&3)*1024} sc1"); s_.n += 1
            s_.last["pf"] = s_.n - 1
        elif x == "atm":
            lbl[0] += 1
            A(f"s_cmp_lg_u32 s3, 0\ns_cbranch_scc1 L_k{lbl[0]}"); s_.wait(["clr"], False)
            if "atm0" in opts:
                A(f"s_cmp_lg_u32 s4, 0\ns_cbranch_scc1 L_kv{lbl[0]}\ns_lshl_b32 s13, s72, 2\ns_mov_b32 s97, 1\ns_atomic_add s97, s[28:29], s13\ns_branch L_k{lbl[0]}"); A(f"L_kv{lbl[0]}:")
            if "d" in SA: A("s_lshl_b32 s13, s72, 2\ns_mov_b32 s97, 1\ns_atomic_add s97, s[28:29], s13")
            else: A(f"s_lshl_b32 s13, s72, 2\nv_mov_b32 v2, 1\ns_mov_b64 exec, 1\nbuffer_atomic_add v2, v17, s[{SDBG}:{SDBG+3}], s13 offen\ns_mov_b64 exec, -1")
            A(f"L_k{lbl[0]}:")
        elif x[0] == "k" and x[1:].isdigit():
            for c in x[1:]:
                it = f"K{int(c) >> 2}"
                if not any(o[2] == it for o in s_.occ): s_.claim(it)
                A(load_ops(it)[1][int(c) & 3]); s_.last[it] = s_.n; s_.n += 1
        elif x == "ci" and opts.get("amp") == "skew" and "sk" not in s_.done:
            s_.done.add("sk")
            A(f"s_lshl_b32 s13, s2, 7\ns_add_u32 s13, s13, 0x40000\nv_mov_b32 v23, s96\nbuffer_store_dword v23, v17, s[{SWS}:{SWS+3}], s13 offen sc1"); s_.n += 1
            s_.step("ci")
        elif x == "ci":
            A(f"buffer_load_dword v20, v19, s[{SDBG}:{SDBG+3}], 0 offen sc1"); s_.last["ci"] = s_.n; s_.n += 1
        elif x == "cw":
            assert s_.cur < bars.index("B10" if oi("flgc", 34) >= 42 else "B9")
            lbl[0] += 1; k = lbl[0]; s_.wait(["ci"])
            A(f"v_cmp_gt_u32 vcc, 4, v20\ns_cbranch_vccz L_lr{k}"); A(f"L_ll{k}:")
            A(f"s_sleep 8\nbuffer_load_dword v20, v19, s[{SDBG}:{SDBG+3}], 0 offen sc1\ns_add_u32 s76, s76, 1\ns_waitcnt vmcnt(0)\ns_cmp_ge_u32 s76, {SPIN}\ns_cbranch_scc1 L_lr{k}\nv_cmp_gt_u32 vcc, 4, v20\ns_cbranch_vccnz L_ll{k}")
            A(f"L_lr{k}:")
        elif x == "pr":
            assert s_.cur >= bars.index("B9" if EARLY8 else "B8")
            for t in range(4): A(f"ds_read_b128 {v(32+4*t,4)}, v14 offset:{LOC['P0'][0] + t*1024}")
        elif x == "pub":
            assert "pr" in s_.done
            A(f"s_lshl_b32 s13, s8, 14\ns_add_u32 s68, s13, s73\ns_waitcnt lgkmcnt(0)")
            for t in range(4): A(f"buffer_store_dwordx4 {v(32+4*t,4)}, v14, s[{SWS}:{SWS+3}], s68 offen offset:{t*1024} sc1")
            s_.n += 4; s_.last["pub"] = s_.n - 1
        elif x == "flg":
            assert "cw" in s_.done; s_.wait(["pub"])
            A(f"s_mov_b64 exec, 15\nbuffer_store_dword v15, v7, s[{SWS}:{SWS+3}], s79 offen offset:128 sc1\ns_mov_b64 exec, -1"); s_.n += 1; stamp(x)
        elif x == "ps":
            assert "cw" in s_.done and bars[s_.cur] == {42: "B10", 58: "B11"}[oi("pbar", 42)]
            A(f"s_lshl_b32 s14, s3, {FSH+3}\ns_add_u32 s13, s79, s14\ns_add_u32 s13, s13, 128\ns_mov_b32 s97, 1\ns_atomic_add s97, s[30:31], s13")
        elif x == "pi" and "p" in SA: A("s_add_u32 s78, s77, 128\ns_load_dword s80, s[30:31], s78 glc")
        elif x == "pw" and "p" in SA:
            assert "ps" in s_.done; lbl[0] += 1; k = lbl[0]
            A(f"s_waitcnt lgkmcnt(0)\ns_cmp_ge_u32 s80, 4\ns_cbranch_scc1 L_lr{k}"); A(f"L_ll{k}:")
            A(f"s_load_dword s80, s[30:31], s78 glc\ns_add_u32 s76, s76, 1\ns_waitcnt lgkmcnt(0)\ns_cmp_ge_u32 s76, {SPIN}\ns_cbranch_scc1 L_lr{k}\ns_cmp_lt_u32 s80, 4\ns_cbranch_scc1 L_ll{k}")
            A(f"L_lr{k}:"); stamp(x)
        elif x == "pi": A(f"s_add_u32 s78, s77, 128\ns_load_dwordx16 s[80:95], s[30:31], s78 glc")
        elif x == "pw":
            assert PUBC or "flg" in s_.done; lbl[0] += 1; k = lbl[0]
            red = "".join(f"s_and_b64 s[80:81], s[80:81], s[{i}:{i+1}]\n" for i in range(82, 96, 2)) + "s_and_b32 s80, s80, s81\n"
            A(f"s_waitcnt lgkmcnt(0)\n{red}s_cbranch_scc1 L_lr{k}"); A(f"L_ll{k}:")
            A(f"s_load_dwordx16 s[80:95], s[30:31], s78 glc\ns_add_u32 s76, s76, 1\ns_waitcnt lgkmcnt(0)\ns_cmp_ge_u32 s76, {SPIN}\ns_cbranch_scc1 L_lr{k}\n{red}s_cbranch_scc0 L_ll{k}")
            A(f"L_lr{k}:"); stamp(x)
        else:
            its = [f"X{x[1:]}", f"W{x[1:]}"] if x[0] == "S" and int(x[1:]) < 8 else [f"V{int(x[1:])-8}", f"U{int(x[1:])-8}"] if x[0] == "S" else [x]
            ops = []
            for it in its: s_.claim(it); st, o = load_ops(it); A(st); ops.append(o)
            if KWAIT[0]: ops[0][0] = ops[0][0].replace("buffer_load", "s_waitcnt lgkmcnt(0)\nbuffer_load"); KWAIT[0] = False
            if len(its) == 1 or ("noseq" not in opts and its[0][0] == "X") or "seq2" in opts:
                for o in ops:
                    for k, z in enumerate(o):
                        if k: z = "s_addk_i32 m0, 0x1000\n" + z.split("\n", 1)[1]
                        A(z); s_.n += 1
            else:
                for k in range(4):
                    for it, o in zip(its, ops):
                        if k < len(o): A(o[k]); s_.n += 1
            for it in its: s_.last[it] = s_.n - 1
    def sigof(s_): return (s_.cur, tuple(sorted((i, min(s_.n - k, 64)) for i, k in s_.last.items() if (first.get(i, -1) > s_.cur and k > s_.landed) or (i == "ci" and "cw" not in s_.done) or (i == "pub" and "flg" not in s_.done) or (i == "clr" and "atm" not in s_.done))), tuple(sorted(s_.occ)), tuple(sorted(x for x in s_.done if x[0].islower() and x[0] != 'k')))

sched = opts.get("sched", DEF).replace("_", " ").split()
if PUBC: sched = [x for x in sched if x not in ("pr", "pub", "flg")]
if "p" in SA and "ps" not in sched: sched.insert(sched.index({42: "B10", 58: "B11"}[oi("pbar", 42)]) + 1, "ps")
NG = len({x.split(":")[0] for x in sched if ":" in x})
L0 = Loader()
k0 = min([i for i, x in enumerate(sched) if ":" in x] + [len(sched)])
for i in range(k0): L0.step(sched[i])
k1 = max([i for i, x in enumerate(sched) if ":" in x] + [k0 - 1]) + 1
def rung(gi, hi):
    Lg = L0.copy()
    for x in sched[k0:hi]:
        if ":" not in x or int(x.split(":")[0]) == gi: Lg.step(x.split(":")[-1])
    return Lg
Lg = L0
if NG:
    pb = oi("parbit", 4)
    A({2: f"s_bfe_u32 s78, s5, {hex(0x10000 | pb)}", 4: f"s_bfe_u32 s78, s5, {hex(0x20000 | pb)}", 3: "s_mul_i32 s78, s5, 3\ns_lshr_b32 s78, s78, 5"}[NG])
    if "x0" in opts:
        del A.lines[-(2 if NG == 3 else 1):]
        if NG == 4: A(f"s_bfe_u32 s78, s5, {hex(0x10000 | pb)}\ns_cmp_eq_u32 s4, 0\ns_cselect_b32 s13, 2, 0\ns_add_u32 s78, s78, s13")
        else: A(f"s_bfe_u32 s78, s5, {hex(0x10000 | pb)}\ns_cmp_eq_u32 s4, 0\ns_cselect_b32 s78, 2, s78")
    while True:
        sa, sl = len(A.lines), lbl[0]
        sg = {rung(gi, k1).sigof() for gi in range(NG)}
        del A.lines[sa:]; lbl[0] = sl
        if len(sg) == 1: break
        k1 += 1; assert k1 <= len(sched)
    for gi in range(1, NG): A(f"s_cmp_eq_u32 s78, {gi}\ns_cbranch_scc1 L_g{gi}")
    for gi in range(NG):
        if gi: A(f"L_g{gi}:")
        Lg = rung(gi, k1)
        if gi < NG - 1 or PADS: A("s_branch L_merge")
        if PADS: A("L_hole0:" if gi == 0 else f"L_holeg{gi}:"); A(f"s_branch L_holeg{gi+1}" if gi < NG - 1 else "s_branch L_hole1")
    A("L_merge:")
    for x in sched[k1:]: Lg.step(x)
assert Lg.cur == len(bars) - 2 - len(EF)
if PADS and not NG: HOLE0 = True
for gi in range(max(NG, 1)):
    kp = ''.join(x.split(':')[-1][1:] for x in sched if x.split(':')[-1][0] == 'k' and (':' not in x or int(x.split(':')[0]) == gi))
    assert not kp or sorted(kp) == sorted('01234567'), kp
if "show" in opts:
    for it in first: print(it, "first", bars[first[it]], "free", bars[free[it]] if free.get(it, 999) < 999 else None)
A.c("final reduce: this wave owns 16 rows x 32 columns; v96..103 = 0/1 selection operand that adds a bf16 partial exactly")
A(f"""s_lshl_b32 s13, s11, 2
s_add_u32 s13, s13, s9
s_lshl_b32 s13, s13, 3
s_add_u32 s13, s13, s4
s_lshl_b32 s14, s13, 2
s_add_u32 s14, s14, s3
s_lshl_b32 s14, s14, 13
s_add_u32 s14, s14, {WS_PART}
{RX.replace('@', 's15')}
s_add_u32 s14, s14, s15
s_lshl_b32 s75, s3, {WSH}
s_add_u32 s13, s77, s75
s_lshl_b32 s75, s3, 6
s_lshl_b32 s77, s9, 8
s_add_u32 s75, s75, s77
s_lshl_b32 s76, s72, 4
v_add_u32 v1, s76, v4
v_lshlrev_b32 v1, 10, v1
v_bfe_u32 v2, v0, 4, 1
v_lshl_add_u32 v1, v2, 5, v1
v_lshrrev_b32 v2, 5, v0
v_lshl_add_u32 v1, v2, 4, v1
v_add_u32 v1, s75, v1
v_add_u32 v14, {OWNP}, v14
s_mov_b32 s76, 0""")
for p in range(7): A(f's_xor_b32 s{88+p}, s14, {p << 10}')
def acc(p):
    for d in range(4):
        r = 64 + 4*p + d
        if p == 0: A(f"v_lshlrev_b32 v{48+2*d}, 16, v{r}\nv_and_b32 v{49+2*d}, s77, v{r}")
        else: A(f"v_lshlrev_b32 v2, 16, v{r}\nv_and_b32 v3, s77, v{r}\nv_pk_add_f32 v[{48+2*d}:{49+2*d}], v[{48+2*d}:{49+2*d}], v[2:3]")
FP = oi("fp", 0); PS = oi("ps", 0)
ZB = "s_barrier\nds_read_b128 v[40:43], v14\nds_read_b128 v[44:47], v14 offset:1024"
if oi("msum", 1):
    A("""v_bfe_u32 v2, v0, 2, 2
v_lshrrev_b32 v3, 4, v0
v_and_b32 v5, 1, v0
v_lshlrev_b32 v5, 4, v5
v_mov_b32 v6, 0x3f80
v_lshlrev_b32 v5, v5, v6
v_cmp_eq_u32 vcc, v2, v3
v_bfe_u32 v6, v0, 1, 1
v_mov_b32 v98, 0
v_cndmask_b32 v5, 0, v5, vcc
v_cmp_eq_u32 vcc, 0, v6
v_mov_b32 v99, 0
v_mov_b32 v100, 0
v_cndmask_b32 v96, 0, v5, vcc
v_mov_b32 v101, 0
v_sub_u32 v97, v5, v96
v_mov_b32 v102, v96
v_mov_b32 v103, v97""")
TP = oi("tp", 3); ntp = [0]
def tpad():
    if TP: A(f"L_tp{ntp[0]}:"); ntp[0] += 1; A(f"s_cbranch_vccnz L_tp{ntp[0]}")
if TP: A("s_mov_b64 vcc, -1\ns_branch L_tp0"); A("L_tb:"); A("s_mov_b64 vcc, 0")
done_ = 0
for k, (at, cnt) in enumerate(EF):
    A(f"s_barrier                ; F{k}")
    for p in range(done_, cnt): A(f"s_xor_b32 s75, s13, {(7-p) << FSH}\ns_add_u32 s75, s75, {4*p}\ns_atomic_add s97, s[30:31], s75")
    done_ = cnt
ZAT = oi("zat", 0)
if ZE and not ZAT: A(ZB)
if oi("ps0", 0): A(f"s_sleep {oi('ps0', 0)}")
if FP:
    for i in range(8): A(f"s_mov_b32 s{80+i}, 0")
for p in range(7):
    if "dg3" in opts or "dg4" in opts: A(f"s_branch L_fd{p}")
    if p > 0: A((f"s_bitcmp1_b32 vcc_lo, {p}" if "vp" in opts else f"s_cmp_lg_u32 s{80+p}, 0") + f"\ns_cbranch_scc1 L_fd{p}")
    A(f"L_fw{p}:")
    if FP and p >= oi("fpfrom", 4):
        A(f"s_load_dwordx8 s[80:87], s[30:31], s13 glc\ns_add_u32 s76, s76, 1\ns_cmp_ge_u32 s76, {SPIN}\ns_sleep {FP}\ns_waitcnt lgkmcnt(12)\ns_cbranch_scc1 L_fd{p}")
    elif "vp" in opts:
        A(f"buffer_load_dword v21, v22, s[{SWS}:{SWS+3}], s13 offen sc1\ns_add_u32 s76, s76, 1\ns_waitcnt vmcnt(0)\nv_cmp_ne_u32 vcc, 0, v21\ns_cmp_ge_u32 s76, {SPIN}\ns_cbranch_scc1 L_fd{p}")
    else:
        if PS: A(f"s_sleep {PS}")
        A(f"s_load_dwordx8 s[80:87], s[30:31], s13 glc\ns_add_u32 s76, s76, 1\ns_cmp_ge_u32 s76, {SPIN}\ns_waitcnt lgkmcnt(0)\ns_cbranch_scc1 L_fd{p}")
    A((f"s_bitcmp0_b32 vcc_lo, {p}" if "vp" in opts else f"s_cmp_eq_u32 s{80+p}, 0") + f"\ns_cbranch_scc1 L_fw{p}")
    A(f"L_fd{p}:")
    if not ("dg1" in opts and p < 6) and "dg4" not in opts: A(f"buffer_load_dwordx4 {v(64+4*p,4)}, v13, s[{SWS}:{SWS+3}], s{88+p} offen sc1 {'nt' if 'fnt' in opts else ''}")
    stamp(f"f{p}")
    if ZE and ZAT and p == ZAT - 1: A(ZB)
    if p in (2, 6): tpad()
if not ZE: A(ZB)
if oi("msum", 1):
    A("s_waitcnt lgkmcnt(0)")
    for p in range(7):
        A(f"s_waitcnt vmcnt({6-p})")
        for nt in range(2): A(f"{MF} {v(40+4*nt,4)}, {v(96+4*nt,4)}, {v(64+4*p,4)}, {v(40+4*nt,4)}")
    tpad()
    A("s_nop 5")
    for d in range(4): A(f"v_cvt_pk_bf16_f32 v{56+d}, v{40+2*d}, v{41+2*d}")
else:
    for p in range(6):
        A(f"s_waitcnt vmcnt({6-p})"); acc(p)
        if p % TP == TP - 1 if TP else False: tpad()
    A("s_waitcnt lgkmcnt(0)")
    for d in range(4): A(f"v_pk_add_f32 v[{48+2*d}:{49+2*d}], v[{48+2*d}:{49+2*d}], v[{40+2*d}:{41+2*d}]")
    A("s_waitcnt vmcnt(0)"); acc(6)
    for d in range(4): A(f"v_cvt_pk_bf16_f32 v{56+d}, v{48+2*d}, v{49+2*d}")
A("s_nop 1\nv_permlane16_swap_b32 v56, v58\nv_permlane16_swap_b32 v57, v59")
A(f"buffer_store_dwordx4 v[56:59], v1, s[{SOUT}:{SOUT+3}], 0 offen {opts.get('outf', 'sc1').replace('+', ' ')}")
if "amp" in opts:
    if opts["amp"] == "end": A("s_waitcnt vmcnt(0)\ns_memrealtime s[98:99]")
    if opts["amp"] == "none": A("s_mov_b32 s98, s100")
    if opts["amp"] == "xcc": A("s_getreg_b32 s13, hwreg(HW_REG_XCC_ID)\ns_and_b32 s13, s13, 7\ns_mul_i32 s13, s13, 125\ns_add_u32 s98, s96, s13")
    if opts["amp"] == "skew":
        A(f"s_load_dword s98, s[30:31], {hex(0x40000 + 128*oi('ampref', 0))} glc\ns_waitcnt lgkmcnt(0)\ns_sub_u32 s98, s96, s98\ns_add_u32 s98, s98, 200\ns_add_u32 s98, s98, s96")
    A(f"s_cmp_lg_u32 s2, {oi('ampwg', 77)}\ns_cbranch_scc1 L_end\ns_waitcnt lgkmcnt(0)\ns_sub_u32 s13, s98, s100\ns_min_u32 s13, s13, 3000\ns_lshl_b32 s13, s13, 3\ns_add_u32 s13, s13, 4000\ns_add_u32 s13, s13, s100\ns_mov_b32 s15, 0")
    A("L_amp:")
    A("s_memrealtime s[98:99]\ns_waitcnt lgkmcnt(0)\ns_add_u32 s15, s15, 1\ns_cmp_gt_u32 s15, 30000\ns_cbranch_scc1 L_end\ns_sub_u32 s14, s98, s13\ns_cmp_lt_i32 s14, 0\ns_cbranch_scc1 L_amp")
if STAMP:
    A("s_waitcnt vmcnt(0)"); stamp("end")
    A("s_cmp_lg_u32 s3, 0\ns_cbranch_scc1 L_end")
    A(f"s_lshl_b32 s13, s2, 9\ns_add_u32 s13, s13, {hex(WS_STAMP)}\nv_lshlrev_b32 v253, 3, v0\nv_add_u32 v253, s13, v253")
    A(f"v_cmp_gt_u32 vcc, 48, v0\ns_nop 1\ns_mov_b64 exec, vcc")
    A(f"buffer_store_dwordx2 v[254:255], v253, s[{SWS}:{SWS+3}], 0 offen")
A("s_endpgm")
if TP: A(f"L_tp{ntp[0]}:"); A("s_branch L_tb")
if PADS: A("L_hole1:"); A("s_branch L_pad0")

out = HEADER
out += "; @launch grid=(256,1,1) block=(512,1,1) lds=163840\n"
if STAMP:
    nm = {0: "t0"}
    for i, n_ in enumerate(lst): nm[i + 1 + (i + 1 >= 30)] = "L" + n_
    for i, n_ in enumerate(cst): nm[48 + i] = n_
    out += "; stampnames " + " ".join(f"{k}={x}" for k, x in nm.items()) + "\n"
out += """;
; One persistent launch, one workgroup per CU (generated by a script of mine; all code is hand-scheduled).
;   waves 4-7 stream tiles into LDS (LDS-DMA, XOR-swizzled images); waves 0-3 run 16x16x32 bf16 MFMAs.
;   2. P is handed to the 3 other heads' workgroups of the same (hg, bp) through d_ws.
;   3. out[:, jn] partial = sum over the 4 heads of P_h (V_h Wo_h[:, jn])   (same function, re-associated).
;   4. the 8 head groups reduce-scatter bf16 partials through d_ws; the owner adds them in fp32 and stores out.
; with the L1 bypassed, so they hold for any workgroup placement.  Flag words are cleared at the start of every
; launch and the clear is certified through counters in d_debug before anyone sets a flag.
"""
out += f'.amdgcn_target "amdgcn-amd-amdhsa--gfx950"\n.text\n.globl {KN}\n.type {KN},@function\n' + A.text() + C.text() + "L_codeend:\n"
out += '.section .rodata,"a"\n' + kd(KN, 256)
if "nopad" not in opts:
    import subprocess, re
    def addrs(text, lab='L_back'):
        open("_ap.s", "w").write(text)
        subprocess.run(["clang", "-x", "assembler", "-target", "amdgcn-amd-amdhsa", "-mcpu=gfx950", "-c", "_ap.s", "-o", "_ap.o"], check=True)
        d = subprocess.run(["llvm-objdump", "-d", "--mcpu=gfx950", "_ap.o"], capture_output=True, text=True).stdout
        d = d[d.index(f"<{lab}>:"):]
        return [int(m.group(1), 16) + (oi("stub", 0x300) if lab != "L_back" or "noal2" in opts else 0) for m in re.finditer(r"// ([0-9A-F]{12}):", d)]
    if oi("lhole", 0):
        lines = out.split("\n"); i0 = lines.index("L_loader:"); i1 = lines.index("L_tb:") if TP else lines.index("L_fw0:")
        ins = [i for i in range(i0, i1) if lines[i].startswith("    ") and not lines[i].strip().startswith(";")]
        ad = addrs(out, "L_loader")
        cross = [j for j in range(1, len(ins)) if ad[j] // 4096 != ad[j-1] // 4096]
        assert len(cross) <= 1
        if cross:
            j = ins[cross[0]]
            ih = lines.index("L_hole1:"); lines[ih] = "L_hole2:"
            lines[j:j] = ["    s_branch L_hskip", "L_hole1:", "    s_branch L_hole2", "L_hskip:"]
            out = "\n".join(lines)
    k = 0
    while True:
        lines = out.split("\n"); i0 = lines.index("L_back:")
        ins = [i for i in range(i0, lines.index('L_end:')) if lines[i].startswith("    ") and not lines[i].strip().startswith(";")]
        ad = addrs(out)
        cross = [j for j in range(1, min(len(ad), len(ins))) if ad[j] // 4096 != ad[j-1] // 4096]
        if k >= len(cross): break
        j = ins[cross[k]]
        ie = lines.index(f"L_pad{k}:"); lines[ie] = f"L_pad{k+1}:"
        lines[j:j] = [f"L_pad{k}:", f"    s_cbranch_vccnz L_pad{k+1}"]
        out = "\n".join(lines); k += 1
open(sys.argv[1], "w").write(out)
```
